```python
import torch

def _softmax(x, axis=-1):
    return torch.softmax(x, dim=axis)
def _gelu(x):
    return torch.nn.functional.gelu(x, approximate="tanh")
def _silu(x):
    return torch.nn.functional.silu(x)
def _sigmoid(x):
    return torch.sigmoid(x)
def _layernorm(x, axis=-1, eps=1e-5):
    m = x.mean(dim=axis, keepdim=True)
    v = x.var(dim=axis, keepdim=True, unbiased=False)
    return (x - m) / torch.sqrt(v + eps)
def _scatter_add(tgt, idx, src, axis=0):
    return tgt.clone().index_add_(axis, idx, src)
def _segment_sum(src, seg, n):
    out = torch.zeros((n,) + src.shape[1:], dtype=src.dtype)
    return out.index_add_(0, seg, src)
def _pad(x, pw):
    flat = tuple(v for pair in reversed(pw) for v in pair)
    return torch.nn.functional.pad(x, flat)

kernel_name = 'gated_mix__sliding_local_dilated__mha_block__prompt'

def setup_inputs():

    _w = (lambda a: (lambda t: t.to(torch.bfloat16) if t.is_floating_point() else t)(torch.as_tensor(a)))
    def _A_setup():
        B, S, D = 1, 2048, 448
        return {
            "x": _w((lambda *s: torch.randn(*s, dtype=torch.bfloat16) * 0.05)(B, S, D)),
            "wqkv": _w((lambda *s: torch.randn(*s, dtype=torch.bfloat16) * 1.6)(D, 3 * D)),
            "wo": _w((lambda *s: torch.randn(*s, dtype=torch.bfloat16) * 0.05)(D, D)),
        }
    _A_in = _A_setup()

    def _B_setup():
        B, S, D, H = 1, 2048, 448, 16
        return {
            "x": _w((lambda *s: torch.randn(*s, dtype=torch.bfloat16) * 0.05)(B, S, D)),
            "wqkv": _w((lambda *s: torch.randn(*s, dtype=torch.bfloat16) * 1.6)(D, 3 * D)),
            "wo": _w((lambda *s: torch.randn(*s, dtype=torch.bfloat16) * 0.1)(D, D)),
        }
    _B_in = _B_setup()

    return {
        "A_x": _A_in["x"],
        "A_wqkv": _A_in["wqkv"],
        "A_wo": _A_in["wo"],
        "B_x": _B_in["x"],
        "B_wqkv": _B_in["wqkv"],
        "B_wo": _B_in["wo"],
        "gate_w": _w((lambda *s: torch.randn(*s, dtype=torch.bfloat16) * 0.05)(448) * 16.0),
    }

def reference(A_x, A_wqkv, A_wo, B_x, B_wqkv, B_wo, gate_w):
    def _A_ref(x, wqkv, wo):
        B, S, D = x.shape
        H = 16; Dh = D // H
        W, dil = 8, 2
        qkv = (lambda x, *d: x.permute(*d))((x @ wqkv).reshape(B, S, 3, H, Dh), 2, 0, 3, 1, 4)
        q, k, v = qkv[0], qkv[1], qkv[2]
        scale = Dh ** -0.5
        pos = torch.arange(S)
        off = torch.arange(W) * dil
        idx = pos[:, None] - off[None, :]
        mask = idx >= 0
        idx_c = torch.where(mask, idx, 0).reshape(-1)
        kg = k[:, :, idx_c, :].reshape(B, H, S, W, Dh)
        vg = v[:, :, idx_c, :].reshape(B, H, S, W, Dh)
        logits = torch.einsum("bhsd,bhswd->bhsw", q, kg) * scale
        logits = torch.where(mask[None, None, :, :], logits, -1e9)
        attn = _softmax(logits, axis=-1)
        o = torch.einsum("bhsw,bhswd->bhsd", attn, vg)
        return (lambda x, *d: x.permute(*d))(o, 0, 2, 1, 3).reshape(B, S, D) @ wo

    def _B_ref(x, wqkv, wo):
        B, S, D = x.shape
        H = 16
        Dh = D // H
        qkv = (lambda x, *d: x.permute(*d))((x @ wqkv).reshape(B, S, 3, H, Dh), 2, 0, 3, 1, 4)
        q, k, v = qkv[0], qkv[1], qkv[2]
        scores = torch.einsum("bhqd,bhkd->bhqk", q, k) * (Dh ** -0.5)
        p = _softmax(scores, axis=-1)
        o = torch.einsum("bhqk,bhkd->bhqd", p, v)
        return (lambda x, *d: x.permute(*d))(o, 0, 2, 1, 3).reshape(B, S, D) @ wo

    x = A_x
    g = _sigmoid((x * gate_w).sum(-1, keepdims=True))
    a = _A_ref(x, A_wqkv, A_wo)
    b = _B_ref(x, B_wqkv, B_wo)
    return g * a + (1 - g) * b
```

```python
import re

def _regs(tok):
    tok = tok.strip()
    tok = tok.lstrip('-')
    m = re.match(r'^abs\((.*)\)$', tok)
    if m: tok = m.group(1)
    m = re.match(r'^\|(.*)\|$', tok)
    if m: tok = m.group(1)
    m = re.match(r'^([vsa])\[(\d+):(\d+)\]$', tok)
    if m:
        return [(m.group(1), i) for i in range(int(m.group(2)), int(m.group(3)) + 1)]
    m = re.match(r'^([vsa])(\d+)$', tok)
    if m:
        return [(m.group(1), int(m.group(2)))]
    if tok == 'vcc': return [('s', 106), ('s', 107)]
    if tok == 'exec': return [('s', 126), ('s', 127)]
    if tok == 'm0': return [('s', 124)]
    return []

TRANS = ('v_exp_f32', 'v_log_f32', 'v_rcp_f32', 'v_rsq_f32', 'v_sqrt_f32', 'v_sin_f32', 'v_cos_f32')

class Asm:
    def __init__(self):
        self.lines = []
        self.auto = True
        self.reset_haz()
        self.vm = []
    def reset_haz(self):
        self.n = 0
        self.valu_w = {}
        self.trans_w = {}
        self.mfma_w = {}
        self.mfma_c = {}
        self.sgpr_valu_w = {}
        self.m0_w = -100
        self.exec_valu_w = -100
        self.store_data = {}
    def raw(self, text):
        self.lines.append(text)
    def comment(self, t):
        self.lines.append('    ; ' + t)
    def label(self, name):
        self.lines.append(name + ':')
    def nop(self, k):
        while k > 0:
            c = min(k, 16)
            self.lines.append(f'    s_nop {c-1}')
            self.n += c
            k -= c
    def __call__(self, text):
        text = text.strip()
        op = text.split()[0]
        rest = text[len(op):].strip()
        ops = [o.strip() for o in re.split(r',(?![^\[]*\])', rest)] if rest else []
        ops2 = []
        for o in ops:
            ops2.append(o.split()[0] if o else o)
        need = 0
        is_mfma = op.startswith('v_mfma')
        is_valu = op.startswith('v_') and not is_mfma
        is_ds = op.startswith('ds_')
        is_vmem = op.startswith('buffer_') or op.startswith('global_')
        is_lds_dma = is_vmem and ' lds' in (' ' + text)
        dst, src = [], []
        if is_mfma:
            dst = _regs(ops2[0]); srcA = _regs(ops2[1]) + _regs(ops2[2]); srcC = _regs(ops2[3]); src = srcA + srcC
        elif is_valu:
            if op.startswith('v_cmp'):
                dst = _regs(ops2[0]); src = sum((_regs(o) for o in ops2[1:]), [])
            elif op.startswith('v_permlane32_swap') or op.startswith('v_permlane16_swap'):
                dst = _regs(ops2[0]) + _regs(ops2[1]); src = dst[:]
            elif op in ('v_add_co_u32', 'v_addc_co_u32', 'v_sub_co_u32'):
                dst = _regs(ops2[0]) + _regs(ops2[1]); src = sum((_regs(o) for o in ops2[2:]), [])
            else:
                dst = _regs(ops2[0]); src = sum((_regs(o) for o in ops2[1:]), [])
                if op.startswith('v_fmac') or op.startswith('v_pk_fmac'): src += dst
                if op == 'v_cndmask_b32' and len(ops2) == 3: src += _regs('vcc')
        elif is_ds:
            if 'read' in op or 'permute' in op or 'swizzle' in op:
                dst = _regs(ops2[0]); src = sum((_regs(o) for o in ops2[1:]), [])
            else:
                src = sum((_regs(o) for o in ops2), [])
        elif is_vmem:
            if 'load' in op and not is_lds_dma:
                dst = _regs(ops2[0]); src = sum((_regs(o) for o in ops2[1:]), [])
            else:
                src = sum((_regs(o) for o in ops2), [])
        else:
            if ops2 and op.startswith('s_') and not op.startswith('s_cmp') and not op.startswith('s_cbranch') and not op.startswith('s_waitcnt') and not op.startswith('s_nop'):
                dst = _regs(ops2[0]); src = sum((_regs(o) for o in ops2[1:]), [])
            else:
                src = sum((_regs(o) for o in ops2), [])
        if self.auto:
            def req(slot, ws):
                nonlocal need
                d = self.n - slot - 1
                if d < ws: need = max(need, ws - d)
            vs = [r for r in src if r[0] in 'va']
            vd = [r for r in dst if r[0] in 'va']
            ss = [r for r in src if r[0] == 's']
            if is_mfma:
                for r in vs:
                    if r in self.valu_w: req(self.valu_w[r], 2)
                for r in srcA:
                    if r in self.mfma_w:
                        sl, p = self.mfma_w[r]; req(sl, {4: 8, 8: 12, 16: 20}[p])
                if srcC:
                    for r in srcC:
                        if r in self.mfma_w:
                            sl, p = self.mfma_w[r]
                            if not (self.mfma_last_d.get(srcC[0]) == (srcC[0], len(srcC))):
                                req(sl, {4: 6, 8: 10, 16: 18}[p])
                req(self.exec_valu_w, 4)
            if is_valu or is_ds or is_vmem:
                for r in vs + vd:
                    if r in self.mfma_w:
                        sl, p = self.mfma_w[r]; req(sl, {4: 8, 8: 12, 16: 20}[p])
            if is_valu:
                for r in vd:
                    if r in self.mfma_c:
                        sl, p = self.mfma_c[r]; req(sl, {4: 3, 8: 7, 16: 15}[p])
                    if r in self.store_data: req(self.store_data[r], 2)
                if op not in TRANS:
                    for r in vs:
                        if r in self.trans_w: req(self.trans_w[r], 1)
                if op.startswith('v_permlane'):
                    for r in vs:
                        if r in self.valu_w: req(self.valu_w[r], 2)
                    req(self.exec_valu_w, 4)
                if op.startswith('v_readfirstlane') or op.startswith('v_readlane'):
                    for r in vs:
                        if r in self.valu_w: req(self.valu_w[r], 1)
                if 'dpp' in text or 'row_' in text or 'quad_perm' in text:
                    for r in vs:
                        if r in self.valu_w: req(self.valu_w[r], 2)
                for r in ss:
                    if r in self.sgpr_valu_w: req(self.sgpr_valu_w[r], 2)
            if is_vmem:
                for r in ss:
                    if r in self.sgpr_valu_w: req(self.sgpr_valu_w[r], 5)
                if is_lds_dma: req(self.m0_w, 1)
            if (is_ds or is_vmem) and vd:
                for r in vd:
                    if r in self.store_data: req(self.store_data[r], 1)
            if need: self.nop(need)
        self.lines.append('    ' + text)
        slot = self.n
        self.n += 1
        if op == 's_nop':
            self.n += int(ops2[0])
        if is_mfma:
            p = 8 if '32x32' in op else 4
            for r in dst: self.mfma_w[r] = (slot, p); self.valu_w.pop(r, None); self.trans_w.pop(r, None)
            for r in srcC: self.mfma_c[r] = (slot, p)
            if not hasattr(self, 'mfma_last_d'): self.mfma_last_d = {}
            self.mfma_last_d[dst[0]] = (dst[0], len(dst))
        elif is_valu:
            for r in dst:
                if r[0] in 'va':
                    self.valu_w[r] = slot; self.mfma_w.pop(r, None)
                    if op in TRANS: self.trans_w[r] = slot
                    else: self.trans_w.pop(r, None)
                else:
                    self.sgpr_valu_w[r] = slot
                    if r == ('s', 126): self.exec_valu_w = slot
        elif is_ds or is_vmem:
            for r in dst:
                self.valu_w.pop(r, None); self.mfma_w.pop(r, None); self.trans_w.pop(r, None)
            if is_vmem and 'store' in op and ('x4' in op or 'x3' in op):
                for r in _regs(ops2[0]) if op.startswith('buffer') else _regs(ops2[1]):
                    self.store_data[r] = slot
        else:
            for r in dst:
                if r == ('s', 124): self.m0_w = slot
                self.sgpr_valu_w.pop(r, None)
    mfma_last_d = {}
    def vmem(self, text, tag=None):
        self(text)
        self.vm.append(tag)
    def vm_wait_tag(self, tag):
        idx = max(i for i, t in enumerate(self.vm) if t == tag)
        n = len(self.vm) - 1 - idx
        assert n <= 63, n
        self(f's_waitcnt vmcnt({n})')
        self.vm = self.vm[idx + 1:]
    def vm_wait_all(self):
        self('s_waitcnt vmcnt(0)')
        self.vm = []
    def text(self):
        return '\n'.join(self.lines) + '\n'
```

```python
import sys, math
sys.path.insert(0, 'gen')
from asmlib import Asm

NAME = 'gated_mix__sliding_local_dilated__mha_block__prompt'
MB = 1 << 20
QF_OFF, KF_OFF, VF_OFF, OF_OFF, WOF_OFF, G_OFF = 0, 4*MB, 8*MB, 12*MB, 16*MB, 17*MB
WS_BYTES = 18*MB
import struct
def f32bits(x): return struct.unpack('<I', struct.pack('<f', x))[0]
CSCALE = f32bits((28 ** -0.5) * math.log2(math.e))
NLOG2E = f32bits(-math.log2(math.e))

def vr(b, n): return f'v[{b}:{b+n-1}]'

def srd(a, s, lo, hi, size):
    a(f's_mov_b32 s{s}, s{lo}')
    a(f's_and_b32 s{s+1}, s{hi}, 0xffff')
    a(f's_mov_b32 s{s+2}, {size}')
    a(f's_mov_b32 s{s+3}, 0x20000')

def header(a, name):
    a.raw('.p2align 8')
    a.raw(f'.globl {name}')
    a.raw(f'.type {name},@function')
    a.label(name)
    a.reset_haz(); a.vm = []

def descriptor(name, vgpr, sgpr=96):
    acc = (vgpr + 3) // 4 * 4
    return f""".amdhsa_kernel {name}
  .amdhsa_next_free_vgpr {vgpr}
  .amdhsa_next_free_sgpr {sgpr}
  .amdhsa_accum_offset {acc}
  .amdhsa_group_segment_fixed_size 0
  .amdhsa_kernarg_size 80
  .amdhsa_user_sgpr_count 2
  .amdhsa_user_sgpr_kernarg_segment_ptr 1
  .amdhsa_system_sgpr_workgroup_id_x 1
.end_amdhsa_kernel
"""

K1_STAGE = 40960
K1_NBUF = 3
def gen_k1(a):
    name = 'qkv_kernel'
    header(a, name)
    a('s_cmp_ge_u32 s2, 256')
    a('s_cbranch_scc1 K1_END')
    a('s_load_dwordx4 s[4:7], s[0:1], 0')
    a('s_load_dwordx2 s[20:21], s[0:1], 16')
    a('s_load_dwordx4 s[24:27], s[0:1], 32')
    a('s_load_dwordx2 s[28:29], s[0:1], 48')
    a('s_load_dwordx2 s[30:31], s[0:1], 72')
    a('s_and_b32 s51, s2, 7')
    a('s_lshr_b32 s52, s2, 3')
    a('s_and_b32 s53, s51, 1'); a('s_lshl_b32 s53, s53, 3'); a('s_lshr_b32 s54, s52, 2'); a('s_add_u32 s44, s53, s54')
    a('s_lshr_b32 s53, s51, 1'); a('s_lshl_b32 s53, s53, 2'); a('s_and_b32 s54, s52, 3'); a('s_add_u32 s45, s53, s54')
    a('s_lshr_b32 s46, s45, 3')
    a('s_and_b32 s47, s45, 7')
    a('v_lshrrev_b32 v1, 6, v0')
    a('v_and_b32 v2, 63, v0')
    a('v_readfirstlane_b32 s48, v1')
    a('s_and_b32 s49, s48, 1')
    a('s_lshr_b32 s50, s48, 1')
    a('s_waitcnt lgkmcnt(0)')
    srd(a, 8, 4, 5, 2048*448*2)
    a('s_cmp_eq_u32 s46, 0')
    a('s_cselect_b32 s12, s6, s24')
    a('s_cselect_b32 s13, s7, s25')
    a('s_and_b32 s13, s13, 0xffff')
    a(f's_mov_b32 s14, {448*1344*2}')
    a('s_mov_b32 s15, 0x20000')
    srd(a, 16, 30, 31, WS_BYTES)
    srd(a, 40, 28, 29, 448*2)
    a('v_and_b32 v3, 31, v2')
    a('v_lshrrev_b32 v4, 5, v2')
    a('s_lshl_b32 s51, s2, 3')
    a('s_lshl_b32 s52, s48, 1')
    a('s_add_u32 s51, s51, s52')
    a('v_add_u32 v5, s51, v4')
    a('s_movk_i32 s52, 896')
    a('v_mul_lo_u32 v6, v5, s52')
    a('v_lshlrev_b32 v7, 5, v3')
    a('v_add_u32 v6, v6, v7')
    a('v_mov_b32 v8, 0x40000000')
    a('v_cmp_gt_u32 vcc, 28, v3')
    a('v_cndmask_b32 v6, v8, v6, vcc')
    a('v_cndmask_b32 v7, v8, v7, vcc')
    a.vmem('buffer_load_dwordx4 v[20:23], v6, s[8:11], 0 offen', 'gate')
    a.vmem('buffer_load_dwordx4 v[24:27], v6, s[8:11], 0 offen offset:16', 'gate')
    a.vmem('buffer_load_dwordx4 v[28:31], v7, s[40:43], 0 offen', 'gate')
    a.vmem('buffer_load_dwordx4 v[32:35], v7, s[40:43], 0 offen offset:16', 'gate')
    a('s_lshl_b32 s51, s2, 2')
    a('s_add_u32 s51, s51, s48')
    a('s_and_b32 s52, s51, 63')
    a('s_lshr_b32 s53, s51, 6')
    a('s_lshr_b32 s54, s52, 5')
    a('s_cmp_eq_u32 s54, 0')
    a('s_cselect_b32 s32, s20, s26')
    a('s_cselect_b32 s33, s21, s27')
    a('s_and_b32 s33, s33, 0xffff')
    a(f's_mov_b32 s34, {448*448*2}')
    a('s_mov_b32 s35, 0x20000')
    a('s_lshr_b32 s55, s52, 1'); a('s_and_b32 s55, s55, 15')
    a('s_and_b32 s56, s52, 1')
    a('s_mul_i32 s55, s55, 28')
    a('s_lshl_b32 s57, s56, 4')
    a('s_add_u32 s55, s55, s57')
    a('v_lshlrev_b32 v9, 2, v4')
    a('v_add_u32 v9, s55, v9')
    a('s_movk_i32 s52, 896')
    a('v_mul_lo_u32 v9, v9, s52')
    a('s_lshl_b32 s53, s53, 6')
    a('v_lshlrev_b32 v10, 1, v3')
    a('v_add3_u32 v9, v9, v10, s53')
    a(f'v_add_u32 v10, {8*896}, v9')
    a('v_lshlrev_b32 v11, 0, v4')
    a('v_and_b32 v11, s56, v11')
    a('v_cmp_eq_u32 vcc, 0, v11')
    a('v_cndmask_b32 v10, v8, v10, vcc')
    a('s_cmp_ge_u32 s2, 224')
    a('s_cselect_b32 s58, 0x40000000, 0')
    for j in range(4):
        a.vmem(f'buffer_load_ushort v{36+j}, v9, s[32:35], s58 offen offset:{896*j}', 'wo')
    for j in range(4):
        a.vmem(f'buffer_load_ushort v{40+j}, v10, s[32:35], s58 offen offset:{896*j}', 'wo')
    a('v_lshrrev_b32 v11, 3, v2')
    a('s_lshl_b32 s51, s44, 7')
    a('s_lshl_b32 s52, s48, 3')
    a('s_add_u32 s51, s51, s52')
    a('v_add_u32 v11, s51, v11')
    a('s_movk_i32 s52, 896')
    a('v_mul_lo_u32 v12, v11, s52')
    a('v_lshrrev_b32 v11, 4, v2')
    a('s_lshl_b32 s52, s48, 2')
    a('v_add_u32 v11, s52, v11')
    a('v_and_b32 v11, 7, v11')
    a('v_and_b32 v13, 7, v2')
    a('v_xor_b32 v11, v11, v13')
    a('v_lshl_add_u32 v12, v11, 4, v12')
    a('s_mul_i32 s52, s47, 112')
    for j in range(6):
        r = 14 + j
        a(f's_lshl_b32 s51, s48, 6')
        a(f's_add_u32 s51, s51, {256*j}')
        a(f'v_add_u32 v44, s51, v2')
        a('s_movk_i32 s53, 3121')
        a('v_mul_lo_u32 v45, v44, s53')
        a('v_lshrrev_b32 v45, 16, v45')
        a('v_mul_u32_u24 v46, 21, v45')
        a('v_sub_u32 v46, v44, v46')
        a('v_mul_u32_u24 v47, 37, v46')
        a('v_lshrrev_b32 v47, 8, v47')
        a('v_and_b32 v48, 0xfffffff0, v45')
        a('v_and_b32 v49, 3, v45')
        a('v_lshl_or_b32 v48, v49, 2, v48')
        a('v_bfe_u32 v49, v45, 2, 2')
        a('v_or_b32 v48, v48, v49')
        a('s_movk_i32 s53, 2688')
        a('v_mul_lo_u32 v48, v48, s53')
        a('s_movk_i32 s53, 784')
        a('v_mul_lo_u32 v47, v47, s53')
        a(f'v_lshl_add_u32 v{r}, v46, 4, v48')
        a(f'v_add3_u32 v{r}, v{r}, v47, s52')
    def dma_stage(st):
        buf = (st % K1_NBUF) * K1_STAGE
        for j in range(4):
            a(f's_lshl_b32 s51, s48, 10')
            a(f's_add_u32 s51, s51, {buf + j*4096}')
            a('s_mov_b32 m0, s51')
            a(f's_mov_b32 s52, {st*128 + j*32*896}')
            a.vmem('buffer_load_dwordx4 v12, s[8:11], s52 offen lds', f'st{st}')
        for j in range(6):
            a(f's_lshl_b32 s51, s48, 10')
            a(f's_add_u32 s51, s51, {buf + 16384 + j*4096}')
            a('s_mov_b32 m0, s51')
            a(f's_mov_b32 s52, {st*64*2688}')
            a.vmem(f'buffer_load_dwordx4 v{14+j}, s[12:15], s52 offen lds', f'st{st}')
    for st in range(K1_NBUF): dma_stage(st)
    a.vm_wait_tag('gate')
    a('v_mov_b32 v44, 0')
    for i in range(8):
        xs, gs = 20 + i, 28 + i
        a(f'v_lshlrev_b32 v45, 16, v{xs}')
        a(f'v_and_b32 v46, 0xffff0000, v{xs}')
        a(f'v_lshlrev_b32 v47, 16, v{gs}')
        a(f'v_and_b32 v48, 0xffff0000, v{gs}')
        a('v_mul_f32 v45, v45, v47')
        a('v_mul_f32 v46, v46, v48')
        a('v_cvt_pk_bf16_f32 v45, v45, v46')
        a('v_lshlrev_b32 v46, 16, v45')
        a('v_and_b32 v45, 0xffff0000, v45')
        a('v_add_f32 v44, v44, v46')
        a('v_add_f32 v44, v44, v45')
    for off in (0x041F, 0x081F, 0x101F, 0x201F, 0x401F):
        a(f'ds_swizzle_b32 v45, v44 offset:{off}')
        a('s_waitcnt lgkmcnt(0)')
        a('v_add_f32 v44, v44, v45')
    a('v_cvt_pk_bf16_f32 v44, v44, v44')
    a('v_lshlrev_b32 v44, 16, v44')
    a(f'v_mul_f32 v44, {NLOG2E}, v44')
    a('v_exp_f32 v44, v44')
    a('v_add_f32 v44, 1.0, v44')
    a('v_rcp_f32 v44, v44')
    a('v_cvt_pk_bf16_f32 v44, v44, v44')
    a('v_lshlrev_b32 v44, 16, v44')
    a('v_lshlrev_b32 v45, 2, v5')
    a(f'v_add_u32 v45, {G_OFF}, v45')
    a('v_cmp_eq_u32 vcc, 0, v3')
    a('v_cndmask_b32 v45, v8, v45, vcc')
    a.vmem('buffer_store_dword v44, v45, s[16:19], 0 offen', 'gst')
    a.vm_wait_tag('wo')
    for j in range(4):
        a(f'v_lshl_or_b32 v{44+j}, v{37+2*j}, 16, v{36+2*j}')
    a('s_lshl_b32 s51, s2, 12')
    a(f's_add_u32 s51, s51, {WOF_OFF}')
    a('s_add_u32 s51, s51, s58')
    a('v_lshlrev_b32 v48, 4, v0')
    a.vmem('buffer_store_dwordx4 v[44:47], v48, s[16:19], s51 offen', 'gst')
    a('v_and_b32 v3, 31, v2')
    a('v_lshrrev_b32 v4, 5, v2')
    a('v_bfe_u32 v5, v3, 1, 3')
    a('s_lshl_b32 s51, s49, 13')
    a('v_lshlrev_b32 v6, 7, v3')
    a('v_add_u32 v6, s51, v6')
    for s in range(4):
        a(f'v_add_u32 v7, {2*s}, v4')
        a('v_xor_b32 v7, v7, v5')
        a(f'v_lshl_add_u32 v{20+s}, v7, 4, v6')
    a('v_bfe_u32 v5, v2, 2, 2')
    a('v_lshlrev_b32 v5, 2, v5')
    a('v_lshl_add_u32 v5, v4, 1, v5')
    a('v_mul_u32_u24 v5, 336, v5')
    a('v_bfe_u32 v6, v2, 4, 1')
    a('v_lshl_add_u32 v5, v6, 5, v5')
    a('v_and_b32 v6, 3, v2')
    a('v_lshl_add_u32 v5, v6, 3, v5')
    a('s_mul_i32 s51, s50, 56')
    a(f's_add_u32 s51, s51, 16384')
    a('v_add_u32 v24, s51, v5')
    ACC = 32
    XF = 128
    WF = 144
    for i in range(96):
        a(f'v_mov_b32 v{ACC+i}, 0')
    def acc(which, tt): return ACC + (which*2 + tt)*16
    def rd_frags(st, s, pb):
        buf = (st % K1_NBUF) * K1_STAGE
        for tt in range(2):
            a(f'ds_read_b128 {vr(XF+pb*8+tt*4,4)}, v{25+s} offset:{tt*4096}')
        for which in range(3):
            for u in range(2):
                a(f'ds_read_b64_tr_b16 {vr(WF+pb*12+which*4+u*2,2)}, v29 offset:{s*5376+u*336+which*112}')
    def set_stage_addr(st):
        buf = (st % K1_NBUF) * K1_STAGE
        for s in range(4):
            a(f'v_add_u32 v{25+s}, {buf}, v{20+s}')
        a(f'v_add_u32 v29, {buf}, v24')
    def mfmas(pb):
        for which in range(3):
            for tt in range(2):
                xf = vr(XF+pb*8+tt*4, 4); wf = vr(WF+pb*12+which*4, 4); d = vr(acc(which, tt), 16)
                if which < 2: a(f'v_mfma_f32_32x32x16_bf16 {d}, {wf}, {xf}, {d}')
                else:         a(f'v_mfma_f32_32x32x16_bf16 {d}, {xf}, {wf}, {d}')
    a.vm_wait_tag('st0')
    a('s_barrier')
    set_stage_addr(0)
    rd_frags(0, 0, 0)
    NST = 7
    step = 0
    for st in range(NST):
        for s in range(4):
            pb = step & 1
            last = (st == NST-1 and s == 3)
            if s < 3:
                rd_frags(st, s+1, pb ^ 1)
                a('s_waitcnt lgkmcnt(8)')
            elif not last:
                a('s_waitcnt lgkmcnt(0)')
                a.vm_wait_tag(f'st{st+1}')
                a('s_barrier')
                if st + K1_NBUF < NST: dma_stage(st + K1_NBUF)
                set_stage_addr(st+1)
                rd_frags(st+1, 0, pb ^ 1)
            else:
                a('s_waitcnt lgkmcnt(0)')
            mfmas(pb)
            step += 1
    a('s_lshl_b32 s51, s47, 1'); a('s_add_u32 s51, s51, s50')
    a('s_lshl_b32 s52, s46, 4'); a('s_add_u32 s51, s51, s52')
    a('s_lshl_b32 s51, s51, 17')
    a('s_lshl_b32 s52, s44, 2'); a('s_lshl_b32 s53, s49, 1'); a('s_add_u32 s52, s52, s53')
    a('s_lshl_b32 s52, s52, 11')
    a('s_add_u32 s51, s51, s52')
    a('v_lshlrev_b32 v3, 4, v2')
    a(f's_mov_b32 s56, {CSCALE}')
    a('v_cmp_gt_u32 s[60:61], 32, v2')
    a('v_and_b32 v4, 31, v2')
    a('v_cmp_eq_u32 s[62:63], 28, v4')
    a('v_mov_b32 v5, 0')
    a('v_mov_b32 v6, 0x3f803f80')
    for which in range(3):
        a(f's_add_u32 s52, s51, {which*4*MB}')
        for tt in range(2):
            b = acc(which, tt)
            if which == 0:
                for i in range(16): a(f'v_mul_f32 v{b+i}, s56, v{b+i}')
            for i in range(8):
                a(f'v_cvt_pk_bf16_f32 v{b+i}, v{b+2*i}, v{b+2*i+1}')
            if which < 2:
                a(f'v_cndmask_b32 v{b+6}, v5, v{b+6}, s[60:61]')
                a(f'v_cndmask_b32 v{b+7}, v5, v{b+7}, s[60:61]')
            else:
                for i in range(8): a(f'v_cndmask_b32 v{b+i}, v{b+i}, v6, s[62:63]')
            a.vmem(f'buffer_store_dwordx4 {vr(b,4)}, v3, s[16:19], s52 offen offset:{tt*2048}', 'out')
            a.vmem(f'buffer_store_dwordx4 {vr(b+4,4)}, v3, s[16:19], s52 offen offset:{tt*2048+1024}', 'out')
    a.label('K1_END')
    a('s_endpgm')
    return descriptor(name, 168)

K2_BUF = 32768
K2_COMB = 4*K2_BUF
K2_FLAG = K2_COMB + 4*17*256
K2_LDS = K2_FLAG + 64
VQ, VNEG, VS, VP, VO, VK, VV = 16, 24, 40, 72, 80, 96, 112
def gen_k2(a):
    name = 'attn_kernel'
    header(a, name)
    a('s_cmp_ge_u32 s2, 256')
    a('s_cbranch_scc1 K2_END')
    a('s_load_dwordx2 s[4:5], s[0:1], 72')
    a('s_and_b32 s20, s2, 15')
    a('s_lshr_b32 s21, s2, 4')
    a('v_lshrrev_b32 v1, 6, v0')
    a('v_and_b32 v2, 63, v0')
    a('v_readfirstlane_b32 s22, v1')
    a('s_and_b32 s23, s22, 3')
    a('s_lshr_b32 s24, s22, 2')
    a('s_lshl_b32 s25, s21, 2'); a('s_add_u32 s25, s25, s23')
    a('v_lshlrev_b32 v3, 4, v2')
    a('s_lshl_b32 s26, s22, 11')
    a('v_add_u32 v4, s26, v3')
    a('s_lshl_b32 s27, s24, 13')
    a('v_add_u32 v5, s27, v3')
    a('v_add_u32 v6, 0x10000, v5')
    a('s_waitcnt lgkmcnt(0)')
    srd(a, 8, 4, 5, WS_BYTES)
    a('s_lshl_b32 s28, s20, 17')
    a('s_add_u32 s29, s28, 0x200000')
    a('s_lshl_b32 s30, s25, 11')
    a('s_add_u32 s31, s29, s30')
    a.vmem(f'buffer_load_dwordx4 {vr(VQ,4)}, v3, s[8:11], s31 offen', 'q')
    a.vmem(f'buffer_load_dwordx4 {vr(VQ+4,4)}, v3, s[8:11], s31 offen offset:1024', 'q')
    a('v_and_b32 v7, 31, v2')
    a('s_lshl_b32 s31, s25, 7')
    a(f's_add_u32 s31, s31, {G_OFF}')
    a('v_lshlrev_b32 v8, 2, v7')
    a.vmem('buffer_load_dword v9, v8, s[8:11], s31 offen', 'q')
    a('v_mov_b32 v10, 0')
    a(f'v_mov_b32 v11, {K2_FLAG}')
    a('ds_write_b32 v11, v10')
    a('s_cmp_eq_u32 s24, 0')
    a('s_cbranch_scc1 K2_NOA1')
    a('s_add_u32 s31, s28, s30')
    a('s_sub_u32 s32, s31, 2048')
    a('s_cmp_eq_u32 s25, 0')
    a('s_cselect_b32 s32, s31, s32')
    a('s_cselect_b32 s33, 1000, 32')
    a(f'buffer_load_dwordx4 {vr(VNEG,4)}, v3, s[8:11], s31 offen')
    a(f'buffer_load_dwordx4 {vr(VNEG+4,4)}, v3, s[8:11], s31 offen offset:1024')
    a(f's_add_u32 s34, s32, {KF_OFF}')
    a(f's_add_u32 s35, s31, {KF_OFF}')
    a(f'buffer_load_dwordx4 {vr(VK,4)}, v3, s[8:11], s34 offen')
    a(f'buffer_load_dwordx4 {vr(VK+4,4)}, v3, s[8:11], s34 offen offset:1024')
    a(f'buffer_load_dwordx4 {vr(VK+8,4)}, v3, s[8:11], s35 offen')
    a(f'buffer_load_dwordx4 {vr(VK+12,4)}, v3, s[8:11], s35 offen offset:1024')
    a(f's_add_u32 s34, s32, {VF_OFF}')
    a(f's_add_u32 s35, s31, {VF_OFF}')
    a(f'buffer_load_dwordx4 {vr(VV,4)}, v3, s[8:11], s34 offen')
    a(f'buffer_load_dwordx4 {vr(VV+4,4)}, v3, s[8:11], s34 offen offset:1024')
    a(f'buffer_load_dwordx4 {vr(VV+8,4)}, v3, s[8:11], s35 offen')
    a(f'buffer_load_dwordx4 {vr(VV+12,4)}, v3, s[8:11], s35 offen offset:1024')
    a.label('K2_NOA1')
    def dma_stage(st):
        buf = (st % 4) * K2_BUF
        for reg, loff in ((KF_OFF, 0), (VF_OFF, 16384)):
            a(f's_add_u32 s36, s26, {buf + loff}')
            a('s_mov_b32 m0, s36')
            a(f's_add_u32 s37, s29, {reg + st*16384}')
            a.vmem('buffer_load_dwordx4 v4, s[8:11], s37 offen lds', f'st{st}')
            a.vmem('buffer_load_dwordx4 v4, s[8:11], s37 offen offset:1024 lds', f'st{st}')
    for st in range(4): dma_stage(st)
    a('s_cmp_eq_u32 s24, 0')
    a('s_cbranch_scc1 K2_NOA2')
    a('s_waitcnt vmcnt(16)')
    S0, S1 = VS, VS+16
    a(f'v_mfma_f32_32x32x16_bf16 {vr(S0,16)}, {vr(VK,4)}, {vr(VNEG,4)}, 0')
    a(f'v_mfma_f32_32x32x16_bf16 {vr(S0,16)}, {vr(VK+4,4)}, {vr(VNEG+4,4)}, {vr(S0,16)}')
    a(f'v_mfma_f32_32x32x16_bf16 {vr(S1,16)}, {vr(VK+8,4)}, {vr(VNEG,4)}, 0')
    a(f'v_mfma_f32_32x32x16_bf16 {vr(S1,16)}, {vr(VK+12,4)}, {vr(VNEG+4,4)}, {vr(S1,16)}')
    a('v_lshrrev_b32 v10, 5, v2')
    a('v_lshlrev_b32 v10, 2, v10')
    a('v_sub_u32 v10, v7, v10')
    a('v_add_u32 v11, s33, v10')
    a('v_mov_b32 v12, 0xff800000')
    for ti, (sb, db) in enumerate(((S0, 11), (S1, 10))):
        for r in range(16):
            kofs = (r & 3) + 8*(r >> 2)
            a(f'v_subrev_u32 v13, {kofs}, v{db}')
            a('v_and_b32 v14, 1, v13')
            a('v_lshl_or_b32 v13, v14, 8, v13')
            a('v_cmp_gt_u32 vcc, 15, v13')
            a(f'v_cndmask_b32 v{sb+r}, v12, v{sb+r}, vcc')
    a(f'v_max3_f32 v13, v{S0}, v{S0+1}, v{S0+2}')
    for r in range(3, 31, 2):
        a(f'v_max3_f32 v13, v13, v{S0+r}, v{S0+r+1}')
    a(f'v_max_f32 v13, v13, v{S0+31}')
    a('v_mov_b32 v14, v13')
    a('v_permlane32_swap_b32 v13, v14')
    a('v_max_f32 v13, v13, v14')
    for r in range(32):
        a(f'v_sub_f32 v{S0+r}, v{S0+r}, v13')
        a(f'v_exp_f32 v{S0+r}, v{S0+r}')
    for i in range(16):
        a(f'v_cvt_pk_bf16_f32 v{S0+i}, v{S0+2*i}, v{S0+2*i+1}')
    a(f'v_mfma_f32_32x32x16_bf16 {vr(VO,16)}, {vr(VV,4)}, {vr(S0,4)}, 0')
    a(f'v_mfma_f32_32x32x16_bf16 {vr(VO,16)}, {vr(VV+4,4)}, {vr(S0+4,4)}, {vr(VO,16)}')
    a(f'v_mfma_f32_32x32x16_bf16 {vr(VO,16)}, {vr(VV+8,4)}, {vr(S0+8,4)}, {vr(VO,16)}')
    a(f'v_mfma_f32_32x32x16_bf16 {vr(VO,16)}, {vr(VV+12,4)}, {vr(S0+12,4)}, {vr(VO,16)}')
    def finalize(gate_expr_reg, br):
        a(f'v_mov_b32 v13, v{VO+12}')
        a(f'v_mov_b32 v14, v{VO+12}')
        a('v_permlane32_swap_b32 v13, v14')
        a('v_rcp_f32 v14, v14')
        a(f'v_mul_f32 v14, v14, v{gate_expr_reg}')
        for r in range(16): a(f'v_mul_f32 v{VO+r}, v14, v{VO+r}')
        for i in range(8): a(f'v_cvt_pk_bf16_f32 v{VO+i}, v{VO+2*i}, v{VO+2*i+1}')
        a('v_cmp_gt_u32 vcc, 32, v2')
        a('v_mov_b32 v13, 0')
        a(f'v_cndmask_b32 v{VO+6}, v13, v{VO+6}, vcc')
        a(f'v_cndmask_b32 v{VO+7}, v13, v{VO+7}, vcc')
        a('s_lshl_b32 s38, s25, 16')
        a('s_lshl_b32 s39, s20, 11')
        a('s_add_u32 s38, s38, s39')
        a(f's_add_u32 s38, s38, {OF_OFF + br*32768}')
        a(f'buffer_store_dwordx4 {vr(VO,4)}, v3, s[8:11], s38 offen')
        a(f'buffer_store_dwordx4 {vr(VO+4,4)}, v3, s[8:11], s38 offen offset:1024')
    finalize(9, 0)
    a.label('K2_NOA2')
    a.reset_haz(); a.nop(4)

    def lds_tile(idx, isv, t):
        st, i = idx >> 2, idx & 3
        b = st % 4
        base = 'v5' if b < 2 else 'v6'
        off = (b & 1) * K2_BUF + (16384 if isv else 0) + i*2048 + t*1024
        return base, off
    def rdK(idx):
        for t in range(2):
            base, off = lds_tile(idx, False, t)
            a(f'ds_read_b128 {vr(VK+(idx&1)*8+t*4,4)}, {base} offset:{off}')
    def rdV(idx):
        for t in range(2):
            base, off = lds_tile(idx, True, t)
            a(f'ds_read_b128 {vr(VV+(idx&1)*8+t*4,4)}, {base} offset:{off}')
    def stage_sync(st):
        a.vm_wait_tag(f'st{st}')
        a('s_barrier')
        if st >= 2 and st + 2 < 8: dma_stage(st + 2)
    NT = 32
    def smfma(idx, cneg):
        d = vr(VS+(idx&1)*16, 16); k = VK+(idx&1)*8
        c = vr(VNEG,16) if cneg else '0'
        a(f'v_mfma_f32_32x32x16_bf16 {d}, {vr(k,4)}, {vr(VQ,4)}, {c}')
        a(f'v_mfma_f32_32x32x16_bf16 {d}, {vr(k+4,4)}, {vr(VQ+4,4)}, {d}')
    def pv(idx, first):
        v = VV+(idx&1)*8
        c = '0' if first else vr(VO,16)
        a(f'v_mfma_f32_32x32x16_bf16 {vr(VO,16)}, {vr(v,4)}, {vr(VP,4)}, {c}')
        a(f'v_mfma_f32_32x32x16_bf16 {vr(VO,16)}, {vr(v+4,4)}, {vr(VP+4,4)}, {vr(VO,16)}')
    def tilemax(sb, dst):
        a(f'v_max3_f32 v{dst}, v{sb}, v{sb+1}, v{sb+2}')
        for r in range(3, 15, 2):
            a(f'v_max3_f32 v{dst}, v{dst}, v{sb+r}, v{sb+r+1}')
        a(f'v_max_f32 v{dst}, v{dst}, v{sb+15}')
        a(f'v_mov_b32 v13, v{dst}')
        a(f'v_permlane32_swap_b32 v{dst}, v13')
        a(f'v_max_f32 v{dst}, v{dst}, v13')
    a('s_waitcnt lgkmcnt(0)')
    stage_sync(0)
    a('v_sub_f32 v15, 1.0, v9')
    rdK(0)
    a('s_waitcnt lgkmcnt(0)')
    d = vr(VS+16, 16)
    a(f'v_mfma_f32_32x32x16_bf16 {d}, {vr(VK,4)}, {vr(VQ,4)}, 0')
    a(f'v_mfma_f32_32x32x16_bf16 {d}, {vr(VK+4,4)}, {vr(VQ+4,4)}, {d}')
    tilemax(VS+16, 12)
    for r in range(16): a(f'v_sub_f32 v{VNEG+r}, 0, v12')
    smfma(0, True)
    rdK(1); rdV(0)
    for idx in range(NT):
        if idx + 1 < NT:
            a('s_waitcnt lgkmcnt(2)')
            smfma(idx+1, True)
        n_out = 2
        if idx + 2 < NT:
            if (idx + 2) % 4 == 0: stage_sync((idx+2) >> 2)
            rdK(idx+2); n_out += 2
        if idx + 1 < NT:
            rdV(idx+1); n_out += 2
        sb = VS + (idx&1)*16
        for i in range(8):
            a(f'v_exp_f32 v{sb+2*i}, v{sb+2*i}')
            a(f'v_exp_f32 v{sb+2*i+1}, v{sb+2*i+1}')
            if i > 0: a(f'v_cvt_pk_bf16_f32 v{VP+i-1}, v{sb+2*i-2}, v{sb+2*i-1}')
        a(f'v_cvt_pk_bf16_f32 v{VP+7}, v{sb+14}, v{sb+15}')
        a(f's_waitcnt lgkmcnt({n_out-2})')
        pv(idx, idx == 0)
    a(f'v_add_f32 v13, |v{VO}|, |v{VO+1}|')
    for r in range(2, 16): a(f'v_add_f32 v13, v13, |v{VO+r}|')
    a('v_mov_b32 v14, 0x7b800000')
    a('v_cmp_nlt_f32 vcc, v13, v14')
    a('s_cbranch_vccz K2_OKFAST')
    a('v_mov_b32 v10, 1')
    a(f'v_mov_b32 v11, {K2_FLAG}')
    a('ds_write_b32 v11, v10')
    a.label('K2_OKFAST')
    def combine(tag):
        a('s_mul_i32 s38, s23, %d' % (17*256))
        a(f's_add_u32 s38, s38, {K2_COMB}')
        a('v_lshlrev_b32 v10, 2, v2')
        a('v_add_u32 v10, s38, v10')
        a('s_cmp_eq_u32 s24, 0')
        a(f's_cbranch_scc1 K2_C1_{tag}')
        for r in range(16): a(f'ds_write_b32 v10, v{VO+r} offset:{256*r}')
        a(f'ds_write_b32 v10, v12 offset:{256*16}')
        a.label(f'K2_C1_{tag}')
        a('s_waitcnt lgkmcnt(0)')
        a('s_barrier')
    combine('F')
    a(f'v_mov_b32 v11, {K2_FLAG}')
    a('ds_read_b32 v11, v11')
    a('s_waitcnt lgkmcnt(0)')
    a('v_readfirstlane_b32 s38, v11')
    a('s_cmp_eq_u32 s38, 0')
    a('s_cbranch_scc1 K2_MERGE')
    a('s_barrier')
    a.vm_wait_all()
    for st in range(4): dma_stage(st)
    a('v_mov_b32 v12, 0xff7fffff')
    for r in range(16): a(f'v_mov_b32 v{VO+r}, 0')
    for idx in range(NT):
        if idx % 4 == 0: stage_sync(idx >> 2)
        rdK(idx); rdV(idx)
        a('s_waitcnt lgkmcnt(0)')
        smfma(idx, False)
        sb = VS + (idx&1)*16
        tilemax(sb, 11)
        a('v_max_f32 v11, v11, v12')
        a('v_sub_f32 v10, v12, v11')
        a('v_exp_f32 v10, v10')
        a('v_mov_b32 v12, v11')
        for r in range(16):
            a(f'v_sub_f32 v{sb+r}, v{sb+r}, v11')
            a(f'v_exp_f32 v{sb+r}, v{sb+r}')
        for i in range(8): a(f'v_cvt_pk_bf16_f32 v{VP+i}, v{sb+2*i}, v{sb+2*i+1}')
        for r in range(16): a(f'v_mul_f32 v{VO+r}, v10, v{VO+r}')
        pv(idx, False)
        if idx % 4 == 3 and idx + 1 < NT:
            pass
    a('s_barrier')
    combine('S')
    a.label('K2_MERGE')
    a.reset_haz(); a.nop(16)
    a('s_cmp_eq_u32 s24, 0')
    a('s_cbranch_scc0 K2_END')
    for r in range(16): a(f'ds_read_b32 v{VS+r}, v10 offset:{256*r}')
    a(f'ds_read_b32 v11, v10 offset:{256*16}')
    a('s_waitcnt lgkmcnt(0)')
    a('v_max_f32 v13, v11, v12')
    a('v_sub_f32 v11, v11, v13')
    a('v_sub_f32 v12, v12, v13')
    a('v_exp_f32 v11, v11')
    a('v_exp_f32 v12, v12')
    for r in range(16):
        a(f'v_mul_f32 v{VO+r}, v12, v{VO+r}')
        a(f'v_fmac_f32 v{VO+r}, v11, v{VS+r}')
    finalize(15, 1)
    a.label('K2_END')
    a('s_endpgm')
    return descriptor(name, 128)

def gen_k3(a):
    name = 'out_kernel'
    header(a, name)
    a('s_cmp_ge_u32 s2, 224')
    a('s_cbranch_scc1 K3_END')
    a('s_load_dwordx2 s[4:5], s[0:1], 72')
    a('s_load_dwordx2 s[6:7], s[0:1], 56')
    a('s_and_b32 s20, s2, 7'); a('s_lshr_b32 s21, s2, 3')
    a('s_mul_i32 s22, s21, 37'); a('s_lshr_b32 s22, s22, 8')
    a('s_mul_i32 s23, s22, 7'); a('s_sub_u32 s23, s21, s23')
    a('s_lshl_b32 s20, s20, 2'); a('s_add_u32 s22, s22, s20')
    a('v_lshrrev_b32 v1, 6, v0')
    a('v_and_b32 v2, 63, v0')
    a('v_readfirstlane_b32 s24, v1')
    a('s_and_b32 s25, s24, 1')
    a('s_lshr_b32 s26, s24, 1')
    a('v_lshlrev_b32 v3, 4, v2')
    a('s_waitcnt lgkmcnt(0)')
    srd(a, 8, 4, 5, WS_BYTES)
    srd(a, 12, 6, 7, 2048*448*2)
    a('s_lshl_b32 s27, s22, 1'); a('s_add_u32 s27, s27, s24'); a('s_lshl_b32 s27, s27, 16'); a(f's_add_u32 s27, s27, {OF_OFF}')
    a('s_lshl_b32 s28, s23, 1'); a('s_add_u32 s28, s28, s24'); a('s_sub_u32 s28, s28, 2'); a('s_lshl_b32 s28, s28, 16'); a(f's_add_u32 s28, s28, {WOF_OFF}')
    a('s_cmp_lt_u32 s24, 2')
    a('s_cselect_b32 s27, s27, s28')
    a('s_lshl_b32 s29, s24, 13')
    def dma_stage(st):
        buf = (st % 4) * 32768
        for half in range(2):
            a(f's_add_u32 s30, s29, {buf + half*4096}')
            a('s_mov_b32 m0, s30')
            a(f's_add_u32 s31, s27, {st*8192 + half*4096}')
            for q in range(4):
                a.vmem(f'buffer_load_dwordx4 v3, s[8:11], s31 offen offset:{q*1024} lds', f'st{st}')
    for st in range(4): dma_stage(st)
    a('s_lshl_b32 s30, s25, 13')
    a('v_add_u32 v4, s30, v3')
    a('s_lshl_b32 s30, s26, 13')
    a('s_add_u32 s30, s30, 16384')
    a('v_add_u32 v5, s30, v3')
    a('v_add_u32 v6, 0x10000, v4')
    a('v_add_u32 v7, 0x10000, v5')
    ACC, FA, FB = 16, 32, 40
    def rd(ks):
        st, k = ks >> 3, ks & 7
        b = st % 4
        off = (b & 1)*32768 + k*1024
        a(f'ds_read_b128 {vr(FA+(ks&1)*4,4)}, {"v5" if b<2 else "v7"} offset:{off}')
        a(f'ds_read_b128 {vr(FB+(ks&1)*4,4)}, {"v4" if b<2 else "v6"} offset:{off}')
    def stage_sync(st):
        a.vm_wait_tag(f'st{st}')
        a('s_barrier')
    a.vm_wait_tag('st0'); a('s_barrier')
    rd(0)
    for ks in range(64):
        if ks + 1 < 64:
            if (ks + 1) % 8 == 0:
                st = (ks+1) >> 3
                a('s_waitcnt lgkmcnt(0)')
                a.vm_wait_tag(f'st{st}')
                a('s_barrier')
                if st + 3 < 8: dma_stage(st + 3)
                rd(ks+1)
            else:
                rd(ks+1)
                a('s_waitcnt lgkmcnt(2)')
        else:
            a('s_waitcnt lgkmcnt(0)')
        c = '0' if ks == 0 else vr(ACC,16)
        a(f'v_mfma_f32_32x32x16_bf16 {vr(ACC,16)}, {vr(FA+(ks&1)*4,4)}, {vr(FB+(ks&1)*4,4)}, {c}')
    a('v_and_b32 v8, 31, v2')
    a('s_lshl_b32 s30, s22, 6'); a('s_lshl_b32 s31, s25, 5'); a('s_add_u32 s30, s30, s31')
    a('v_add_u32 v8, s30, v8')
    a('s_movk_i32 s31, 896')
    a('v_mul_lo_u32 v8, v8, s31')
    a('v_lshrrev_b32 v9, 5, v2')
    a('v_lshl_add_u32 v8, v9, 3, v8')
    a('s_lshl_b32 s30, s23, 7'); a('s_lshl_b32 s31, s26, 6'); a('s_add_u32 s30, s30, s31')
    for i in range(8): a(f'v_cvt_pk_bf16_f32 v{ACC+i}, v{ACC+2*i}, v{ACC+2*i+1}')
    for q in range(4):
        a(f'buffer_store_dwordx2 {vr(ACC+2*q,2)}, v8, s[12:15], s30 offen offset:{16*q}')
    a.label('K3_END')
    a('s_endpgm')
    return descriptor(name, 48)

def main():
    a = Asm()
    hdr = open('cdna_kernels/%s.s.ref' % NAME).read().split('; Override launch')[0]
    out = hdr
    out += f'; @launch kernel=qkv_kernel grid=(256,1,1) block=(256,1,1) lds={K1_STAGE*K1_NBUF}\n'
    out += f'; @launch kernel=attn_kernel grid=(256,1,1) block=(512,1,1) lds={K2_LDS}\n'
    out += f'; @launch kernel=out_kernel grid=(224,1,1) block=(256,1,1) lds={4*32768}\n'
    out += '.amdgcn_target "amdgcn-amd-amdhsa--gfx950"\n.text\n'
    d1 = gen_k1(a); d2 = gen_k2(a); d3 = gen_k3(a)
    out += a.text()
    out += '.section .rodata,"a"\n'
    for d in (d1, d2, d3):
        out += '.p2align 6\n' + d
    open('cdna_kernels/%s.s' % NAME, 'w').write(out)
main()
```

```python
import sys, math
sys.path.insert(0, 'gen')
from asmlib import Asm

NAME = 'gated_mix__sliding_local_dilated__mha_block__prompt'
MB = 1 << 20
QF_OFF, KF_OFF, VF_OFF, OF_OFF, WOF_OFF, G_OFF = 0, 4*MB, 8*MB, 12*MB, 16*MB, 17*MB
WS_BYTES = 18*MB
import struct
def f32bits(x): return struct.unpack('<I', struct.pack('<f', x))[0]
CSCALE = f32bits((28 ** -0.5) * math.log2(math.e))
NLOG2E = f32bits(-math.log2(math.e))

def vr(b, n): return f'v[{b}:{b+n-1}]'

def srd(a, s, lo, hi, size):
    a(f's_mov_b32 s{s}, s{lo}')
    a(f's_and_b32 s{s+1}, s{hi}, 0xffff')
    a(f's_mov_b32 s{s+2}, {size}')
    a(f's_mov_b32 s{s+3}, 0x20000')

import os
STAMP = int(os.environ.get('STAMP', '0'))
def stamp(a, i):
    if not STAMP: return
    a('s_memtime s[90:91]')
    a('s_waitcnt lgkmcnt(0)')
    a(f's_mov_b32 s{70+i}, s90')
def stamp_flush(a, n, wavereg):
    if not STAMP: return
    a('s_load_dwordx2 s[92:93], s[0:1], 64')
    a('s_waitcnt lgkmcnt(0)')
    a(f's_cmp_lg_u32 s2, {STAMP-1}')
    a('s_cbranch_scc1 NOSTAMP_%d' % len(a.lines))
    lab = 'NOSTAMP_%d' % (len(a.lines)-1)
    a(f's_cmp_lg_u32 {wavereg}, 0')
    a('s_cbranch_scc1 ' + lab)
    a('v_mov_b32 v1, 0')
    for i in range(n):
        a(f's_sub_u32 s94, s{70+i}, s70')
        a('v_mov_b32 v2, s94')
        a(f'global_store_dword v1, v2, s[92:93] offset:{4*i}')
    a('s_waitcnt vmcnt(0)')
    a.label(lab)

def rt_start(a):
    if not STAMP: return
    a('s_memrealtime s[86:87]')
    a('s_waitcnt lgkmcnt(0)')
def rt_end(a, kidx, wavereg):
    if not STAMP: return
    a('s_memrealtime s[88:89]')
    a('s_load_dwordx2 s[92:93], s[0:1], 72')
    a('s_waitcnt lgkmcnt(0)')
    lab = 'NORT_%d' % len(a.lines)
    a(f's_cmp_lg_u32 {wavereg}, 0')
    a('s_cbranch_scc1 ' + lab)
    a('s_lshl_b32 s94, s2, 3')
    a(f's_add_u32 s94, s94, {32*MB + kidx*4096}')
    a('v_mov_b32 v1, s94')
    a('v_mov_b32 v2, s86')
    a('v_mov_b32 v3, s88')
    a('global_store_dwordx2 v1, v[2:3], s[92:93]')
    a('s_waitcnt vmcnt(0)')
    a.label(lab)

def header(a, name):
    a.raw('.p2align 8')
    a.raw(f'.globl {name}')
    a.raw(f'.type {name},@function')
    a.label(name)
    a.reset_haz(); a.vm = []

def descriptor(name, vgpr, sgpr=96):
    acc = (vgpr + 3) // 4 * 4
    return f""".amdhsa_kernel {name}
  .amdhsa_next_free_vgpr {vgpr}
  .amdhsa_next_free_sgpr {sgpr}
  .amdhsa_accum_offset {acc}
  .amdhsa_group_segment_fixed_size 0
  .amdhsa_kernarg_size 80
  .amdhsa_user_sgpr_count 2
  .amdhsa_user_sgpr_kernarg_segment_ptr 1
  .amdhsa_system_sgpr_workgroup_id_x 1
.end_amdhsa_kernel
"""

K1_STAGE = 40960
K1_NBUF = 3
def gen_k1(a):
    name = 'qkv_kernel'
    header(a, name)
    a('s_cmp_ge_u32 s2, 256')
    a('s_cbranch_scc1 K1_END')
    rt_start(a)
    stamp(a, 0)
    a('s_load_dwordx4 s[4:7], s[0:1], 0')
    a('s_load_dwordx2 s[20:21], s[0:1], 16')
    a('s_load_dwordx4 s[24:27], s[0:1], 32')
    a('s_load_dwordx2 s[28:29], s[0:1], 48')
    a('s_load_dwordx2 s[30:31], s[0:1], 72')
    a('s_and_b32 s51, s2, 7')
    a('s_lshr_b32 s52, s2, 3')
    a('s_and_b32 s53, s51, 1'); a('s_lshl_b32 s53, s53, 3'); a('s_lshr_b32 s54, s52, 2'); a('s_add_u32 s44, s53, s54')
    a('s_lshr_b32 s53, s51, 1'); a('s_lshl_b32 s53, s53, 2'); a('s_and_b32 s54, s52, 3'); a('s_add_u32 s45, s53, s54')
    a('s_lshr_b32 s46, s45, 3')
    a('s_and_b32 s47, s45, 7')
    a('v_lshrrev_b32 v1, 6, v0')
    a('v_and_b32 v2, 63, v0')
    a('v_readfirstlane_b32 s59, v1')
    a('s_and_b32 s48, s59, 3')
    a('s_and_b32 s49, s48, 1')
    a('s_lshr_b32 s50, s48, 1')
    a('s_cmp_lt_u32 s59, 4')
    a('s_cbranch_scc1 K1_COMPUTE')
    a('v_lshrrev_b32 v11, 3, v2')
    a('s_lshl_b32 s51, s44, 7')
    a('s_lshl_b32 s52, s48, 3')
    a('s_add_u32 s51, s51, s52')
    a('v_add_u32 v11, s51, v11')
    a('s_movk_i32 s52, 896')
    a('v_mul_lo_u32 v12, v11, s52')
    a('v_lshrrev_b32 v11, 4, v2')
    a('s_lshl_b32 s52, s48, 2')
    a('v_add_u32 v11, s52, v11')
    a('v_and_b32 v11, 7, v11')
    a('v_and_b32 v13, 7, v2')
    a('v_xor_b32 v11, v11, v13')
    a('v_lshl_add_u32 v12, v11, 4, v12')
    a('s_mul_i32 s52, s47, 112')
    for j in range(6):
        r = 14 + j
        a(f's_lshl_b32 s51, s48, 6')
        a(f's_add_u32 s51, s51, {256*j}')
        a(f'v_add_u32 v44, s51, v2')
        a('s_movk_i32 s53, 3121')
        a('v_mul_lo_u32 v45, v44, s53')
        a('v_lshrrev_b32 v45, 16, v45')
        a('v_mul_u32_u24 v46, 21, v45')
        a('v_sub_u32 v46, v44, v46')
        a('v_mul_u32_u24 v47, 37, v46')
        a('v_lshrrev_b32 v47, 8, v47')
        a('v_and_b32 v48, 0xfffffff0, v45')
        a('v_and_b32 v49, 3, v45')
        a('v_lshl_or_b32 v48, v49, 2, v48')
        a('v_bfe_u32 v49, v45, 2, 2')
        a('v_or_b32 v48, v48, v49')
        a('s_movk_i32 s53, 2688')
        a('v_mul_lo_u32 v48, v48, s53')
        a('s_movk_i32 s53, 784')
        a('v_mul_lo_u32 v47, v47, s53')
        a(f'v_lshl_add_u32 v{r}, v46, 4, v48')
        a(f'v_add3_u32 v{r}, v{r}, v47, s52')
    a('s_lshl_b32 s55, s48, 10')
    a('s_waitcnt lgkmcnt(0)')
    srd(a, 8, 4, 5, 2048*448*2)
    a('s_cmp_eq_u32 s46, 0')
    a('s_cselect_b32 s12, s6, s24')
    a('s_cselect_b32 s13, s7, s25')
    a('s_and_b32 s13, s13, 0xffff')
    a(f's_mov_b32 s14, {448*1344*2}')
    a('s_mov_b32 s15, 0x20000')
    def dma_stage(st):
        buf = (st % K1_NBUF) * K1_STAGE
        for j in range(4):
            a(f's_add_u32 s51, s55, {buf + j*4096}')
            a('s_mov_b32 m0, s51')
            a(f's_mov_b32 s52, {st*128 + j*32*896}')
            a.vmem('buffer_load_dwordx4 v12, s[8:11], s52 offen lds', f'st{st}')
        for j in range(6):
            a(f's_add_u32 s51, s55, {buf + 16384 + j*4096}')
            a('s_mov_b32 m0, s51')
            a(f's_mov_b32 s52, {st*64*2688}')
            a.vmem(f'buffer_load_dwordx4 v{14+j}, s[12:15], s52 offen lds', f'st{st}')
    NST = 7
    for st in range(K1_NBUF): dma_stage(st)
    for st in range(NST):
        a.vm_wait_tag(f'st{st}')
        a('s_barrier')
        if st >= 1 and st + 2 < NST: dma_stage(st + 2)
    a('s_endpgm')
    a.label('K1_COMPUTE')
    a.reset_haz(); a.vm = []
    a('s_waitcnt lgkmcnt(0)')
    stamp(a, 12)
    srd(a, 8, 4, 5, 2048*448*2)
    srd(a, 16, 30, 31, WS_BYTES)
    srd(a, 40, 28, 29, 448*2)
    a('v_and_b32 v3, 31, v2')
    a('v_lshrrev_b32 v4, 5, v2')
    a('s_lshl_b32 s51, s2, 3')
    a('s_lshl_b32 s52, s48, 1')
    a('s_add_u32 s51, s51, s52')
    a('v_add_u32 v5, s51, v4')
    a('s_movk_i32 s52, 896')
    a('v_mul_lo_u32 v6, v5, s52')
    a('v_lshlrev_b32 v7, 5, v3')
    a('v_add_u32 v6, v6, v7')
    a('v_mov_b32 v8, 0x40000000')
    a('v_cmp_gt_u32 vcc, 28, v3')
    a('v_cndmask_b32 v6, v8, v6, vcc')
    a('v_cndmask_b32 v7, v8, v7, vcc')
    a.vmem('buffer_load_dwordx4 v[20:23], v6, s[8:11], 0 offen', 'gate')
    a.vmem('buffer_load_dwordx4 v[24:27], v6, s[8:11], 0 offen offset:16', 'gate')
    a.vmem('buffer_load_dwordx4 v[28:31], v7, s[40:43], 0 offen', 'gate')
    a.vmem('buffer_load_dwordx4 v[32:35], v7, s[40:43], 0 offen offset:16', 'gate')
    a('s_lshl_b32 s51, s2, 2')
    a('s_add_u32 s51, s51, s48')
    a('s_and_b32 s52, s51, 63')
    a('s_lshr_b32 s53, s51, 6')
    a('s_lshr_b32 s54, s52, 5')
    a('s_cmp_eq_u32 s54, 0')
    a('s_cselect_b32 s32, s20, s26')
    a('s_cselect_b32 s33, s21, s27')
    a('s_and_b32 s33, s33, 0xffff')
    a(f's_mov_b32 s34, {448*448*2}')
    a('s_mov_b32 s35, 0x20000')
    a('s_lshr_b32 s55, s52, 1'); a('s_and_b32 s55, s55, 15')
    a('s_and_b32 s56, s52, 1')
    a('s_mul_i32 s55, s55, 28')
    a('s_lshl_b32 s57, s56, 4')
    a('s_add_u32 s55, s55, s57')
    a('v_lshlrev_b32 v9, 2, v4')
    a('v_add_u32 v9, s55, v9')
    a('s_movk_i32 s52, 896')
    a('v_mul_lo_u32 v9, v9, s52')
    a('s_lshl_b32 s53, s53, 6')
    a('v_lshlrev_b32 v10, 1, v3')
    a('v_add3_u32 v9, v9, v10, s53')
    a(f'v_add_u32 v10, {8*896}, v9')
    a('v_and_b32 v11, s56, v4')
    a('v_cmp_eq_u32 vcc, 0, v11')
    a('v_cndmask_b32 v10, v8, v10, vcc')
    a('s_cmp_ge_u32 s2, 224')
    a('s_cselect_b32 s58, 0x40000000, 0')
    for j in range(4):
        a.vmem(f'buffer_load_ushort v{36+j}, v9, s[32:35], s58 offen offset:{896*j}', 'wo')
    for j in range(4):
        a.vmem(f'buffer_load_ushort v{40+j}, v10, s[32:35], s58 offen offset:{896*j}', 'wo')
    stamp(a, 13)
    ACC = 64
    XF = 160
    WF = 176
    for i in range(96):
        a(f'v_mov_b32 v{ACC+i}, 0')
    a.vm_wait_tag('gate')
    a('v_mov_b32 v44, 0')
    for i in range(8):
        xs, gs = 20 + i, 28 + i
        a(f'v_lshlrev_b32 v45, 16, v{xs}')
        a(f'v_and_b32 v46, 0xffff0000, v{xs}')
        a(f'v_lshlrev_b32 v47, 16, v{gs}')
        a(f'v_and_b32 v48, 0xffff0000, v{gs}')
        a('v_mul_f32 v45, v45, v47')
        a('v_mul_f32 v46, v46, v48')
        a('v_cvt_pk_bf16_f32 v45, v45, v46')
        a('v_lshlrev_b32 v46, 16, v45')
        a('v_and_b32 v45, 0xffff0000, v45')
        a('v_add_f32 v44, v44, v46')
        a('v_add_f32 v44, v44, v45')
    for off in (0x041F, 0x081F, 0x101F, 0x201F, 0x401F):
        a(f'ds_swizzle_b32 v45, v44 offset:{off}')
        a('s_waitcnt lgkmcnt(0)')
        a('v_add_f32 v44, v44, v45')
    a('v_cvt_pk_bf16_f32 v44, v44, v44')
    a('v_lshlrev_b32 v44, 16, v44')
    a(f'v_mul_f32 v44, {NLOG2E}, v44')
    a('v_exp_f32 v44, v44')
    a('v_add_f32 v44, 1.0, v44')
    a('v_rcp_f32 v44, v44')
    a('v_cvt_pk_bf16_f32 v44, v44, v44')
    a('v_lshlrev_b32 v44, 16, v44')
    a('v_lshlrev_b32 v45, 2, v5')
    a(f'v_add_u32 v45, {G_OFF}, v45')
    a('v_cmp_eq_u32 vcc, 0, v3')
    a('v_cndmask_b32 v45, v8, v45, vcc')
    a.vmem('buffer_store_dword v44, v45, s[16:19], 0 offen', 'gst')
    a.vm_wait_tag('wo')
    for j in range(4):
        a(f'v_lshl_or_b32 v{44+j}, v{37+2*j}, 16, v{36+2*j}')
    a('s_lshl_b32 s51, s2, 12')
    a(f's_add_u32 s51, s51, {WOF_OFF}')
    a('s_add_u32 s51, s51, s58')
    a('v_lshlrev_b32 v48, 4, v0')
    a.vmem('buffer_store_dwordx4 v[44:47], v48, s[16:19], s51 offen', 'gst')
    a('v_and_b32 v3, 31, v2')
    a('v_lshrrev_b32 v4, 5, v2')
    a('v_bfe_u32 v5, v3, 1, 3')
    a('s_lshl_b32 s51, s49, 13')
    a('v_lshlrev_b32 v6, 7, v3')
    a('v_add_u32 v6, s51, v6')
    for s in range(4):
        a(f'v_add_u32 v7, {2*s}, v4')
        a('v_xor_b32 v7, v7, v5')
        a(f'v_lshl_add_u32 v{20+s}, v7, 4, v6')
    a('v_bfe_u32 v5, v2, 2, 2')
    a('v_lshlrev_b32 v5, 2, v5')
    a('v_lshl_add_u32 v5, v4, 1, v5')
    a('v_mul_u32_u24 v5, 336, v5')
    a('v_bfe_u32 v6, v2, 4, 1')
    a('v_lshl_add_u32 v5, v6, 5, v5')
    a('v_and_b32 v6, 3, v2')
    a('v_lshl_add_u32 v5, v6, 3, v5')
    a('s_mul_i32 s51, s50, 56')
    a(f's_add_u32 s51, s51, 16384')
    a('v_add_u32 v24, s51, v5')
    def acc(which, tt): return ACC + (which*2 + tt)*16
    def rd_frags(st, s, pb):
        for tt in range(2):
            a(f'ds_read_b128 {vr(XF+pb*8+tt*4,4)}, v{25+s} offset:{tt*4096}')
        for which in range(3):
            for u in range(2):
                a(f'ds_read_b64_tr_b16 {vr(WF+pb*12+which*4+u*2,2)}, v29 offset:{s*5376+u*336+which*112}')
    def set_stage_addr(st):
        buf = (st % K1_NBUF) * K1_STAGE
        for s in range(4):
            a(f'v_add_u32 v{25+s}, {buf}, v{20+s}')
        a(f'v_add_u32 v29, {buf}, v24')
    def mfmas(pb):
        for which in range(3):
            for tt in range(2):
                xf = vr(XF+pb*8+tt*4, 4); wf = vr(WF+pb*12+which*4, 4); d = vr(acc(which, tt), 16)
                if which < 2: a(f'v_mfma_f32_32x32x16_bf16 {d}, {wf}, {xf}, {d}')
                else:         a(f'v_mfma_f32_32x32x16_bf16 {d}, {xf}, {wf}, {d}')
    set_stage_addr(0)
    stamp(a, 2)
    a('s_barrier')
    stamp(a, 3)
    rd_frags(0, 0, 0)
    step = 0
    for st in range(NST):
        for s in range(4):
            pb = step & 1
            last = (st == NST-1 and s == 3)
            if s < 3:
                rd_frags(st, s+1, pb ^ 1)
                a('s_waitcnt lgkmcnt(8)')
            elif not last:
                a('s_waitcnt lgkmcnt(0)')
                a('s_barrier')
                stamp(a, 4+st)
                set_stage_addr(st+1)
                rd_frags(st+1, 0, pb ^ 1)
            else:
                a('s_waitcnt lgkmcnt(0)')
            mfmas(pb)
            step += 1
    stamp(a, 10)
    a('s_lshl_b32 s51, s47, 1'); a('s_add_u32 s51, s51, s50')
    a('s_lshl_b32 s52, s46, 4'); a('s_add_u32 s51, s51, s52')
    a('s_lshl_b32 s51, s51, 17')
    a('s_lshl_b32 s52, s44, 2'); a('s_lshl_b32 s53, s49, 1'); a('s_add_u32 s52, s52, s53')
    a('s_lshl_b32 s52, s52, 11')
    a('s_add_u32 s51, s51, s52')
    a('v_lshlrev_b32 v3, 4, v2')
    a(f's_mov_b32 s56, {CSCALE}')
    a('v_cmp_gt_u32 s[60:61], 32, v2')
    a('v_and_b32 v4, 31, v2')
    a('v_cmp_eq_u32 s[62:63], 28, v4')
    a('v_mov_b32 v5, 0')
    a('v_mov_b32 v6, 0x3f803f80')
    for which in range(3):
        a(f's_add_u32 s52, s51, {which*4*MB}')
        for tt in range(2):
            b = acc(which, tt)
            if which == 0:
                for i in range(16): a(f'v_mul_f32 v{b+i}, s56, v{b+i}')
            for i in range(8):
                a(f'v_cvt_pk_bf16_f32 v{b+i}, v{b+2*i}, v{b+2*i+1}')
            if which < 2:
                a(f'v_cndmask_b32 v{b+6}, v5, v{b+6}, s[60:61]')
                a(f'v_cndmask_b32 v{b+7}, v5, v{b+7}, s[60:61]')
            else:
                for i in range(8): a(f'v_cndmask_b32 v{b+i}, v{b+i}, v6, s[62:63]')
            a.vmem(f'buffer_store_dwordx4 {vr(b,4)}, v3, s[16:19], s52 offen offset:{tt*2048}', 'out')
            a.vmem(f'buffer_store_dwordx4 {vr(b+4,4)}, v3, s[16:19], s52 offen offset:{tt*2048+1024}', 'out')
    if STAMP: a('s_waitcnt vmcnt(0)')
    stamp(a, 11)
    stamp_flush(a, 15, 's59')
    rt_end(a, 0, 's59')
    a.label('K1_END')
    a('s_endpgm')
    return descriptor(name, 200)

K2_BUF = 32768
K2_COMB = 4*K2_BUF
K2_FLAG = K2_COMB + 4*5*1024
K2_LDS = K2_FLAG + 64
VQ, VNEG, VS, VP, VO, VK, VV = 16, 24, 40, 72, 80, 96, 112
AQ, AK, AV = 128, 136, 152
def gen_k2(a):
    name = 'attn_kernel'
    header(a, name)
    a('s_cmp_ge_u32 s2, 256')
    a('s_cbranch_scc1 K2_END')
    rt_start(a)
    stamp(a, 0)
    a('s_load_dwordx2 s[4:5], s[0:1], 72')
    a('s_and_b32 s20, s2, 15')
    a('s_lshr_b32 s21, s2, 4')
    a('v_lshrrev_b32 v1, 6, v0')
    a('v_and_b32 v2, 63, v0')
    a('v_readfirstlane_b32 s22, v1')
    a('s_and_b32 s23, s22, 3')
    a('s_lshr_b32 s24, s22, 2')
    a('s_lshl_b32 s25, s21, 2'); a('s_add_u32 s25, s25, s23')
    a('v_lshlrev_b32 v3, 4, v2')
    a('s_lshl_b32 s26, s22, 11')
    a('v_add_u32 v4, s26, v3')
    a('s_lshl_b32 s27, s24, 13')
    a('v_add_u32 v5, s27, v3')
    a('v_add_u32 v6, 0x10000, v5')
    a('s_lshl_b32 s28, s20, 17')
    a('s_add_u32 s29, s28, 0x200000')
    a('s_lshl_b32 s30, s25, 11')
    a('v_and_b32 v7, 31, v2')
    a('v_lshlrev_b32 v8, 2, v7')
    a('v_mov_b32 v10, 0')
    a(f'v_mov_b32 v11, {K2_FLAG}')
    a('ds_write_b32 v11, v10')
    a('s_waitcnt lgkmcnt(0)')
    srd(a, 8, 4, 5, WS_BYTES)
    def dma_stage(st):
        buf = (st % 4) * K2_BUF
        for reg, loff in ((KF_OFF, 0), (VF_OFF, 16384)):
            a(f's_add_u32 s36, s26, {buf + loff}')
            a('s_mov_b32 m0, s36')
            a(f's_add_u32 s37, s29, {reg + st*16384}')
            a.vmem('buffer_load_dwordx4 v4, s[8:11], s37 offen lds', f'st{st}')
            a.vmem('buffer_load_dwordx4 v4, s[8:11], s37 offen offset:1024 lds', f'st{st}')
    a('s_add_u32 s31, s29, s30')
    a.vmem(f'buffer_load_dwordx4 {vr(VQ,4)}, v3, s[8:11], s31 offen', 'st0')
    a.vmem(f'buffer_load_dwordx4 {vr(VQ+4,4)}, v3, s[8:11], s31 offen offset:1024', 'st0')
    dma_stage(0)
    a('s_lshl_b32 s31, s25, 7')
    a(f's_add_u32 s31, s31, {G_OFF}')
    a.vmem('buffer_load_dword v9, v8, s[8:11], s31 offen', 'st1')
    dma_stage(1)
    a('s_add_u32 s31, s28, s30')
    a('s_sub_u32 s32, s31, 2048')
    a('s_cmp_eq_u32 s25, 0')
    a('s_cselect_b32 s32, s31, s32')
    a('s_cselect_b32 s33, 1000, 32')
    a('s_cmp_eq_u32 s24, 0')
    a('s_cselect_b32 s31, 0x40000000, s31')
    a('s_cselect_b32 s32, 0x40000000, s32')
    a(f's_add_u32 s34, s32, {KF_OFF}')
    a(f's_add_u32 s35, s31, {KF_OFF}')
    a(f's_add_u32 s44, s32, {VF_OFF}')
    a(f's_add_u32 s45, s31, {VF_OFF}')
    deferred = [
        lambda: dma_stage(2),
        lambda: dma_stage(3),
        lambda: (a.vmem(f'buffer_load_dwordx4 {vr(AQ,4)}, v3, s[8:11], s31 offen', 'a'),
                 a.vmem(f'buffer_load_dwordx4 {vr(AQ+4,4)}, v3, s[8:11], s31 offen offset:1024', 'a'),
                 a.vmem(f'buffer_load_dwordx4 {vr(AK,4)}, v3, s[8:11], s34 offen', 'a'),
                 a.vmem(f'buffer_load_dwordx4 {vr(AK+4,4)}, v3, s[8:11], s34 offen offset:1024', 'a')),
        lambda: (a.vmem(f'buffer_load_dwordx4 {vr(AK+8,4)}, v3, s[8:11], s35 offen', 'a'),
                 a.vmem(f'buffer_load_dwordx4 {vr(AK+12,4)}, v3, s[8:11], s35 offen offset:1024', 'a'),
                 a.vmem(f'buffer_load_dwordx4 {vr(AV,4)}, v3, s[8:11], s44 offen', 'a')),
        lambda: (a.vmem(f'buffer_load_dwordx4 {vr(AV+4,4)}, v3, s[8:11], s44 offen offset:1024', 'a'),
                 a.vmem(f'buffer_load_dwordx4 {vr(AV+8,4)}, v3, s[8:11], s45 offen', 'a'),
                 a.vmem(f'buffer_load_dwordx4 {vr(AV+12,4)}, v3, s[8:11], s45 offen offset:1024', 'a')),
    ]

    def finalize(gate_expr_reg, br):
        a(f'v_mov_b32 v13, v{VO+12}')
        a(f'v_mov_b32 v14, v{VO+12}')
        a('v_permlane32_swap_b32 v13, v14')
        a('v_rcp_f32 v14, v14')
        a(f'v_mul_f32 v14, v14, v{gate_expr_reg}')
        for r in range(16): a(f'v_mul_f32 v{VO+r}, v14, v{VO+r}')
        for i in range(8): a(f'v_cvt_pk_bf16_f32 v{VO+i}, v{VO+2*i}, v{VO+2*i+1}')
        a('v_cmp_gt_u32 vcc, 32, v2')
        a('v_mov_b32 v13, 0')
        a(f'v_cndmask_b32 v{VO+6}, v13, v{VO+6}, vcc')
        a(f'v_cndmask_b32 v{VO+7}, v13, v{VO+7}, vcc')
        a('s_lshl_b32 s38, s25, 16')
        a('s_lshl_b32 s39, s20, 11')
        a('s_add_u32 s38, s38, s39')
        a(f's_add_u32 s38, s38, {OF_OFF + br*32768}')
        a(f'buffer_store_dwordx4 {vr(VO,4)}, v3, s[8:11], s38 offen')
        a(f'buffer_store_dwordx4 {vr(VO+4,4)}, v3, s[8:11], s38 offen offset:1024')

    def lds_tile(idx, isv, t):
        st, i = idx >> 2, idx & 3
        b = st % 4
        base = 'v5' if b < 2 else 'v6'
        off = (b & 1) * K2_BUF + (16384 if isv else 0) + i*2048 + t*1024
        return base, off
    def rdK(idx):
        for t in range(2):
            base, off = lds_tile(idx, False, t)
            a(f'ds_read_b128 {vr(VK+(idx&1)*8+t*4,4)}, {base} offset:{off}')
    def rdV(idx):
        for t in range(2):
            base, off = lds_tile(idx, True, t)
            a(f'ds_read_b128 {vr(VV+(idx&1)*8+t*4,4)}, {base} offset:{off}')
    def stage_sync(st):
        a.vm_wait_tag(f'st{st}')
        a('s_barrier')
        if st >= 2 and st + 2 < 8: dma_stage(st + 2)
    NT = 32
    def smfma(idx, cneg, part):
        d = vr(VS+(idx&1)*16, 16); k = VK+(idx&1)*8
        c = vr(VNEG,16) if cneg else '0'
        if part == 0: a(f'v_mfma_f32_32x32x16_bf16 {d}, {vr(k,4)}, {vr(VQ,4)}, {c}')
        else:         a(f'v_mfma_f32_32x32x16_bf16 {d}, {vr(k+4,4)}, {vr(VQ+4,4)}, {d}')
    def pv(idx, first, part):
        v = VV+(idx&1)*8
        c = '0' if first else vr(VO,16)
        if part == 0: a(f'v_mfma_f32_32x32x16_bf16 {vr(VO,16)}, {vr(v,4)}, {vr(VP,4)}, {c}')
        else:         a(f'v_mfma_f32_32x32x16_bf16 {vr(VO,16)}, {vr(v+4,4)}, {vr(VP+4,4)}, {vr(VO,16)}')
    def tilemax(sb, dst):
        a(f'v_max3_f32 v{dst}, v{sb}, v{sb+1}, v{sb+2}')
        for r in range(3, 15, 2):
            a(f'v_max3_f32 v{dst}, v{dst}, v{sb+r}, v{sb+r+1}')
        a(f'v_max_f32 v{dst}, v{dst}, v{sb+15}')
        a(f'v_mov_b32 v13, v{dst}')
        a(f'v_permlane32_swap_b32 v{dst}, v13')
        a(f'v_max_f32 v{dst}, v{dst}, v13')
    stamp(a, 1)
    stage_sync(0)
    stamp(a, 2)
    rdK(0)
    rdK(1)
    a('s_waitcnt lgkmcnt(2)')
    d = vr(VS+16, 16)
    a(f'v_mfma_f32_32x32x16_bf16 {d}, {vr(VK,4)}, {vr(VQ,4)}, 0')
    a(f'v_mfma_f32_32x32x16_bf16 {d}, {vr(VK+4,4)}, {vr(VQ+4,4)}, {d}')
    rdV(0)
    tilemax(VS+16, 12)
    for r in range(16): a(f'v_sub_f32 v{VNEG+r}, 0, v12')
    smfma(0, True, 0); smfma(0, True, 1)
    def quarter(sb, q):
        for i in (2*q, 2*q+1):
            a(f'v_exp_f32 v{sb+2*i}, v{sb+2*i}')
            a(f'v_exp_f32 v{sb+2*i+1}, v{sb+2*i+1}')
        for i in (2*q, 2*q+1):
            a(f'v_cvt_pk_bf16_f32 v{VP+i}, v{sb+2*i}, v{sb+2*i+1}')
    for idx in range(NT):
        sb = VS + (idx&1)*16
        n_out = 2
        if idx + 1 < NT:
            a('s_waitcnt lgkmcnt(2)')
            smfma(idx+1, True, 0)
        if idx + 2 < NT:
            if (idx + 2) % 4 == 0:
                stage_sync((idx+2) >> 2)
                stamp(a, 2 + ((idx+2) >> 2))
            rdK(idx+2); n_out += 2
        quarter(sb, 0)
        if idx > 0: pv(idx-1, False, 1)
        if idx + 1 < NT:
            rdV(idx+1); n_out += 2
        quarter(sb, 1)
        if idx + 1 < NT: smfma(idx+1, True, 1)
        if idx < len(deferred): deferred[idx]()
        quarter(sb, 2)
        a(f's_waitcnt lgkmcnt({n_out-2})')
        pv(idx, idx == 0, 0)
        quarter(sb, 3)
    pv(NT-1, False, 1)
    stamp(a, 10)
    a('v_sub_f32 v15, 1.0, v9')
    a(f'v_add_f32 v13, |v{VO}|, |v{VO+1}|')
    for r in range(2, 16): a(f'v_add_f32 v13, v13, |v{VO+r}|')
    a('v_mov_b32 v14, 0x7b800000')
    a('v_cmp_nlt_f32 vcc, v13, v14')
    a('s_cbranch_vccz K2_OKFAST')
    a('v_mov_b32 v10, 1')
    a(f'v_mov_b32 v11, {K2_FLAG}')
    a('ds_write_b32 v11, v10')
    a.label('K2_OKFAST')
    def combine(tag):
        a('s_mul_i32 s38, s23, %d' % (5*1024))
        a(f's_add_u32 s38, s38, {K2_COMB}')
        a('v_add_u32 v10, s38, v3')
        a('s_cmp_eq_u32 s24, 0')
        a(f's_cbranch_scc1 K2_C1_{tag}')
        for r in range(4): a(f'ds_write_b128 v10, {vr(VO+4*r,4)} offset:{1024*r}')
        a(f'ds_write_b32 v10, v12 offset:{4096}')
        a.label(f'K2_C1_{tag}')
        a('s_waitcnt lgkmcnt(0)')
        a('s_barrier')
    combine('F')
    a(f'v_mov_b32 v11, {K2_FLAG}')
    a('ds_read_b32 v11, v11')
    a('s_waitcnt lgkmcnt(0)')
    a('v_readfirstlane_b32 s38, v11')
    a('s_cmp_eq_u32 s38, 0')
    a('s_cbranch_scc1 K2_MERGE')
    a('s_barrier')
    a.vm_wait_all()
    for st in range(4): dma_stage(st)
    a('v_mov_b32 v12, 0xff7fffff')
    for r in range(16): a(f'v_mov_b32 v{VO+r}, 0')
    for idx in range(NT):
        if idx % 4 == 0: stage_sync(idx >> 2)
        rdK(idx); rdV(idx)
        a('s_waitcnt lgkmcnt(0)')
        smfma(idx, False, 0); smfma(idx, False, 1)
        sb = VS + (idx&1)*16
        tilemax(sb, 11)
        a('v_max_f32 v11, v11, v12')
        a('v_sub_f32 v10, v12, v11')
        a('v_exp_f32 v10, v10')
        a('v_mov_b32 v12, v11')
        for r in range(16):
            a(f'v_sub_f32 v{sb+r}, v{sb+r}, v11')
            a(f'v_exp_f32 v{sb+r}, v{sb+r}')
        for i in range(8): a(f'v_cvt_pk_bf16_f32 v{VP+i}, v{sb+2*i}, v{sb+2*i+1}')
        for r in range(16): a(f'v_mul_f32 v{VO+r}, v10, v{VO+r}')
        pv(idx, False, 0); pv(idx, False, 1)
    a('s_barrier')
    combine('S')
    a.label('K2_MERGE')
    a.reset_haz(); a.nop(16)
    a('s_waitcnt vmcnt(0)')
    a('s_cmp_eq_u32 s24, 0')
    a('s_cbranch_scc0 K2_ABR')
    for r in range(4): a(f'ds_read_b128 {vr(VS+4*r,4)}, v10 offset:{1024*r}')
    a(f'ds_read_b32 v11, v10 offset:{4096}')
    a('s_waitcnt lgkmcnt(0)')
    a('v_max_f32 v13, v11, v12')
    a('v_sub_f32 v11, v11, v13')
    a('v_sub_f32 v12, v12, v13')
    a('v_exp_f32 v11, v11')
    a('v_exp_f32 v12, v12')
    for r in range(16):
        a(f'v_mul_f32 v{VO+r}, v12, v{VO+r}')
        a(f'v_fmac_f32 v{VO+r}, v11, v{VS+r}')
    finalize(15, 1)
    a('s_waitcnt vmcnt(0)')
    stamp(a, 11)
    stamp_flush(a, 12, 's22')
    rt_end(a, 1, 's22')
    a('s_endpgm')
    a.label('K2_ABR')
    a.reset_haz(); a.nop(4)
    S0, S1 = VS, VS+16
    a(f'v_mfma_f32_32x32x16_bf16 {vr(S0,16)}, {vr(AK,4)}, {vr(AQ,4)}, 0')
    a(f'v_mfma_f32_32x32x16_bf16 {vr(S0,16)}, {vr(AK+4,4)}, {vr(AQ+4,4)}, {vr(S0,16)}')
    a(f'v_mfma_f32_32x32x16_bf16 {vr(S1,16)}, {vr(AK+8,4)}, {vr(AQ,4)}, 0')
    a(f'v_mfma_f32_32x32x16_bf16 {vr(S1,16)}, {vr(AK+12,4)}, {vr(AQ+4,4)}, {vr(S1,16)}')
    a('v_lshrrev_b32 v10, 5, v2')
    a('v_lshlrev_b32 v10, 2, v10')
    a('v_sub_u32 v10, v7, v10')
    a('v_add_u32 v11, s33, v10')
    a('v_mov_b32 v12, 0xff800000')
    for ti, (sb, db) in enumerate(((S0, 11), (S1, 10))):
        for r in range(16):
            kofs = (r & 3) + 8*(r >> 2)
            a(f'v_subrev_u32 v13, {kofs}, v{db}')
            a('v_and_b32 v14, 1, v13')
            a('v_lshl_or_b32 v13, v14, 8, v13')
            a(f'v_cmp_gt_u32 s[{48+2*(r&3)}:{49+2*(r&3)}], 15, v13')
            if r >= 1:
                rr = r - 1
                a(f'v_cndmask_b32 v{sb+rr}, v12, v{sb+rr}, s[{48+2*(rr&3)}:{49+2*(rr&3)}]')
        a(f'v_cndmask_b32 v{sb+15}, v12, v{sb+15}, s[54:55]')
    a(f'v_max3_f32 v13, v{S0}, v{S0+1}, v{S0+2}')
    for r in range(3, 31, 2):
        a(f'v_max3_f32 v13, v13, v{S0+r}, v{S0+r+1}')
    a(f'v_max_f32 v13, v13, v{S0+31}')
    a('v_mov_b32 v14, v13')
    a('v_permlane32_swap_b32 v13, v14')
    a('v_max_f32 v13, v13, v14')
    for r in range(32):
        a(f'v_sub_f32 v{S0+r}, v{S0+r}, v13')
        a(f'v_exp_f32 v{S0+r}, v{S0+r}')
    for i in range(16):
        a(f'v_cvt_pk_bf16_f32 v{S0+i}, v{S0+2*i}, v{S0+2*i+1}')
    a(f'v_mfma_f32_32x32x16_bf16 {vr(VO,16)}, {vr(AV,4)}, {vr(S0,4)}, 0')
    a(f'v_mfma_f32_32x32x16_bf16 {vr(VO,16)}, {vr(AV+4,4)}, {vr(S0+4,4)}, {vr(VO,16)}')
    a(f'v_mfma_f32_32x32x16_bf16 {vr(VO,16)}, {vr(AV+8,4)}, {vr(S0+8,4)}, {vr(VO,16)}')
    a(f'v_mfma_f32_32x32x16_bf16 {vr(VO,16)}, {vr(AV+12,4)}, {vr(S0+12,4)}, {vr(VO,16)}')
    finalize(9, 0)
    a.label('K2_END')
    a('s_endpgm')
    return descriptor(name, 168)

def gen_k3(a):
    name = 'out_kernel'
    header(a, name)
    a('s_cmp_ge_u32 s2, 224')
    a('s_cbranch_scc1 K3_END')
    rt_start(a)
    a('s_load_dwordx2 s[4:5], s[0:1], 72')
    a('s_load_dwordx2 s[6:7], s[0:1], 56')
    a('s_and_b32 s20, s2, 7'); a('s_lshr_b32 s21, s2, 3')
    a('s_mul_i32 s22, s21, 37'); a('s_lshr_b32 s22, s22, 8')
    a('s_mul_i32 s23, s22, 7'); a('s_sub_u32 s23, s21, s23')
    a('s_lshl_b32 s20, s20, 2'); a('s_add_u32 s22, s22, s20')
    a('v_lshrrev_b32 v1, 6, v0')
    a('v_and_b32 v2, 63, v0')
    a('v_readfirstlane_b32 s24, v1')
    a('s_and_b32 s25, s24, 1')
    a('s_lshr_b32 s26, s24, 1')
    a('v_lshlrev_b32 v3, 4, v2')
    a('s_waitcnt lgkmcnt(0)')
    srd(a, 8, 4, 5, WS_BYTES)
    srd(a, 12, 6, 7, 2048*448*2)
    a('s_lshl_b32 s27, s22, 1'); a('s_add_u32 s27, s27, s24'); a('s_lshl_b32 s27, s27, 16'); a(f's_add_u32 s27, s27, {OF_OFF}')
    a('s_lshl_b32 s28, s23, 1'); a('s_add_u32 s28, s28, s24'); a('s_sub_u32 s28, s28, 2'); a('s_lshl_b32 s28, s28, 16'); a(f's_add_u32 s28, s28, {WOF_OFF}')
    a('s_cmp_lt_u32 s24, 2')
    a('s_cselect_b32 s27, s27, s28')
    a('s_lshl_b32 s29, s24, 13')
    def dma_stage(st):
        buf = (st % 4) * 32768
        for half in range(2):
            a(f's_add_u32 s30, s29, {buf + half*4096}')
            a('s_mov_b32 m0, s30')
            a(f's_add_u32 s31, s27, {st*8192 + half*4096}')
            for q in range(4):
                a.vmem(f'buffer_load_dwordx4 v3, s[8:11], s31 offen offset:{q*1024} lds', f'st{st}')
    for st in range(4): dma_stage(st)
    a('s_lshl_b32 s30, s25, 13')
    a('v_add_u32 v4, s30, v3')
    a('s_lshl_b32 s30, s26, 13')
    a('s_add_u32 s30, s30, 16384')
    a('v_add_u32 v5, s30, v3')
    a('v_add_u32 v6, 0x10000, v4')
    a('v_add_u32 v7, 0x10000, v5')
    ACC, FA, FB = 16, 32, 40
    def rd(ks):
        st, k = ks >> 3, ks & 7
        b = st % 4
        off = (b & 1)*32768 + k*1024
        a(f'ds_read_b128 {vr(FA+(ks&1)*4,4)}, {"v5" if b<2 else "v7"} offset:{off}')
        a(f'ds_read_b128 {vr(FB+(ks&1)*4,4)}, {"v4" if b<2 else "v6"} offset:{off}')
    def stage_sync(st):
        a.vm_wait_tag(f'st{st}')
        a('s_barrier')
    a.vm_wait_tag('st0'); a('s_barrier')
    rd(0)
    for ks in range(64):
        if ks + 1 < 64:
            if (ks + 1) % 8 == 0:
                st = (ks+1) >> 3
                a('s_waitcnt lgkmcnt(0)')
                a.vm_wait_tag(f'st{st}')
                a('s_barrier')
                if st + 3 < 8: dma_stage(st + 3)
                rd(ks+1)
            else:
                rd(ks+1)
                a('s_waitcnt lgkmcnt(2)')
        else:
            a('s_waitcnt lgkmcnt(0)')
        c = '0' if ks == 0 else vr(ACC,16)
        a(f'v_mfma_f32_32x32x16_bf16 {vr(ACC,16)}, {vr(FA+(ks&1)*4,4)}, {vr(FB+(ks&1)*4,4)}, {c}')
    a('v_and_b32 v8, 31, v2')
    a('s_lshl_b32 s30, s22, 6'); a('s_lshl_b32 s31, s25, 5'); a('s_add_u32 s30, s30, s31')
    a('v_add_u32 v8, s30, v8')
    a('s_movk_i32 s31, 896')
    a('v_mul_lo_u32 v8, v8, s31')
    a('v_lshrrev_b32 v9, 5, v2')
    a('v_lshl_add_u32 v8, v9, 3, v8')
    a('s_lshl_b32 s30, s23, 7'); a('s_lshl_b32 s31, s26, 6'); a('s_add_u32 s30, s30, s31')
    for i in range(8): a(f'v_cvt_pk_bf16_f32 v{ACC+i}, v{ACC+2*i}, v{ACC+2*i+1}')
    for q in range(4):
        a(f'buffer_store_dwordx2 {vr(ACC+2*q,2)}, v8, s[12:15], s30 offen offset:{16*q}')
    a('s_waitcnt vmcnt(0)')
    rt_end(a, 2, 's24')
    a.label('K3_END')
    a('s_endpgm')
    return descriptor(name, 48)

def main():
    a = Asm()
    hdr = open('cdna_kernels/%s.s.ref' % NAME).read().split('; Override launch')[0]
    out = hdr
    out += f'; @launch kernel=qkv_kernel grid=(256,1,1) block=(512,1,1) lds={K1_STAGE*K1_NBUF}\n'
    out += f'; @launch kernel=attn_kernel grid=(256,1,1) block=(512,1,1) lds={K2_LDS}\n'
    out += f'; @launch kernel=out_kernel grid=(224,1,1) block=(256,1,1) lds={4*32768}\n'
    out += '.amdgcn_target "amdgcn-amd-amdhsa--gfx950"\n.text\n'
    d1 = gen_k1(a); d2 = gen_k2(a); d3 = gen_k3(a)
    out += a.text()
    out += '.section .rodata,"a"\n'
    for d in (d1, d2, d3):
        out += '.p2align 6\n' + d
    open('cdna_kernels/%s.s' % NAME, 'w').write(out)
main()
```

```python
import sys, math
sys.path.insert(0, 'gen')
from asmlib import Asm

NAME = 'gated_mix__sliding_local_dilated__mha_block__prompt'
MB = 1 << 20
QF_OFF, KF_OFF, VF_OFF, OF_OFF, WOF_OFF, G_OFF = 0, 4*MB, 8*MB, 12*MB, 16*MB, 17*MB
WS_BYTES = 18*MB
import struct
def f32bits(x): return struct.unpack('<I', struct.pack('<f', x))[0]
CSCALE = f32bits((28 ** -0.5) * math.log2(math.e))
NLOG2E = f32bits(-math.log2(math.e))

def vr(b, n): return f'v[{b}:{b+n-1}]'

def srd(a, s, lo, hi, size):
    a(f's_mov_b32 s{s}, s{lo}')
    a(f's_and_b32 s{s+1}, s{hi}, 0xffff')
    a(f's_mov_b32 s{s+2}, {size}')
    a(f's_mov_b32 s{s+3}, 0x20000')

import os
STAMP = int(os.environ.get('STAMP', '0'))
def stamp(a, i):
    if not STAMP: return
    a('s_memtime s[90:91]')
    a('s_waitcnt lgkmcnt(0)')
    a(f's_mov_b32 s{70+i}, s90')
def stamp_flush(a, n, wavereg):
    if not STAMP: return
    a('s_load_dwordx2 s[92:93], s[0:1], 64')
    a('s_waitcnt lgkmcnt(0)')
    a(f's_cmp_lg_u32 s2, {STAMP-1}')
    a('s_cbranch_scc1 NOSTAMP_%d' % len(a.lines))
    lab = 'NOSTAMP_%d' % (len(a.lines)-1)
    a(f's_cmp_lg_u32 {wavereg}, 0')
    a('s_cbranch_scc1 ' + lab)
    a('v_mov_b32 v1, 0')
    for i in range(n):
        a(f's_sub_u32 s94, s{70+i}, s70')
        a('v_mov_b32 v2, s94')
        a(f'global_store_dword v1, v2, s[92:93] offset:{4*i}')
    a('s_waitcnt vmcnt(0)')
    a.label(lab)

def rt_start(a):
    if not STAMP: return
    a('s_memrealtime s[86:87]')
    a('s_waitcnt lgkmcnt(0)')
def rt_end(a, kidx, wavereg):
    if not STAMP: return
    a('s_memrealtime s[88:89]')
    a('s_load_dwordx2 s[92:93], s[0:1], 72')
    a('s_load_dwordx2 s[84:85], s[0:1], 64')
    a('s_waitcnt lgkmcnt(0)')
    lab = 'NORT_%d' % len(a.lines)
    a(f's_cmp_lg_u32 {wavereg}, 0')
    a('s_cbranch_scc1 ' + lab)
    a('s_lshl_b32 s94, s2, 3')
    a(f's_add_u32 s94, s94, {32*MB + kidx*4096}')
    a('v_mov_b32 v1, s94')
    a('v_mov_b32 v2, s86')
    a('v_mov_b32 v3, s88')
    a('global_store_dwordx2 v1, v[2:3], s[92:93]')
    if os.environ.get('HDBG'):
        a('s_cmp_lg_u32 s2, 0')
        a('s_cbranch_scc1 ' + lab)
        a(f's_sub_u32 s84, s84, {512*kidx}')
        a('s_subb_u32 s85, s85, 0')
        a('v_mov_b32 v1, 0')
        a(f'global_store_dwordx2 v1, v[2:3], s[84:85] offset:{40+8*kidx}')
    a('s_waitcnt vmcnt(0)')
    a.label(lab)

def header(a, name):
    a.raw('.p2align 8')
    a.raw(f'.globl {name}')
    a.raw(f'.type {name},@function')
    a.label(name)
    a.reset_haz(); a.vm = []

def descriptor(name, vgpr, sgpr=96):
    acc = (vgpr + 3) // 4 * 4
    return f""".amdhsa_kernel {name}
  .amdhsa_next_free_vgpr {vgpr}
  .amdhsa_next_free_sgpr {sgpr}
  .amdhsa_accum_offset {acc}
  .amdhsa_group_segment_fixed_size 0
  .amdhsa_kernarg_size 80
  .amdhsa_user_sgpr_count 2
  .amdhsa_user_sgpr_kernarg_segment_ptr 1
  .amdhsa_system_sgpr_workgroup_id_x 1
.end_amdhsa_kernel
"""

K1_STAGE = 40960
K1_NBUF = 3
def gen_k1(a):
    name = 'qkv_kernel'
    header(a, name)
    a('s_cmp_ge_u32 s2, 256')
    a('s_cbranch_scc1 K1_END')
    rt_start(a)
    stamp(a, 0)
    a('s_load_dwordx4 s[4:7], s[0:1], 0')
    a('s_load_dwordx2 s[20:21], s[0:1], 16')
    a('s_load_dwordx4 s[24:27], s[0:1], 32')
    a('s_load_dwordx2 s[28:29], s[0:1], 48')
    a('s_load_dwordx2 s[30:31], s[0:1], 72')
    a('s_and_b32 s51, s2, 7')
    a('s_lshr_b32 s52, s2, 3')
    a('s_and_b32 s53, s51, 1'); a('s_lshl_b32 s53, s53, 3'); a('s_lshr_b32 s54, s52, 2'); a('s_add_u32 s44, s53, s54')
    a('s_lshr_b32 s53, s51, 1'); a('s_lshl_b32 s53, s53, 2'); a('s_and_b32 s54, s52, 3'); a('s_add_u32 s45, s53, s54')
    a('s_lshr_b32 s46, s45, 3')
    a('s_and_b32 s47, s45, 7')
    a('v_lshrrev_b32 v1, 6, v0')
    a('v_and_b32 v2, 63, v0')
    a('v_readfirstlane_b32 s59, v1')
    a('s_and_b32 s48, s59, 3')
    a('s_and_b32 s49, s48, 1')
    a('s_lshr_b32 s50, s48, 1')
    a('s_cmp_lt_u32 s59, 4')
    a('s_cbranch_scc1 K1_COMPUTE')
    a('v_lshrrev_b32 v11, 3, v2')
    a('s_lshl_b32 s51, s44, 7')
    a('s_lshl_b32 s52, s48, 3')
    a('s_add_u32 s51, s51, s52')
    a('v_add_u32 v11, s51, v11')
    a('s_movk_i32 s52, 896')
    a('v_mul_lo_u32 v12, v11, s52')
    a('v_lshrrev_b32 v11, 4, v2')
    a('s_lshl_b32 s52, s48, 2')
    a('v_add_u32 v11, s52, v11')
    a('v_and_b32 v11, 7, v11')
    a('v_and_b32 v13, 7, v2')
    a('v_xor_b32 v11, v11, v13')
    a('v_lshl_add_u32 v12, v11, 4, v12')
    a('s_mul_i32 s52, s47, 112')
    for j in range(6):
        r = 14 + j
        a(f's_lshl_b32 s51, s48, 6')
        a(f's_add_u32 s51, s51, {256*j}')
        a(f'v_add_u32 v44, s51, v2')
        a('s_movk_i32 s53, 3121')
        a('v_mul_lo_u32 v45, v44, s53')
        a('v_lshrrev_b32 v45, 16, v45')
        a('v_mul_u32_u24 v46, 21, v45')
        a('v_sub_u32 v46, v44, v46')
        a('v_mul_u32_u24 v47, 37, v46')
        a('v_lshrrev_b32 v47, 8, v47')
        a('v_and_b32 v48, 0xfffffff0, v45')
        a('v_and_b32 v49, 3, v45')
        a('v_lshl_or_b32 v48, v49, 2, v48')
        a('v_bfe_u32 v49, v45, 2, 2')
        a('v_or_b32 v48, v48, v49')
        a('s_movk_i32 s53, 2688')
        a('v_mul_lo_u32 v48, v48, s53')
        a('s_movk_i32 s53, 784')
        a('v_mul_lo_u32 v47, v47, s53')
        a(f'v_lshl_add_u32 v{r}, v46, 4, v48')
        a(f'v_add3_u32 v{r}, v{r}, v47, s52')
    a('s_lshl_b32 s55, s48, 10')
    a('s_waitcnt lgkmcnt(0)')
    srd(a, 8, 4, 5, 2048*448*2)
    a('s_cmp_eq_u32 s46, 0')
    a('s_cselect_b32 s12, s6, s24')
    a('s_cselect_b32 s13, s7, s25')
    a('s_and_b32 s13, s13, 0xffff')
    a(f's_mov_b32 s14, {448*1344*2}')
    a('s_mov_b32 s15, 0x20000')
    def dma_stage(st):
        buf = (st % K1_NBUF) * K1_STAGE
        for j in range(4):
            a(f's_add_u32 s51, s55, {buf + j*4096}')
            a('s_mov_b32 m0, s51')
            a(f's_mov_b32 s52, {st*128 + j*32*896}')
            a.vmem('buffer_load_dwordx4 v12, s[8:11], s52 offen lds', f'st{st}')
        for j in range(6):
            a(f's_add_u32 s51, s55, {buf + 16384 + j*4096}')
            a('s_mov_b32 m0, s51')
            a(f's_mov_b32 s52, {st*64*2688}')
            a.vmem(f'buffer_load_dwordx4 v{14+j}, s[12:15], s52 offen lds', f'st{st}')
    NST = 7
    for st in range(K1_NBUF): dma_stage(st)
    for st in range(NST):
        a.vm_wait_tag(f'st{st}')
        a('s_barrier')
        if st >= 1 and st + 2 < NST: dma_stage(st + 2)
    a('s_endpgm')
    a.label('K1_COMPUTE')
    a.reset_haz(); a.vm = []
    a('s_waitcnt lgkmcnt(0)')
    stamp(a, 12)
    srd(a, 8, 4, 5, 2048*448*2)
    srd(a, 16, 30, 31, WS_BYTES)
    srd(a, 40, 28, 29, 448*2)
    a('v_and_b32 v3, 31, v2')
    a('v_lshrrev_b32 v4, 5, v2')
    a('s_lshl_b32 s51, s2, 3')
    a('s_lshl_b32 s52, s48, 1')
    a('s_add_u32 s51, s51, s52')
    a('v_add_u32 v5, s51, v4')
    a('s_movk_i32 s52, 896')
    a('v_mul_lo_u32 v6, v5, s52')
    a('v_lshlrev_b32 v7, 5, v3')
    a('v_add_u32 v6, v6, v7')
    a('v_mov_b32 v8, 0x40000000')
    a('v_cmp_gt_u32 vcc, 28, v3')
    a('v_cndmask_b32 v6, v8, v6, vcc')
    a('v_cndmask_b32 v7, v8, v7, vcc')
    a.vmem('buffer_load_dwordx4 v[20:23], v6, s[8:11], 0 offen', 'gate')
    a.vmem('buffer_load_dwordx4 v[24:27], v6, s[8:11], 0 offen offset:16', 'gate')
    a.vmem('buffer_load_dwordx4 v[28:31], v7, s[40:43], 0 offen', 'gate')
    a.vmem('buffer_load_dwordx4 v[32:35], v7, s[40:43], 0 offen offset:16', 'gate')
    a('s_lshl_b32 s51, s2, 2')
    a('s_add_u32 s51, s51, s48')
    a('s_and_b32 s52, s51, 63')
    a('s_lshr_b32 s53, s51, 6')
    a('s_lshr_b32 s54, s52, 5')
    a('s_cmp_eq_u32 s54, 0')
    a('s_cselect_b32 s32, s20, s26')
    a('s_cselect_b32 s33, s21, s27')
    a('s_and_b32 s33, s33, 0xffff')
    a(f's_mov_b32 s34, {448*448*2}')
    a('s_mov_b32 s35, 0x20000')
    a('s_lshr_b32 s55, s52, 1'); a('s_and_b32 s55, s55, 15')
    a('s_and_b32 s56, s52, 1')
    a('s_mul_i32 s55, s55, 28')
    a('s_lshl_b32 s57, s56, 4')
    a('s_add_u32 s55, s55, s57')
    a('v_lshlrev_b32 v9, 2, v4')
    a('v_add_u32 v9, s55, v9')
    a('s_movk_i32 s52, 896')
    a('v_mul_lo_u32 v9, v9, s52')
    a('s_lshl_b32 s53, s53, 6')
    a('v_lshlrev_b32 v10, 1, v3')
    a('v_add3_u32 v9, v9, v10, s53')
    a(f'v_add_u32 v10, {8*896}, v9')
    a('v_and_b32 v11, s56, v4')
    a('v_cmp_eq_u32 vcc, 0, v11')
    a('v_cndmask_b32 v10, v8, v10, vcc')
    a('s_cmp_ge_u32 s2, 224')
    a('s_cselect_b32 s58, 0x40000000, 0')
    for j in range(4):
        a.vmem(f'buffer_load_ushort v{36+j}, v9, s[32:35], s58 offen offset:{896*j}', 'wo')
    for j in range(4):
        a.vmem(f'buffer_load_ushort v{40+j}, v10, s[32:35], s58 offen offset:{896*j}', 'wo')
    stamp(a, 13)
    ACC = 64
    XF = 160
    WF = 176
    for i in range(96):
        a(f'v_mov_b32 v{ACC+i}, 0')
    a.vm_wait_tag('gate')
    a('v_mov_b32 v44, 0')
    for i in range(8):
        xs, gs = 20 + i, 28 + i
        a(f'v_lshlrev_b32 v45, 16, v{xs}')
        a(f'v_and_b32 v46, 0xffff0000, v{xs}')
        a(f'v_lshlrev_b32 v47, 16, v{gs}')
        a(f'v_and_b32 v48, 0xffff0000, v{gs}')
        a('v_mul_f32 v45, v45, v47')
        a('v_mul_f32 v46, v46, v48')
        a('v_cvt_pk_bf16_f32 v45, v45, v46')
        a('v_lshlrev_b32 v46, 16, v45')
        a('v_and_b32 v45, 0xffff0000, v45')
        a('v_add_f32 v44, v44, v46')
        a('v_add_f32 v44, v44, v45')
    for off in (0x041F, 0x081F, 0x101F, 0x201F, 0x401F):
        a(f'ds_swizzle_b32 v45, v44 offset:{off}')
        a('s_waitcnt lgkmcnt(0)')
        a('v_add_f32 v44, v44, v45')
    a('v_cvt_pk_bf16_f32 v44, v44, v44')
    a('v_lshlrev_b32 v44, 16, v44')
    a(f'v_mul_f32 v44, {NLOG2E}, v44')
    a('v_exp_f32 v44, v44')
    a('v_add_f32 v44, 1.0, v44')
    a('v_rcp_f32 v44, v44')
    a('v_cvt_pk_bf16_f32 v44, v44, v44')
    a('v_lshlrev_b32 v44, 16, v44')
    a('v_lshlrev_b32 v45, 2, v5')
    a(f'v_add_u32 v45, {G_OFF}, v45')
    a('v_cmp_eq_u32 vcc, 0, v3')
    a('v_cndmask_b32 v45, v8, v45, vcc')
    a.vmem('buffer_store_dword v44, v45, s[16:19], 0 offen', 'gst')
    a.vm_wait_tag('wo')
    for j in range(4):
        a(f'v_lshl_or_b32 v{44+j}, v{37+2*j}, 16, v{36+2*j}')
    a('s_lshl_b32 s51, s2, 12')
    a(f's_add_u32 s51, s51, {WOF_OFF}')
    a('s_add_u32 s51, s51, s58')
    a('v_lshlrev_b32 v48, 4, v0')
    a.vmem('buffer_store_dwordx4 v[44:47], v48, s[16:19], s51 offen', 'gst')
    a('v_and_b32 v3, 31, v2')
    a('v_lshrrev_b32 v4, 5, v2')
    a('v_bfe_u32 v5, v3, 1, 3')
    a('s_lshl_b32 s51, s49, 13')
    a('v_lshlrev_b32 v6, 7, v3')
    a('v_add_u32 v6, s51, v6')
    for s in range(4):
        a(f'v_add_u32 v7, {2*s}, v4')
        a('v_xor_b32 v7, v7, v5')
        a(f'v_lshl_add_u32 v{20+s}, v7, 4, v6')
    a('v_bfe_u32 v5, v2, 2, 2')
    a('v_lshlrev_b32 v5, 2, v5')
    a('v_lshl_add_u32 v5, v4, 1, v5')
    a('v_mul_u32_u24 v5, 336, v5')
    a('v_bfe_u32 v6, v2, 4, 1')
    a('v_lshl_add_u32 v5, v6, 5, v5')
    a('v_and_b32 v6, 3, v2')
    a('v_lshl_add_u32 v5, v6, 3, v5')
    a('s_mul_i32 s51, s50, 56')
    a(f's_add_u32 s51, s51, 16384')
    a('v_add_u32 v24, s51, v5')
    def acc(which, tt): return ACC + (which*2 + tt)*16
    def rd_frags(st, s, pb):
        for tt in range(2):
            a(f'ds_read_b128 {vr(XF+pb*8+tt*4,4)}, v{25+s} offset:{tt*4096}')
        for which in range(3):
            for u in range(2):
                a(f'ds_read_b64_tr_b16 {vr(WF+pb*12+which*4+u*2,2)}, v29 offset:{s*5376+u*336+which*112}')
    def set_stage_addr(st):
        buf = (st % K1_NBUF) * K1_STAGE
        for s in range(4):
            a(f'v_add_u32 v{25+s}, {buf}, v{20+s}')
        a(f'v_add_u32 v29, {buf}, v24')
    def mfmas(pb):
        for which in range(3):
            for tt in range(2):
                xf = vr(XF+pb*8+tt*4, 4); wf = vr(WF+pb*12+which*4, 4); d = vr(acc(which, tt), 16)
                if which < 2: a(f'v_mfma_f32_32x32x16_bf16 {d}, {wf}, {xf}, {d}')
                else:         a(f'v_mfma_f32_32x32x16_bf16 {d}, {xf}, {wf}, {d}')
    set_stage_addr(0)
    stamp(a, 2)
    a('s_barrier')
    stamp(a, 3)
    rd_frags(0, 0, 0)
    step = 0
    for st in range(NST):
        for s in range(4):
            pb = step & 1
            last = (st == NST-1 and s == 3)
            if s < 3:
                rd_frags(st, s+1, pb ^ 1)
                a('s_waitcnt lgkmcnt(8)')
            elif not last:
                a('s_waitcnt lgkmcnt(0)')
                a('s_barrier')
                stamp(a, 4+st)
                set_stage_addr(st+1)
                rd_frags(st+1, 0, pb ^ 1)
            else:
                a('s_waitcnt lgkmcnt(0)')
            mfmas(pb)
            step += 1
    stamp(a, 10)
    a('s_lshl_b32 s51, s47, 1'); a('s_add_u32 s51, s51, s50')
    a('s_lshl_b32 s52, s46, 4'); a('s_add_u32 s51, s51, s52')
    a('s_lshl_b32 s51, s51, 17')
    a('s_lshl_b32 s52, s44, 2'); a('s_lshl_b32 s53, s49, 1'); a('s_add_u32 s52, s52, s53')
    a('s_lshl_b32 s52, s52, 11')
    a('s_add_u32 s51, s51, s52')
    a('v_lshlrev_b32 v3, 4, v2')
    a(f's_mov_b32 s56, {CSCALE}')
    a('v_cmp_gt_u32 s[60:61], 32, v2')
    a('v_and_b32 v4, 31, v2')
    a('v_cmp_eq_u32 s[62:63], 28, v4')
    a('v_mov_b32 v5, 0')
    a('v_mov_b32 v6, 0x3f803f80')
    for which in range(3):
        a(f's_add_u32 s52, s51, {which*4*MB}')
        for tt in range(2):
            b = acc(which, tt)
            if which == 0:
                for i in range(16): a(f'v_mul_f32 v{b+i}, s56, v{b+i}')
            for i in range(8):
                a(f'v_cvt_pk_bf16_f32 v{b+i}, v{b+2*i}, v{b+2*i+1}')
            if which < 2:
                a(f'v_cndmask_b32 v{b+6}, v5, v{b+6}, s[60:61]')
                a(f'v_cndmask_b32 v{b+7}, v5, v{b+7}, s[60:61]')
            else:
                for i in range(8): a(f'v_cndmask_b32 v{b+i}, v{b+i}, v6, s[62:63]')
            a.vmem(f'buffer_store_dwordx4 {vr(b,4)}, v3, s[16:19], s52 offen offset:{tt*2048}', 'out')
            a.vmem(f'buffer_store_dwordx4 {vr(b+4,4)}, v3, s[16:19], s52 offen offset:{tt*2048+1024}', 'out')
    if STAMP: a('s_waitcnt vmcnt(0)')
    stamp(a, 11)
    stamp_flush(a, 10 if os.environ.get('HDBG') else 15, 's59')
    rt_end(a, 0, 's59')
    a.label('K1_END')
    a('s_endpgm')
    return descriptor(name, 200)

K2_BUF = 32768
K2_COMB = 4*K2_BUF
K2_FLAG = K2_COMB + 4*5*1024
K2_LDS = K2_FLAG + 64
VQ, VNEG, VS, VP, VO, VK, VV = 16, 24, 40, 72, 80, 96, 112
AQ, AK, AV = 128, 136, 152
def gen_k2(a):
    name = 'attn_kernel'
    header(a, name)
    a('s_cmp_ge_u32 s2, 256')
    a('s_cbranch_scc1 K2_END')
    rt_start(a)
    stamp(a, 0)
    a('s_load_dwordx2 s[4:5], s[0:1], 72')
    a('s_and_b32 s20, s2, 15')
    a('s_lshr_b32 s21, s2, 4')
    a('v_lshrrev_b32 v1, 6, v0')
    a('v_and_b32 v2, 63, v0')
    a('v_readfirstlane_b32 s22, v1')
    a('s_and_b32 s23, s22, 3')
    a('s_lshr_b32 s24, s22, 2')
    a('s_lshl_b32 s25, s21, 2'); a('s_add_u32 s25, s25, s23')
    a('v_lshlrev_b32 v3, 4, v2')
    a('s_lshl_b32 s26, s22, 11')
    a('v_add_u32 v4, s26, v3')
    a('s_lshl_b32 s27, s24, 13')
    a('v_add_u32 v5, s27, v3')
    a('v_add_u32 v6, 0x10000, v5')
    a('s_lshl_b32 s28, s20, 17')
    a('s_add_u32 s29, s28, 0x200000')
    a('s_lshl_b32 s30, s25, 11')
    a('v_and_b32 v7, 31, v2')
    a('v_lshlrev_b32 v8, 2, v7')
    a('v_mov_b32 v10, 0')
    a(f'v_mov_b32 v11, {K2_FLAG}')
    a('ds_write_b32 v11, v10')
    a('s_waitcnt lgkmcnt(0)')
    srd(a, 8, 4, 5, WS_BYTES)
    def dma_stage(st):
        buf = (st % 4) * K2_BUF
        for reg, loff in ((KF_OFF, 0), (VF_OFF, 16384)):
            a(f's_add_u32 s36, s26, {buf + loff}')
            a('s_mov_b32 m0, s36')
            a(f's_add_u32 s37, s29, {reg + st*16384}')
            a.vmem('buffer_load_dwordx4 v4, s[8:11], s37 offen lds', f'st{st}')
            a.vmem('buffer_load_dwordx4 v4, s[8:11], s37 offen offset:1024 lds', f'st{st}')
    a('s_add_u32 s31, s29, s30')
    a.vmem(f'buffer_load_dwordx4 {vr(VQ,4)}, v3, s[8:11], s31 offen', 'st0')
    a.vmem(f'buffer_load_dwordx4 {vr(VQ+4,4)}, v3, s[8:11], s31 offen offset:1024', 'st0')
    dma_stage(0)
    a('s_lshl_b32 s31, s25, 7')
    a(f's_add_u32 s31, s31, {G_OFF}')
    a.vmem('buffer_load_dword v9, v8, s[8:11], s31 offen', 'st1')
    dma_stage(1)
    a('s_add_u32 s31, s28, s30')
    a('s_sub_u32 s32, s31, 2048')
    a('s_cmp_eq_u32 s25, 0')
    a('s_cselect_b32 s32, s31, s32')
    a('s_cselect_b32 s33, 1000, 32')
    a('s_cmp_eq_u32 s24, 0')
    a('s_cselect_b32 s31, 0x40000000, s31')
    a('s_cselect_b32 s32, 0x40000000, s32')
    a(f's_add_u32 s34, s32, {KF_OFF}')
    a(f's_add_u32 s35, s31, {KF_OFF}')
    a(f's_add_u32 s44, s32, {VF_OFF}')
    a(f's_add_u32 s45, s31, {VF_OFF}')
    deferred = [
        lambda: dma_stage(2),
        lambda: dma_stage(3),
        lambda: (a.vmem(f'buffer_load_dwordx4 {vr(AQ,4)}, v3, s[8:11], s31 offen', 'a'),
                 a.vmem(f'buffer_load_dwordx4 {vr(AQ+4,4)}, v3, s[8:11], s31 offen offset:1024', 'a'),
                 a.vmem(f'buffer_load_dwordx4 {vr(AK,4)}, v3, s[8:11], s34 offen', 'a'),
                 a.vmem(f'buffer_load_dwordx4 {vr(AK+4,4)}, v3, s[8:11], s34 offen offset:1024', 'a')),
        lambda: (a.vmem(f'buffer_load_dwordx4 {vr(AK+8,4)}, v3, s[8:11], s35 offen', 'a'),
                 a.vmem(f'buffer_load_dwordx4 {vr(AK+12,4)}, v3, s[8:11], s35 offen offset:1024', 'a'),
                 a.vmem(f'buffer_load_dwordx4 {vr(AV,4)}, v3, s[8:11], s44 offen', 'a')),
        lambda: (a.vmem(f'buffer_load_dwordx4 {vr(AV+4,4)}, v3, s[8:11], s44 offen offset:1024', 'a'),
                 a.vmem(f'buffer_load_dwordx4 {vr(AV+8,4)}, v3, s[8:11], s45 offen', 'a'),
                 a.vmem(f'buffer_load_dwordx4 {vr(AV+12,4)}, v3, s[8:11], s45 offen offset:1024', 'a')),
    ]

    def finalize(gate_expr_reg, br):
        a(f'v_mov_b32 v13, v{VO+12}')
        a(f'v_mov_b32 v14, v{VO+12}')
        a('v_permlane32_swap_b32 v13, v14')
        a('v_rcp_f32 v14, v14')
        a(f'v_mul_f32 v14, v14, v{gate_expr_reg}')
        for r in range(16): a(f'v_mul_f32 v{VO+r}, v14, v{VO+r}')
        for i in range(8): a(f'v_cvt_pk_bf16_f32 v{VO+i}, v{VO+2*i}, v{VO+2*i+1}')
        a('v_cmp_gt_u32 vcc, 32, v2')
        a('v_mov_b32 v13, 0')
        a(f'v_cndmask_b32 v{VO+6}, v13, v{VO+6}, vcc')
        a(f'v_cndmask_b32 v{VO+7}, v13, v{VO+7}, vcc')
        a('s_lshl_b32 s38, s25, 16')
        a('s_lshl_b32 s39, s20, 11')
        a('s_add_u32 s38, s38, s39')
        a(f's_add_u32 s38, s38, {OF_OFF + br*32768}')
        a(f'buffer_store_dwordx4 {vr(VO,4)}, v3, s[8:11], s38 offen')
        a(f'buffer_store_dwordx4 {vr(VO+4,4)}, v3, s[8:11], s38 offen offset:1024')

    def lds_tile(idx, isv, t):
        st, i = idx >> 2, idx & 3
        b = st % 4
        base = 'v5' if b < 2 else 'v6'
        off = (b & 1) * K2_BUF + (16384 if isv else 0) + i*2048 + t*1024
        return base, off
    def rdK(idx):
        for t in range(2):
            base, off = lds_tile(idx, False, t)
            a(f'ds_read_b128 {vr(VK+(idx&1)*8+t*4,4)}, {base} offset:{off}')
    def rdV(idx):
        for t in range(2):
            base, off = lds_tile(idx, True, t)
            a(f'ds_read_b128 {vr(VV+(idx&1)*8+t*4,4)}, {base} offset:{off}')
    def stage_sync(st):
        a.vm_wait_tag(f'st{st}')
        a('s_barrier')
        if st >= 2 and st + 2 < 8: dma_stage(st + 2)
    NT = 32
    def smfma(idx, cneg, part):
        d = vr(VS+(idx&1)*16, 16); k = VK+(idx&1)*8
        c = vr(VNEG,16) if cneg else '0'
        if part == 0: a(f'v_mfma_f32_32x32x16_bf16 {d}, {vr(k,4)}, {vr(VQ,4)}, {c}')
        else:         a(f'v_mfma_f32_32x32x16_bf16 {d}, {vr(k+4,4)}, {vr(VQ+4,4)}, {d}')
    def pv(idx, first, part):
        v = VV+(idx&1)*8
        c = '0' if first else vr(VO,16)
        if part == 0: a(f'v_mfma_f32_32x32x16_bf16 {vr(VO,16)}, {vr(v,4)}, {vr(VP,4)}, {c}')
        else:         a(f'v_mfma_f32_32x32x16_bf16 {vr(VO,16)}, {vr(v+4,4)}, {vr(VP+4,4)}, {vr(VO,16)}')
    def tilemax(sb, dst):
        a(f'v_max3_f32 v{dst}, v{sb}, v{sb+1}, v{sb+2}')
        for r in range(3, 15, 2):
            a(f'v_max3_f32 v{dst}, v{dst}, v{sb+r}, v{sb+r+1}')
        a(f'v_max_f32 v{dst}, v{dst}, v{sb+15}')
        a(f'v_mov_b32 v13, v{dst}')
        a(f'v_permlane32_swap_b32 v{dst}, v13')
        a(f'v_max_f32 v{dst}, v{dst}, v13')
    stamp(a, 1)
    stage_sync(0)
    stamp(a, 2)
    rdK(0)
    rdK(1)
    a('s_waitcnt lgkmcnt(2)')
    d = vr(VS+16, 16)
    a(f'v_mfma_f32_32x32x16_bf16 {d}, {vr(VK,4)}, {vr(VQ,4)}, 0')
    a(f'v_mfma_f32_32x32x16_bf16 {d}, {vr(VK+4,4)}, {vr(VQ+4,4)}, {d}')
    rdV(0)
    tilemax(VS+16, 12)
    for r in range(16): a(f'v_sub_f32 v{VNEG+r}, 0, v12')
    smfma(0, True, 0); smfma(0, True, 1)
    def quarter(sb, q):
        for i in (2*q, 2*q+1):
            a(f'v_exp_f32 v{sb+2*i}, v{sb+2*i}')
            a(f'v_exp_f32 v{sb+2*i+1}, v{sb+2*i+1}')
        for i in (2*q, 2*q+1):
            a(f'v_cvt_pk_bf16_f32 v{VP+i}, v{sb+2*i}, v{sb+2*i+1}')
    for idx in range(NT):
        sb = VS + (idx&1)*16
        n_out = 2
        if idx + 1 < NT:
            a('s_waitcnt lgkmcnt(2)')
            smfma(idx+1, True, 0)
        if idx + 2 < NT:
            if (idx + 2) % 4 == 0:
                stage_sync((idx+2) >> 2)
                stamp(a, 2 + ((idx+2) >> 2))
            rdK(idx+2); n_out += 2
        quarter(sb, 0)
        if idx > 0: pv(idx-1, False, 1)
        if idx + 1 < NT:
            rdV(idx+1); n_out += 2
        quarter(sb, 1)
        if idx + 1 < NT: smfma(idx+1, True, 1)
        if idx < len(deferred): deferred[idx]()
        quarter(sb, 2)
        a(f's_waitcnt lgkmcnt({n_out-2})')
        pv(idx, idx == 0, 0)
        quarter(sb, 3)
    pv(NT-1, False, 1)
    stamp(a, 10)
    a('v_sub_f32 v15, 1.0, v9')
    a(f'v_add_f32 v13, |v{VO}|, |v{VO+1}|')
    for r in range(2, 16): a(f'v_add_f32 v13, v13, |v{VO+r}|')
    a('v_mov_b32 v14, 0x7b800000')
    a('v_cmp_nlt_f32 vcc, v13, v14')
    a('s_cbranch_vccz K2_OKFAST')
    a('v_mov_b32 v10, 1')
    a(f'v_mov_b32 v11, {K2_FLAG}')
    a('ds_write_b32 v11, v10')
    a.label('K2_OKFAST')
    def combine(tag):
        a('s_mul_i32 s38, s23, %d' % (5*1024))
        a(f's_add_u32 s38, s38, {K2_COMB}')
        a('v_add_u32 v10, s38, v3')
        a('s_cmp_eq_u32 s24, 0')
        a(f's_cbranch_scc1 K2_C1_{tag}')
        for r in range(4): a(f'ds_write_b128 v10, {vr(VO+4*r,4)} offset:{1024*r}')
        a(f'ds_write_b32 v10, v12 offset:{4096}')
        a.label(f'K2_C1_{tag}')
        a('s_waitcnt lgkmcnt(0)')
        a('s_barrier')
    combine('F')
    a(f'v_mov_b32 v11, {K2_FLAG}')
    a('ds_read_b32 v11, v11')
    a('s_waitcnt lgkmcnt(0)')
    a('v_readfirstlane_b32 s38, v11')
    a('s_cmp_eq_u32 s38, 0')
    a('s_cbranch_scc1 K2_MERGE')
    a('s_barrier')
    a.vm_wait_all()
    for st in range(4): dma_stage(st)
    a('v_mov_b32 v12, 0xff7fffff')
    for r in range(16): a(f'v_mov_b32 v{VO+r}, 0')
    for idx in range(NT):
        if idx % 4 == 0: stage_sync(idx >> 2)
        rdK(idx); rdV(idx)
        a('s_waitcnt lgkmcnt(0)')
        smfma(idx, False, 0); smfma(idx, False, 1)
        sb = VS + (idx&1)*16
        tilemax(sb, 11)
        a('v_max_f32 v11, v11, v12')
        a('v_sub_f32 v10, v12, v11')
        a('v_exp_f32 v10, v10')
        a('v_mov_b32 v12, v11')
        for r in range(16):
            a(f'v_sub_f32 v{sb+r}, v{sb+r}, v11')
            a(f'v_exp_f32 v{sb+r}, v{sb+r}')
        for i in range(8): a(f'v_cvt_pk_bf16_f32 v{VP+i}, v{sb+2*i}, v{sb+2*i+1}')
        for r in range(16): a(f'v_mul_f32 v{VO+r}, v10, v{VO+r}')
        pv(idx, False, 0); pv(idx, False, 1)
    a('s_barrier')
    combine('S')
    a.label('K2_MERGE')
    a.reset_haz(); a.nop(16)
    a('s_waitcnt vmcnt(0)')
    a('s_cmp_eq_u32 s24, 0')
    a('s_cbranch_scc0 K2_ABR')
    for r in range(4): a(f'ds_read_b128 {vr(VS+4*r,4)}, v10 offset:{1024*r}')
    a(f'ds_read_b32 v11, v10 offset:{4096}')
    a('s_waitcnt lgkmcnt(0)')
    a('v_max_f32 v13, v11, v12')
    a('v_sub_f32 v11, v11, v13')
    a('v_sub_f32 v12, v12, v13')
    a('v_exp_f32 v11, v11')
    a('v_exp_f32 v12, v12')
    for r in range(16):
        a(f'v_mul_f32 v{VO+r}, v12, v{VO+r}')
        a(f'v_fmac_f32 v{VO+r}, v11, v{VS+r}')
    finalize(15, 1)
    a('s_waitcnt vmcnt(0)')
    stamp(a, 11)
    if not os.environ.get('HDBG'): stamp_flush(a, 12, 's22')
    rt_end(a, 1, 's22')
    a('s_endpgm')
    a.label('K2_ABR')
    a.reset_haz(); a.nop(4)
    S0, S1 = VS, VS+16
    a(f'v_mfma_f32_32x32x16_bf16 {vr(S0,16)}, {vr(AK,4)}, {vr(AQ,4)}, 0')
    a(f'v_mfma_f32_32x32x16_bf16 {vr(S0,16)}, {vr(AK+4,4)}, {vr(AQ+4,4)}, {vr(S0,16)}')
    a(f'v_mfma_f32_32x32x16_bf16 {vr(S1,16)}, {vr(AK+8,4)}, {vr(AQ,4)}, 0')
    a(f'v_mfma_f32_32x32x16_bf16 {vr(S1,16)}, {vr(AK+12,4)}, {vr(AQ+4,4)}, {vr(S1,16)}')
    a('v_lshrrev_b32 v10, 5, v2')
    a('v_lshlrev_b32 v10, 2, v10')
    a('v_sub_u32 v10, v7, v10')
    a('v_add_u32 v11, s33, v10')
    a('v_mov_b32 v12, 0xff800000')
    for ti, (sb, db) in enumerate(((S0, 11), (S1, 10))):
        for r in range(16):
            kofs = (r & 3) + 8*(r >> 2)
            a(f'v_subrev_u32 v13, {kofs}, v{db}')
            a('v_and_b32 v14, 1, v13')
            a('v_lshl_or_b32 v13, v14, 8, v13')
            a(f'v_cmp_gt_u32 s[{48+2*(r&3)}:{49+2*(r&3)}], 15, v13')
            if r >= 1:
                rr = r - 1
                a(f'v_cndmask_b32 v{sb+rr}, v12, v{sb+rr}, s[{48+2*(rr&3)}:{49+2*(rr&3)}]')
        a(f'v_cndmask_b32 v{sb+15}, v12, v{sb+15}, s[54:55]')
    a(f'v_max3_f32 v13, v{S0}, v{S0+1}, v{S0+2}')
    for r in range(3, 31, 2):
        a(f'v_max3_f32 v13, v13, v{S0+r}, v{S0+r+1}')
    a(f'v_max_f32 v13, v13, v{S0+31}')
    a('v_mov_b32 v14, v13')
    a('v_permlane32_swap_b32 v13, v14')
    a('v_max_f32 v13, v13, v14')
    for r in range(32):
        a(f'v_sub_f32 v{S0+r}, v{S0+r}, v13')
        a(f'v_exp_f32 v{S0+r}, v{S0+r}')
    for i in range(16):
        a(f'v_cvt_pk_bf16_f32 v{S0+i}, v{S0+2*i}, v{S0+2*i+1}')
    a(f'v_mfma_f32_32x32x16_bf16 {vr(VO,16)}, {vr(AV,4)}, {vr(S0,4)}, 0')
    a(f'v_mfma_f32_32x32x16_bf16 {vr(VO,16)}, {vr(AV+4,4)}, {vr(S0+4,4)}, {vr(VO,16)}')
    a(f'v_mfma_f32_32x32x16_bf16 {vr(VO,16)}, {vr(AV+8,4)}, {vr(S0+8,4)}, {vr(VO,16)}')
    a(f'v_mfma_f32_32x32x16_bf16 {vr(VO,16)}, {vr(AV+12,4)}, {vr(S0+12,4)}, {vr(VO,16)}')
    finalize(9, 0)
    a.label('K2_END')
    a('s_endpgm')
    return descriptor(name, 168)

def gen_k3(a):
    name = 'out_kernel'
    header(a, name)
    a('s_cmp_ge_u32 s2, 224')
    a('s_cbranch_scc1 K3_END')
    rt_start(a)
    a('s_load_dwordx2 s[4:5], s[0:1], 72')
    a('s_load_dwordx2 s[6:7], s[0:1], 56')
    a('s_and_b32 s20, s2, 7'); a('s_lshr_b32 s21, s2, 3')
    a('s_mul_i32 s22, s21, 37'); a('s_lshr_b32 s22, s22, 8')
    a('s_mul_i32 s23, s22, 7'); a('s_sub_u32 s23, s21, s23')
    a('s_lshl_b32 s20, s20, 2'); a('s_add_u32 s22, s22, s20')
    a('v_lshrrev_b32 v1, 6, v0')
    a('v_and_b32 v2, 63, v0')
    a('v_readfirstlane_b32 s24, v1')
    a('s_and_b32 s25, s24, 1')
    a('s_lshr_b32 s26, s24, 1')
    a('v_lshlrev_b32 v3, 4, v2')
    a('s_waitcnt lgkmcnt(0)')
    srd(a, 8, 4, 5, WS_BYTES)
    srd(a, 12, 6, 7, 2048*448*2)
    a('s_lshl_b32 s27, s22, 1'); a('s_add_u32 s27, s27, s24'); a('s_lshl_b32 s27, s27, 16'); a(f's_add_u32 s27, s27, {OF_OFF}')
    a('s_lshl_b32 s28, s23, 1'); a('s_add_u32 s28, s28, s24'); a('s_sub_u32 s28, s28, 2'); a('s_lshl_b32 s28, s28, 16'); a(f's_add_u32 s28, s28, {WOF_OFF}')
    a('s_cmp_lt_u32 s24, 2')
    a('s_cselect_b32 s27, s27, s28')
    a('s_lshl_b32 s29, s24, 13')
    def dma_stage(st):
        buf = (st % 4) * 32768
        for half in range(2):
            a(f's_add_u32 s30, s29, {buf + half*4096}')
            a('s_mov_b32 m0, s30')
            a(f's_add_u32 s31, s27, {st*8192 + half*4096}')
            for q in range(4):
                a.vmem(f'buffer_load_dwordx4 v3, s[8:11], s31 offen offset:{q*1024} lds', f'st{st}')
    for st in range(4): dma_stage(st)
    a('s_lshl_b32 s30, s25, 13')
    a('v_add_u32 v4, s30, v3')
    a('s_lshl_b32 s30, s26, 13')
    a('s_add_u32 s30, s30, 16384')
    a('v_add_u32 v5, s30, v3')
    a('v_add_u32 v6, 0x10000, v4')
    a('v_add_u32 v7, 0x10000, v5')
    ACC, FA, FB = 16, 32, 40
    def rd(ks):
        st, k = ks >> 3, ks & 7
        b = st % 4
        off = (b & 1)*32768 + k*1024
        a(f'ds_read_b128 {vr(FA+(ks&1)*4,4)}, {"v5" if b<2 else "v7"} offset:{off}')
        a(f'ds_read_b128 {vr(FB+(ks&1)*4,4)}, {"v4" if b<2 else "v6"} offset:{off}')
    def stage_sync(st):
        a.vm_wait_tag(f'st{st}')
        a('s_barrier')
    a.vm_wait_tag('st0'); a('s_barrier')
    rd(0)
    for ks in range(64):
        if ks + 1 < 64:
            if (ks + 1) % 8 == 0:
                st = (ks+1) >> 3
                a('s_waitcnt lgkmcnt(0)')
                a.vm_wait_tag(f'st{st}')
                a('s_barrier')
                if st + 3 < 8: dma_stage(st + 3)
                rd(ks+1)
            else:
                rd(ks+1)
                a('s_waitcnt lgkmcnt(2)')
        else:
            a('s_waitcnt lgkmcnt(0)')
        c = '0' if ks == 0 else vr(ACC,16)
        a(f'v_mfma_f32_32x32x16_bf16 {vr(ACC,16)}, {vr(FA+(ks&1)*4,4)}, {vr(FB+(ks&1)*4,4)}, {c}')
    a('v_and_b32 v8, 31, v2')
    a('s_lshl_b32 s30, s22, 6'); a('s_lshl_b32 s31, s25, 5'); a('s_add_u32 s30, s30, s31')
    a('v_add_u32 v8, s30, v8')
    a('s_movk_i32 s31, 896')
    a('v_mul_lo_u32 v8, v8, s31')
    a('v_lshrrev_b32 v9, 5, v2')
    a('v_lshl_add_u32 v8, v9, 3, v8')
    a('s_lshl_b32 s30, s23, 7'); a('s_lshl_b32 s31, s26, 6'); a('s_add_u32 s30, s30, s31')
    for i in range(8): a(f'v_cvt_pk_bf16_f32 v{ACC+i}, v{ACC+2*i}, v{ACC+2*i+1}')
    for q in range(4):
        a(f'buffer_store_dwordx2 {vr(ACC+2*q,2)}, v8, s[12:15], s30 offen offset:{16*q}')
    a('s_waitcnt vmcnt(0)')
    rt_end(a, 2, 's24')
    a.label('K3_END')
    a('s_endpgm')
    return descriptor(name, 48)

def main():
    a = Asm()
    hdr = open('cdna_kernels/%s.s.ref' % NAME).read().split('; Override launch')[0]
    out = hdr
    out += f'; @launch kernel=qkv_kernel grid=(256,1,1) block=(512,1,1) lds={K1_STAGE*K1_NBUF}\n'
    out += f'; @launch kernel=attn_kernel grid=(256,1,1) block=(512,1,1) lds={K2_LDS}\n'
    out += f'; @launch kernel=out_kernel grid=(224,1,1) block=(256,1,1) lds={4*32768}\n'
    out += '.amdgcn_target "amdgcn-amd-amdhsa--gfx950"\n.text\n'
    d1 = gen_k1(a); d2 = gen_k2(a); d3 = gen_k3(a)
    out += a.text()
    out += '.section .rodata,"a"\n'
    for d in (d1, d2, d3):
        out += '.p2align 6\n' + d
    open('cdna_kernels/%s.s' % NAME, 'w').write(out)
main()
```

```python
import sys, math
sys.path.insert(0, 'gen')
from asmlib import Asm

NAME = 'gated_mix__sliding_local_dilated__mha_block__prompt'
MB = 1 << 20
QF_OFF, KF_OFF, VF_OFF, OF_OFF, WOF_OFF, G_OFF = 0, 4*MB, 8*MB, 12*MB, 16*MB, 17*MB
WS_BYTES = 18*MB
import struct
def f32bits(x): return struct.unpack('<I', struct.pack('<f', x))[0]
CSCALE = f32bits((28 ** -0.5) * math.log2(math.e))
NLOG2E = f32bits(-math.log2(math.e))

def vr(b, n): return f'v[{b}:{b+n-1}]'

def srd(a, s, lo, hi, size):
    a(f's_mov_b32 s{s}, s{lo}')
    a(f's_and_b32 s{s+1}, s{hi}, 0xffff')
    a(f's_mov_b32 s{s+2}, {size}')
    a(f's_mov_b32 s{s+3}, 0x20000')

import os
STAMP = int(os.environ.get('STAMP', '0'))
def stamp(a, i):
    if not STAMP: return
    a('s_memtime s[90:91]')
    a('s_waitcnt lgkmcnt(0)')
    a(f's_mov_b32 s{70+i}, s90')
def stamp_flush(a, n, wavereg):
    if not STAMP: return
    a('s_load_dwordx2 s[92:93], s[0:1], 64')
    a('s_waitcnt lgkmcnt(0)')
    if os.environ.get('HDBG'):
        a('s_add_u32 s92, s92, 1024')
        a('s_addc_u32 s93, s93, 0')
    a(f's_cmp_lg_u32 s2, {STAMP-1}')
    a('s_cbranch_scc1 NOSTAMP_%d' % len(a.lines))
    lab = 'NOSTAMP_%d' % (len(a.lines)-1)
    a(f's_cmp_lg_u32 {wavereg}, 0')
    a('s_cbranch_scc1 ' + lab)
    a('v_mov_b32 v1, 0')
    for i in range(n):
        a(f's_sub_u32 s94, s{70+i}, s70')
        a('v_mov_b32 v2, s94')
        a(f'global_store_dword v1, v2, s[92:93] offset:{4*i}')
    a('s_waitcnt vmcnt(0)')
    a.label(lab)

def rt_start(a):
    if not STAMP: return
    a('s_memrealtime s[86:87]')
    a('s_waitcnt lgkmcnt(0)')
def rt_end(a, kidx, wavereg):
    if not STAMP: return
    a('s_memrealtime s[88:89]')
    a('s_load_dwordx2 s[92:93], s[0:1], 72')
    a('s_load_dwordx2 s[84:85], s[0:1], 64')
    a('s_waitcnt lgkmcnt(0)')
    lab = 'NORT_%d' % len(a.lines)
    a(f's_cmp_lg_u32 {wavereg}, 0')
    a('s_cbranch_scc1 ' + lab)
    a('s_lshl_b32 s94, s2, 3')
    a(f's_add_u32 s94, s94, {32*MB + kidx*4096}')
    a('v_mov_b32 v1, s94')
    a('v_mov_b32 v2, s86')
    a('v_mov_b32 v3, s88')
    a('global_store_dwordx2 v1, v[2:3], s[92:93]')
    if os.environ.get('HDBG'):
        a('s_cmp_lg_u32 s2, 0')
        a('s_cbranch_scc1 ' + lab)
        a(f's_add_u32 s84, s84, {512*(2-kidx)}')
        a('s_addc_u32 s85, s85, 0')
        a('v_mov_b32 v1, 0')
        a(f'global_store_dwordx2 v1, v[2:3], s[84:85] offset:{40+8*kidx}')
    a('s_waitcnt vmcnt(0)')
    a.label(lab)

def header(a, name):
    a.raw('.p2align 8')
    a.raw(f'.globl {name}')
    a.raw(f'.type {name},@function')
    a.label(name)
    a.reset_haz(); a.vm = []

def descriptor(name, vgpr, sgpr=96):
    acc = (vgpr + 3) // 4 * 4
    return f""".amdhsa_kernel {name}
  .amdhsa_next_free_vgpr {vgpr}
  .amdhsa_next_free_sgpr {sgpr}
  .amdhsa_accum_offset {acc}
  .amdhsa_group_segment_fixed_size 0
  .amdhsa_kernarg_size 80
  .amdhsa_user_sgpr_count 2
  .amdhsa_user_sgpr_kernarg_segment_ptr 1
  .amdhsa_system_sgpr_workgroup_id_x 1
.end_amdhsa_kernel
"""

K1_STAGE = 40960
K1_NBUF = 3
def gen_k1(a):
    name = 'qkv_kernel'
    header(a, name)
    a('s_cmp_ge_u32 s2, 256')
    a('s_cbranch_scc1 K1_END')
    rt_start(a)
    stamp(a, 0)
    a('s_load_dwordx4 s[4:7], s[0:1], 0')
    a('s_load_dwordx2 s[20:21], s[0:1], 16')
    a('s_load_dwordx4 s[24:27], s[0:1], 32')
    a('s_load_dwordx2 s[28:29], s[0:1], 48')
    a('s_load_dwordx2 s[30:31], s[0:1], 72')
    a('s_and_b32 s51, s2, 7')
    a('s_lshr_b32 s52, s2, 3')
    a('s_and_b32 s53, s51, 1'); a('s_lshl_b32 s53, s53, 3'); a('s_lshr_b32 s54, s52, 2'); a('s_add_u32 s44, s53, s54')
    a('s_lshr_b32 s53, s51, 1'); a('s_lshl_b32 s53, s53, 2'); a('s_and_b32 s54, s52, 3'); a('s_add_u32 s45, s53, s54')
    a('s_lshr_b32 s46, s45, 3')
    a('s_and_b32 s47, s45, 7')
    a('v_lshrrev_b32 v1, 6, v0')
    a('v_and_b32 v2, 63, v0')
    a('v_readfirstlane_b32 s59, v1')
    a('s_and_b32 s48, s59, 3')
    a('s_and_b32 s49, s48, 1')
    a('s_lshr_b32 s50, s48, 1')
    a('s_cmp_lt_u32 s59, 4')
    a('s_cbranch_scc1 K1_COMPUTE')
    a('v_lshrrev_b32 v11, 3, v2')
    a('s_lshl_b32 s51, s44, 7')
    a('s_lshl_b32 s52, s48, 3')
    a('s_add_u32 s51, s51, s52')
    a('v_add_u32 v11, s51, v11')
    a('s_movk_i32 s52, 896')
    a('v_mul_lo_u32 v12, v11, s52')
    a('v_lshrrev_b32 v11, 4, v2')
    a('s_lshl_b32 s52, s48, 2')
    a('v_add_u32 v11, s52, v11')
    a('v_and_b32 v11, 7, v11')
    a('v_and_b32 v13, 7, v2')
    a('v_xor_b32 v11, v11, v13')
    a('v_lshl_add_u32 v12, v11, 4, v12')
    a('s_mul_i32 s52, s47, 112')
    for j in range(6):
        r = 14 + j
        a(f's_lshl_b32 s51, s48, 6')
        a(f's_add_u32 s51, s51, {256*j}')
        a(f'v_add_u32 v44, s51, v2')
        a('s_movk_i32 s53, 3121')
        a('v_mul_lo_u32 v45, v44, s53')
        a('v_lshrrev_b32 v45, 16, v45')
        a('v_mul_u32_u24 v46, 21, v45')
        a('v_sub_u32 v46, v44, v46')
        a('v_mul_u32_u24 v47, 37, v46')
        a('v_lshrrev_b32 v47, 8, v47')
        a('v_and_b32 v48, 0xfffffff0, v45')
        a('v_and_b32 v49, 3, v45')
        a('v_lshl_or_b32 v48, v49, 2, v48')
        a('v_bfe_u32 v49, v45, 2, 2')
        a('v_or_b32 v48, v48, v49')
        a('s_movk_i32 s53, 2688')
        a('v_mul_lo_u32 v48, v48, s53')
        a('s_movk_i32 s53, 784')
        a('v_mul_lo_u32 v47, v47, s53')
        a(f'v_lshl_add_u32 v{r}, v46, 4, v48')
        a(f'v_add3_u32 v{r}, v{r}, v47, s52')
    a('s_lshl_b32 s55, s48, 10')
    a('s_waitcnt lgkmcnt(0)')
    srd(a, 8, 4, 5, 2048*448*2)
    a('s_cmp_eq_u32 s46, 0')
    a('s_cselect_b32 s12, s6, s24')
    a('s_cselect_b32 s13, s7, s25')
    a('s_and_b32 s13, s13, 0xffff')
    a(f's_mov_b32 s14, {448*1344*2}')
    a('s_mov_b32 s15, 0x20000')
    def dma_stage(st):
        buf = (st % K1_NBUF) * K1_STAGE
        for j in range(4):
            a(f's_add_u32 s51, s55, {buf + j*4096}')
            a('s_mov_b32 m0, s51')
            a(f's_mov_b32 s52, {st*128 + j*32*896}')
            a.vmem('buffer_load_dwordx4 v12, s[8:11], s52 offen lds', f'st{st}')
        for j in range(6):
            a(f's_add_u32 s51, s55, {buf + 16384 + j*4096}')
            a('s_mov_b32 m0, s51')
            a(f's_mov_b32 s52, {st*64*2688}')
            a.vmem(f'buffer_load_dwordx4 v{14+j}, s[12:15], s52 offen lds', f'st{st}')
    NST = 7
    for st in range(K1_NBUF): dma_stage(st)
    for st in range(NST):
        a.vm_wait_tag(f'st{st}')
        a('s_barrier')
        if st >= 1 and st + 2 < NST: dma_stage(st + 2)
    a('s_endpgm')
    a.label('K1_COMPUTE')
    a.reset_haz(); a.vm = []
    a('s_waitcnt lgkmcnt(0)')
    stamp(a, 12)
    srd(a, 8, 4, 5, 2048*448*2)
    srd(a, 16, 30, 31, WS_BYTES)
    srd(a, 40, 28, 29, 448*2)
    a('v_and_b32 v3, 31, v2')
    a('v_lshrrev_b32 v4, 5, v2')
    a('s_lshl_b32 s51, s2, 3')
    a('s_lshl_b32 s52, s48, 1')
    a('s_add_u32 s51, s51, s52')
    a('v_add_u32 v5, s51, v4')
    a('s_movk_i32 s52, 896')
    a('v_mul_lo_u32 v6, v5, s52')
    a('v_lshlrev_b32 v7, 5, v3')
    a('v_add_u32 v6, v6, v7')
    a('v_mov_b32 v8, 0x40000000')
    a('v_cmp_gt_u32 vcc, 28, v3')
    a('v_cndmask_b32 v6, v8, v6, vcc')
    a('v_cndmask_b32 v7, v8, v7, vcc')
    a.vmem('buffer_load_dwordx4 v[20:23], v6, s[8:11], 0 offen', 'gate')
    a.vmem('buffer_load_dwordx4 v[24:27], v6, s[8:11], 0 offen offset:16', 'gate')
    a.vmem('buffer_load_dwordx4 v[28:31], v7, s[40:43], 0 offen', 'gate')
    a.vmem('buffer_load_dwordx4 v[32:35], v7, s[40:43], 0 offen offset:16', 'gate')
    a('s_lshl_b32 s51, s2, 2')
    a('s_add_u32 s51, s51, s48')
    a('s_and_b32 s52, s51, 63')
    a('s_lshr_b32 s53, s51, 6')
    a('s_lshr_b32 s54, s52, 5')
    a('s_cmp_eq_u32 s54, 0')
    a('s_cselect_b32 s32, s20, s26')
    a('s_cselect_b32 s33, s21, s27')
    a('s_and_b32 s33, s33, 0xffff')
    a(f's_mov_b32 s34, {448*448*2}')
    a('s_mov_b32 s35, 0x20000')
    a('s_lshr_b32 s55, s52, 1'); a('s_and_b32 s55, s55, 15')
    a('s_and_b32 s56, s52, 1')
    a('s_mul_i32 s55, s55, 28')
    a('s_lshl_b32 s57, s56, 4')
    a('s_add_u32 s55, s55, s57')
    a('v_lshlrev_b32 v9, 2, v4')
    a('v_add_u32 v9, s55, v9')
    a('s_movk_i32 s52, 896')
    a('v_mul_lo_u32 v9, v9, s52')
    a('s_lshl_b32 s53, s53, 6')
    a('v_lshlrev_b32 v10, 1, v3')
    a('v_add3_u32 v9, v9, v10, s53')
    a(f'v_add_u32 v10, {8*896}, v9')
    a('v_and_b32 v11, s56, v4')
    a('v_cmp_eq_u32 vcc, 0, v11')
    a('v_cndmask_b32 v10, v8, v10, vcc')
    a('s_cmp_ge_u32 s2, 224')
    a('s_cselect_b32 s58, 0x40000000, 0')
    for j in range(4):
        a.vmem(f'buffer_load_ushort v{36+j}, v9, s[32:35], s58 offen offset:{896*j}', 'wo')
    for j in range(4):
        a.vmem(f'buffer_load_ushort v{40+j}, v10, s[32:35], s58 offen offset:{896*j}', 'wo')
    stamp(a, 13)
    ACC = 64
    XF = 160
    WF = 176
    for i in range(96):
        a(f'v_mov_b32 v{ACC+i}, 0')
    a.vm_wait_tag('gate')
    a('v_mov_b32 v44, 0')
    for i in range(8):
        xs, gs = 20 + i, 28 + i
        a(f'v_lshlrev_b32 v45, 16, v{xs}')
        a(f'v_and_b32 v46, 0xffff0000, v{xs}')
        a(f'v_lshlrev_b32 v47, 16, v{gs}')
        a(f'v_and_b32 v48, 0xffff0000, v{gs}')
        a('v_mul_f32 v45, v45, v47')
        a('v_mul_f32 v46, v46, v48')
        a('v_cvt_pk_bf16_f32 v45, v45, v46')
        a('v_lshlrev_b32 v46, 16, v45')
        a('v_and_b32 v45, 0xffff0000, v45')
        a('v_add_f32 v44, v44, v46')
        a('v_add_f32 v44, v44, v45')
    for off in (0x041F, 0x081F, 0x101F, 0x201F, 0x401F):
        a(f'ds_swizzle_b32 v45, v44 offset:{off}')
        a('s_waitcnt lgkmcnt(0)')
        a('v_add_f32 v44, v44, v45')
    a('v_cvt_pk_bf16_f32 v44, v44, v44')
    a('v_lshlrev_b32 v44, 16, v44')
    a(f'v_mul_f32 v44, {NLOG2E}, v44')
    a('v_exp_f32 v44, v44')
    a('v_add_f32 v44, 1.0, v44')
    a('v_rcp_f32 v44, v44')
    a('v_cvt_pk_bf16_f32 v44, v44, v44')
    a('v_lshlrev_b32 v44, 16, v44')
    a('v_lshlrev_b32 v45, 2, v5')
    a(f'v_add_u32 v45, {G_OFF}, v45')
    a('v_cmp_eq_u32 vcc, 0, v3')
    a('v_cndmask_b32 v45, v8, v45, vcc')
    a.vmem('buffer_store_dword v44, v45, s[16:19], 0 offen', 'gst')
    a.vm_wait_tag('wo')
    for j in range(4):
        a(f'v_lshl_or_b32 v{44+j}, v{37+2*j}, 16, v{36+2*j}')
    a('s_lshl_b32 s51, s2, 12')
    a(f's_add_u32 s51, s51, {WOF_OFF}')
    a('s_add_u32 s51, s51, s58')
    a('v_lshlrev_b32 v48, 4, v0')
    a.vmem('buffer_store_dwordx4 v[44:47], v48, s[16:19], s51 offen', 'gst')
    a('v_and_b32 v3, 31, v2')
    a('v_lshrrev_b32 v4, 5, v2')
    a('v_bfe_u32 v5, v3, 1, 3')
    a('s_lshl_b32 s51, s49, 13')
    a('v_lshlrev_b32 v6, 7, v3')
    a('v_add_u32 v6, s51, v6')
    for s in range(4):
        a(f'v_add_u32 v7, {2*s}, v4')
        a('v_xor_b32 v7, v7, v5')
        a(f'v_lshl_add_u32 v{20+s}, v7, 4, v6')
    a('v_bfe_u32 v5, v2, 2, 2')
    a('v_lshlrev_b32 v5, 2, v5')
    a('v_lshl_add_u32 v5, v4, 1, v5')
    a('v_mul_u32_u24 v5, 336, v5')
    a('v_bfe_u32 v6, v2, 4, 1')
    a('v_lshl_add_u32 v5, v6, 5, v5')
    a('v_and_b32 v6, 3, v2')
    a('v_lshl_add_u32 v5, v6, 3, v5')
    a('s_mul_i32 s51, s50, 56')
    a(f's_add_u32 s51, s51, 16384')
    a('v_add_u32 v24, s51, v5')
    def acc(which, tt): return ACC + (which*2 + tt)*16
    def rd_frags(st, s, pb):
        for tt in range(2):
            a(f'ds_read_b128 {vr(XF+pb*8+tt*4,4)}, v{25+s} offset:{tt*4096}')
        for which in range(3):
            for u in range(2):
                a(f'ds_read_b64_tr_b16 {vr(WF+pb*12+which*4+u*2,2)}, v29 offset:{s*5376+u*336+which*112}')
    def set_stage_addr(st):
        buf = (st % K1_NBUF) * K1_STAGE
        for s in range(4):
            a(f'v_add_u32 v{25+s}, {buf}, v{20+s}')
        a(f'v_add_u32 v29, {buf}, v24')
    def mfmas(pb):
        for which in range(3):
            for tt in range(2):
                xf = vr(XF+pb*8+tt*4, 4); wf = vr(WF+pb*12+which*4, 4); d = vr(acc(which, tt), 16)
                if which < 2: a(f'v_mfma_f32_32x32x16_bf16 {d}, {wf}, {xf}, {d}')
                else:         a(f'v_mfma_f32_32x32x16_bf16 {d}, {xf}, {wf}, {d}')
    set_stage_addr(0)
    stamp(a, 2)
    a('s_barrier')
    stamp(a, 3)
    rd_frags(0, 0, 0)
    step = 0
    for st in range(NST):
        for s in range(4):
            pb = step & 1
            last = (st == NST-1 and s == 3)
            if s < 3:
                rd_frags(st, s+1, pb ^ 1)
                a('s_waitcnt lgkmcnt(8)')
            elif not last:
                a('s_waitcnt lgkmcnt(0)')
                a('s_barrier')
                stamp(a, 4+st)
                set_stage_addr(st+1)
                rd_frags(st+1, 0, pb ^ 1)
            else:
                a('s_waitcnt lgkmcnt(0)')
            mfmas(pb)
            step += 1
    stamp(a, 10)
    a('s_lshl_b32 s51, s47, 1'); a('s_add_u32 s51, s51, s50')
    a('s_lshl_b32 s52, s46, 4'); a('s_add_u32 s51, s51, s52')
    a('s_lshl_b32 s51, s51, 17')
    a('s_lshl_b32 s52, s44, 2'); a('s_lshl_b32 s53, s49, 1'); a('s_add_u32 s52, s52, s53')
    a('s_lshl_b32 s52, s52, 11')
    a('s_add_u32 s51, s51, s52')
    a('v_lshlrev_b32 v3, 4, v2')
    a(f's_mov_b32 s56, {CSCALE}')
    a('v_cmp_gt_u32 s[60:61], 32, v2')
    a('v_and_b32 v4, 31, v2')
    a('v_cmp_eq_u32 s[62:63], 28, v4')
    a('v_mov_b32 v5, 0')
    a('v_mov_b32 v6, 0x3f803f80')
    for which in range(3):
        a(f's_add_u32 s52, s51, {which*4*MB}')
        for tt in range(2):
            b = acc(which, tt)
            if which == 0:
                for i in range(16): a(f'v_mul_f32 v{b+i}, s56, v{b+i}')
            for i in range(8):
                a(f'v_cvt_pk_bf16_f32 v{b+i}, v{b+2*i}, v{b+2*i+1}')
            if which < 2:
                a(f'v_cndmask_b32 v{b+6}, v5, v{b+6}, s[60:61]')
                a(f'v_cndmask_b32 v{b+7}, v5, v{b+7}, s[60:61]')
            else:
                for i in range(8): a(f'v_cndmask_b32 v{b+i}, v{b+i}, v6, s[62:63]')
            a.vmem(f'buffer_store_dwordx4 {vr(b,4)}, v3, s[16:19], s52 offen offset:{tt*2048}', 'out')
            a.vmem(f'buffer_store_dwordx4 {vr(b+4,4)}, v3, s[16:19], s52 offen offset:{tt*2048+1024}', 'out')
    if STAMP: a('s_waitcnt vmcnt(0)')
    stamp(a, 11)
    stamp_flush(a, 10 if os.environ.get('HDBG') else 15, 's59')
    rt_end(a, 0, 's59')
    a.label('K1_END')
    a('s_endpgm')
    return descriptor(name, 200)

K2_BUF = 32768
K2_COMB = 4*K2_BUF
K2_FLAG = K2_COMB + 4*5*1024
K2_LDS = K2_FLAG + 64
VQ, VNEG, VS, VP, VO, VK, VV = 16, 24, 40, 72, 80, 96, 112
AQ, AK, AV = 128, 136, 152
def gen_k2(a):
    name = 'attn_kernel'
    header(a, name)
    a('s_cmp_ge_u32 s2, 256')
    a('s_cbranch_scc1 K2_END')
    rt_start(a)
    stamp(a, 0)
    a('s_load_dwordx2 s[4:5], s[0:1], 72')
    a('s_and_b32 s20, s2, 15')
    a('s_lshr_b32 s21, s2, 4')
    a('v_lshrrev_b32 v1, 6, v0')
    a('v_and_b32 v2, 63, v0')
    a('v_readfirstlane_b32 s22, v1')
    a('s_and_b32 s23, s22, 3')
    a('s_lshr_b32 s24, s22, 2')
    a('s_lshl_b32 s25, s21, 2'); a('s_add_u32 s25, s25, s23')
    a('v_lshlrev_b32 v3, 4, v2')
    a('s_lshl_b32 s26, s22, 11')
    a('v_add_u32 v4, s26, v3')
    a('s_lshl_b32 s27, s24, 13')
    a('v_add_u32 v5, s27, v3')
    a('v_add_u32 v6, 0x10000, v5')
    a('s_lshl_b32 s28, s20, 17')
    a('s_add_u32 s29, s28, 0x200000')
    a('s_lshl_b32 s30, s25, 11')
    a('v_and_b32 v7, 31, v2')
    a('v_lshlrev_b32 v8, 2, v7')
    a('v_mov_b32 v10, 0')
    a(f'v_mov_b32 v11, {K2_FLAG}')
    a('ds_write_b32 v11, v10')
    a('s_waitcnt lgkmcnt(0)')
    srd(a, 8, 4, 5, WS_BYTES)
    def dma_stage(st):
        buf = (st % 4) * K2_BUF
        for reg, loff in ((KF_OFF, 0), (VF_OFF, 16384)):
            a(f's_add_u32 s36, s26, {buf + loff}')
            a('s_mov_b32 m0, s36')
            a(f's_add_u32 s37, s29, {reg + st*16384}')
            a.vmem('buffer_load_dwordx4 v4, s[8:11], s37 offen lds', f'st{st}')
            a.vmem('buffer_load_dwordx4 v4, s[8:11], s37 offen offset:1024 lds', f'st{st}')
    a('s_add_u32 s31, s29, s30')
    a.vmem(f'buffer_load_dwordx4 {vr(VQ,4)}, v3, s[8:11], s31 offen', 'st0')
    a.vmem(f'buffer_load_dwordx4 {vr(VQ+4,4)}, v3, s[8:11], s31 offen offset:1024', 'st0')
    dma_stage(0)
    a('s_lshl_b32 s31, s25, 7')
    a(f's_add_u32 s31, s31, {G_OFF}')
    a.vmem('buffer_load_dword v9, v8, s[8:11], s31 offen', 'st1')
    dma_stage(1)
    a('s_add_u32 s31, s28, s30')
    a('s_sub_u32 s32, s31, 2048')
    a('s_cmp_eq_u32 s25, 0')
    a('s_cselect_b32 s32, s31, s32')
    a('s_cselect_b32 s33, 1000, 32')
    a('s_cmp_eq_u32 s24, 0')
    a('s_cselect_b32 s31, 0x40000000, s31')
    a('s_cselect_b32 s32, 0x40000000, s32')
    a(f's_add_u32 s34, s32, {KF_OFF}')
    a(f's_add_u32 s35, s31, {KF_OFF}')
    a(f's_add_u32 s44, s32, {VF_OFF}')
    a(f's_add_u32 s45, s31, {VF_OFF}')
    deferred = [
        lambda: dma_stage(2),
        lambda: dma_stage(3),
        lambda: (a.vmem(f'buffer_load_dwordx4 {vr(AQ,4)}, v3, s[8:11], s31 offen', 'a'),
                 a.vmem(f'buffer_load_dwordx4 {vr(AQ+4,4)}, v3, s[8:11], s31 offen offset:1024', 'a'),
                 a.vmem(f'buffer_load_dwordx4 {vr(AK,4)}, v3, s[8:11], s34 offen', 'a'),
                 a.vmem(f'buffer_load_dwordx4 {vr(AK+4,4)}, v3, s[8:11], s34 offen offset:1024', 'a')),
        lambda: (a.vmem(f'buffer_load_dwordx4 {vr(AK+8,4)}, v3, s[8:11], s35 offen', 'a'),
                 a.vmem(f'buffer_load_dwordx4 {vr(AK+12,4)}, v3, s[8:11], s35 offen offset:1024', 'a'),
                 a.vmem(f'buffer_load_dwordx4 {vr(AV,4)}, v3, s[8:11], s44 offen', 'a')),
        lambda: (a.vmem(f'buffer_load_dwordx4 {vr(AV+4,4)}, v3, s[8:11], s44 offen offset:1024', 'a'),
                 a.vmem(f'buffer_load_dwordx4 {vr(AV+8,4)}, v3, s[8:11], s45 offen', 'a'),
                 a.vmem(f'buffer_load_dwordx4 {vr(AV+12,4)}, v3, s[8:11], s45 offen offset:1024', 'a')),
    ]

    def finalize(gate_expr_reg, br):
        a(f'v_mov_b32 v13, v{VO+12}')
        a(f'v_mov_b32 v14, v{VO+12}')
        a('v_permlane32_swap_b32 v13, v14')
        a('v_rcp_f32 v14, v14')
        a(f'v_mul_f32 v14, v14, v{gate_expr_reg}')
        for r in range(16): a(f'v_mul_f32 v{VO+r}, v14, v{VO+r}')
        for i in range(8): a(f'v_cvt_pk_bf16_f32 v{VO+i}, v{VO+2*i}, v{VO+2*i+1}')
        a('v_cmp_gt_u32 vcc, 32, v2')
        a('v_mov_b32 v13, 0')
        a(f'v_cndmask_b32 v{VO+6}, v13, v{VO+6}, vcc')
        a(f'v_cndmask_b32 v{VO+7}, v13, v{VO+7}, vcc')
        a('s_lshl_b32 s38, s25, 16')
        a('s_lshl_b32 s39, s20, 11')
        a('s_add_u32 s38, s38, s39')
        a(f's_add_u32 s38, s38, {OF_OFF + br*32768}')
        a(f'buffer_store_dwordx4 {vr(VO,4)}, v3, s[8:11], s38 offen')
        a(f'buffer_store_dwordx4 {vr(VO+4,4)}, v3, s[8:11], s38 offen offset:1024')

    def lds_tile(idx, isv, t):
        st, i = idx >> 2, idx & 3
        b = st % 4
        base = 'v5' if b < 2 else 'v6'
        off = (b & 1) * K2_BUF + (16384 if isv else 0) + i*2048 + t*1024
        return base, off
    def rdK(idx):
        for t in range(2):
            base, off = lds_tile(idx, False, t)
            a(f'ds_read_b128 {vr(VK+(idx&1)*8+t*4,4)}, {base} offset:{off}')
    def rdV(idx):
        for t in range(2):
            base, off = lds_tile(idx, True, t)
            a(f'ds_read_b128 {vr(VV+(idx&1)*8+t*4,4)}, {base} offset:{off}')
    def stage_sync(st):
        a.vm_wait_tag(f'st{st}')
        a('s_barrier')
        if st >= 2 and st + 2 < 8: dma_stage(st + 2)
    NT = 32
    def smfma(idx, cneg, part):
        d = vr(VS+(idx&1)*16, 16); k = VK+(idx&1)*8
        c = vr(VNEG,16) if cneg else '0'
        if part == 0: a(f'v_mfma_f32_32x32x16_bf16 {d}, {vr(k,4)}, {vr(VQ,4)}, {c}')
        else:         a(f'v_mfma_f32_32x32x16_bf16 {d}, {vr(k+4,4)}, {vr(VQ+4,4)}, {d}')
    def pv(idx, first, part):
        v = VV+(idx&1)*8
        c = '0' if first else vr(VO,16)
        if part == 0: a(f'v_mfma_f32_32x32x16_bf16 {vr(VO,16)}, {vr(v,4)}, {vr(VP,4)}, {c}')
        else:         a(f'v_mfma_f32_32x32x16_bf16 {vr(VO,16)}, {vr(v+4,4)}, {vr(VP+4,4)}, {vr(VO,16)}')
    def tilemax(sb, dst):
        a(f'v_max3_f32 v{dst}, v{sb}, v{sb+1}, v{sb+2}')
        for r in range(3, 15, 2):
            a(f'v_max3_f32 v{dst}, v{dst}, v{sb+r}, v{sb+r+1}')
        a(f'v_max_f32 v{dst}, v{dst}, v{sb+15}')
        a(f'v_mov_b32 v13, v{dst}')
        a(f'v_permlane32_swap_b32 v{dst}, v13')
        a(f'v_max_f32 v{dst}, v{dst}, v13')
    stamp(a, 1)
    stage_sync(0)
    stamp(a, 2)
    rdK(0)
    rdK(1)
    a('s_waitcnt lgkmcnt(2)')
    d = vr(VS+16, 16)
    a(f'v_mfma_f32_32x32x16_bf16 {d}, {vr(VK,4)}, {vr(VQ,4)}, 0')
    a(f'v_mfma_f32_32x32x16_bf16 {d}, {vr(VK+4,4)}, {vr(VQ+4,4)}, {d}')
    rdV(0)
    tilemax(VS+16, 12)
    for r in range(16): a(f'v_sub_f32 v{VNEG+r}, 0, v12')
    smfma(0, True, 0); smfma(0, True, 1)
    def quarter(sb, q):
        for i in (2*q, 2*q+1):
            a(f'v_exp_f32 v{sb+2*i}, v{sb+2*i}')
            a(f'v_exp_f32 v{sb+2*i+1}, v{sb+2*i+1}')
        for i in (2*q, 2*q+1):
            a(f'v_cvt_pk_bf16_f32 v{VP+i}, v{sb+2*i}, v{sb+2*i+1}')
    for idx in range(NT):
        sb = VS + (idx&1)*16
        n_out = 2
        if idx + 1 < NT:
            a('s_waitcnt lgkmcnt(2)')
            smfma(idx+1, True, 0)
        if idx + 2 < NT:
            if (idx + 2) % 4 == 0:
                stage_sync((idx+2) >> 2)
                stamp(a, 2 + ((idx+2) >> 2))
            rdK(idx+2); n_out += 2
        quarter(sb, 0)
        if idx > 0: pv(idx-1, False, 1)
        if idx + 1 < NT:
            rdV(idx+1); n_out += 2
        quarter(sb, 1)
        if idx + 1 < NT: smfma(idx+1, True, 1)
        if idx < len(deferred): deferred[idx]()
        quarter(sb, 2)
        a(f's_waitcnt lgkmcnt({n_out-2})')
        pv(idx, idx == 0, 0)
        quarter(sb, 3)
    pv(NT-1, False, 1)
    stamp(a, 10)
    a('v_sub_f32 v15, 1.0, v9')
    a(f'v_add_f32 v13, |v{VO}|, |v{VO+1}|')
    for r in range(2, 16): a(f'v_add_f32 v13, v13, |v{VO+r}|')
    a('v_mov_b32 v14, 0x7b800000')
    a('v_cmp_nlt_f32 vcc, v13, v14')
    a('s_cbranch_vccz K2_OKFAST')
    a('v_mov_b32 v10, 1')
    a(f'v_mov_b32 v11, {K2_FLAG}')
    a('ds_write_b32 v11, v10')
    a.label('K2_OKFAST')
    def combine(tag):
        a('s_mul_i32 s38, s23, %d' % (5*1024))
        a(f's_add_u32 s38, s38, {K2_COMB}')
        a('v_add_u32 v10, s38, v3')
        a('s_cmp_eq_u32 s24, 0')
        a(f's_cbranch_scc1 K2_C1_{tag}')
        for r in range(4): a(f'ds_write_b128 v10, {vr(VO+4*r,4)} offset:{1024*r}')
        a(f'ds_write_b32 v10, v12 offset:{4096}')
        a.label(f'K2_C1_{tag}')
        a('s_waitcnt lgkmcnt(0)')
        a('s_barrier')
    combine('F')
    a(f'v_mov_b32 v11, {K2_FLAG}')
    a('ds_read_b32 v11, v11')
    a('s_waitcnt lgkmcnt(0)')
    a('v_readfirstlane_b32 s38, v11')
    a('s_cmp_eq_u32 s38, 0')
    a('s_cbranch_scc1 K2_MERGE')
    a('s_barrier')
    a.vm_wait_all()
    for st in range(4): dma_stage(st)
    a('v_mov_b32 v12, 0xff7fffff')
    for r in range(16): a(f'v_mov_b32 v{VO+r}, 0')
    for idx in range(NT):
        if idx % 4 == 0: stage_sync(idx >> 2)
        rdK(idx); rdV(idx)
        a('s_waitcnt lgkmcnt(0)')
        smfma(idx, False, 0); smfma(idx, False, 1)
        sb = VS + (idx&1)*16
        tilemax(sb, 11)
        a('v_max_f32 v11, v11, v12')
        a('v_sub_f32 v10, v12, v11')
        a('v_exp_f32 v10, v10')
        a('v_mov_b32 v12, v11')
        for r in range(16):
            a(f'v_sub_f32 v{sb+r}, v{sb+r}, v11')
            a(f'v_exp_f32 v{sb+r}, v{sb+r}')
        for i in range(8): a(f'v_cvt_pk_bf16_f32 v{VP+i}, v{sb+2*i}, v{sb+2*i+1}')
        for r in range(16): a(f'v_mul_f32 v{VO+r}, v10, v{VO+r}')
        pv(idx, False, 0); pv(idx, False, 1)
    a('s_barrier')
    combine('S')
    a.label('K2_MERGE')
    a.reset_haz(); a.nop(16)
    a('s_waitcnt vmcnt(0)')
    a('s_cmp_eq_u32 s24, 0')
    a('s_cbranch_scc0 K2_ABR')
    for r in range(4): a(f'ds_read_b128 {vr(VS+4*r,4)}, v10 offset:{1024*r}')
    a(f'ds_read_b32 v11, v10 offset:{4096}')
    a('s_waitcnt lgkmcnt(0)')
    a('v_max_f32 v13, v11, v12')
    a('v_sub_f32 v11, v11, v13')
    a('v_sub_f32 v12, v12, v13')
    a('v_exp_f32 v11, v11')
    a('v_exp_f32 v12, v12')
    for r in range(16):
        a(f'v_mul_f32 v{VO+r}, v12, v{VO+r}')
        a(f'v_fmac_f32 v{VO+r}, v11, v{VS+r}')
    finalize(15, 1)
    a('s_waitcnt vmcnt(0)')
    stamp(a, 11)
    if not os.environ.get('HDBG'): stamp_flush(a, 12, 's22')
    rt_end(a, 1, 's22')
    a('s_endpgm')
    a.label('K2_ABR')
    a.reset_haz(); a.nop(4)
    S0, S1 = VS, VS+16
    a(f'v_mfma_f32_32x32x16_bf16 {vr(S0,16)}, {vr(AK,4)}, {vr(AQ,4)}, 0')
    a(f'v_mfma_f32_32x32x16_bf16 {vr(S0,16)}, {vr(AK+4,4)}, {vr(AQ+4,4)}, {vr(S0,16)}')
    a(f'v_mfma_f32_32x32x16_bf16 {vr(S1,16)}, {vr(AK+8,4)}, {vr(AQ,4)}, 0')
    a(f'v_mfma_f32_32x32x16_bf16 {vr(S1,16)}, {vr(AK+12,4)}, {vr(AQ+4,4)}, {vr(S1,16)}')
    a('v_lshrrev_b32 v10, 5, v2')
    a('v_lshlrev_b32 v10, 2, v10')
    a('v_sub_u32 v10, v7, v10')
    a('v_add_u32 v11, s33, v10')
    a('v_mov_b32 v12, 0xff800000')
    for ti, (sb, db) in enumerate(((S0, 11), (S1, 10))):
        for r in range(16):
            kofs = (r & 3) + 8*(r >> 2)
            a(f'v_subrev_u32 v13, {kofs}, v{db}')
            a('v_and_b32 v14, 1, v13')
            a('v_lshl_or_b32 v13, v14, 8, v13')
            a(f'v_cmp_gt_u32 s[{48+2*(r&3)}:{49+2*(r&3)}], 15, v13')
            if r >= 1:
                rr = r - 1
                a(f'v_cndmask_b32 v{sb+rr}, v12, v{sb+rr}, s[{48+2*(rr&3)}:{49+2*(rr&3)}]')
        a(f'v_cndmask_b32 v{sb+15}, v12, v{sb+15}, s[54:55]')
    a(f'v_max3_f32 v13, v{S0}, v{S0+1}, v{S0+2}')
    for r in range(3, 31, 2):
        a(f'v_max3_f32 v13, v13, v{S0+r}, v{S0+r+1}')
    a(f'v_max_f32 v13, v13, v{S0+31}')
    a('v_mov_b32 v14, v13')
    a('v_permlane32_swap_b32 v13, v14')
    a('v_max_f32 v13, v13, v14')
    for r in range(32):
        a(f'v_sub_f32 v{S0+r}, v{S0+r}, v13')
        a(f'v_exp_f32 v{S0+r}, v{S0+r}')
    for i in range(16):
        a(f'v_cvt_pk_bf16_f32 v{S0+i}, v{S0+2*i}, v{S0+2*i+1}')
    a(f'v_mfma_f32_32x32x16_bf16 {vr(VO,16)}, {vr(AV,4)}, {vr(S0,4)}, 0')
    a(f'v_mfma_f32_32x32x16_bf16 {vr(VO,16)}, {vr(AV+4,4)}, {vr(S0+4,4)}, {vr(VO,16)}')
    a(f'v_mfma_f32_32x32x16_bf16 {vr(VO,16)}, {vr(AV+8,4)}, {vr(S0+8,4)}, {vr(VO,16)}')
    a(f'v_mfma_f32_32x32x16_bf16 {vr(VO,16)}, {vr(AV+12,4)}, {vr(S0+12,4)}, {vr(VO,16)}')
    finalize(9, 0)
    a.label('K2_END')
    a('s_endpgm')
    return descriptor(name, 168)

def gen_k3(a):
    name = 'out_kernel'
    header(a, name)
    a('s_cmp_ge_u32 s2, 224')
    a('s_cbranch_scc1 K3_END')
    rt_start(a)
    a('s_load_dwordx2 s[4:5], s[0:1], 72')
    a('s_load_dwordx2 s[6:7], s[0:1], 56')
    a('s_and_b32 s20, s2, 7'); a('s_lshr_b32 s21, s2, 3')
    a('s_mul_i32 s22, s21, 37'); a('s_lshr_b32 s22, s22, 8')
    a('s_mul_i32 s23, s22, 7'); a('s_sub_u32 s23, s21, s23')
    a('s_lshl_b32 s20, s20, 2'); a('s_add_u32 s22, s22, s20')
    a('v_lshrrev_b32 v1, 6, v0')
    a('v_and_b32 v2, 63, v0')
    a('v_readfirstlane_b32 s24, v1')
    a('s_and_b32 s25, s24, 1')
    a('s_lshr_b32 s26, s24, 1')
    a('v_lshlrev_b32 v3, 4, v2')
    a('s_waitcnt lgkmcnt(0)')
    srd(a, 8, 4, 5, WS_BYTES)
    srd(a, 12, 6, 7, 2048*448*2)
    a('s_lshl_b32 s27, s22, 1'); a('s_add_u32 s27, s27, s24'); a('s_lshl_b32 s27, s27, 16'); a(f's_add_u32 s27, s27, {OF_OFF}')
    a('s_lshl_b32 s28, s23, 1'); a('s_add_u32 s28, s28, s24'); a('s_sub_u32 s28, s28, 2'); a('s_lshl_b32 s28, s28, 16'); a(f's_add_u32 s28, s28, {WOF_OFF}')
    a('s_cmp_lt_u32 s24, 2')
    a('s_cselect_b32 s27, s27, s28')
    a('s_lshl_b32 s29, s24, 13')
    def dma_stage(st):
        buf = (st % 4) * 32768
        for half in range(2):
            a(f's_add_u32 s30, s29, {buf + half*4096}')
            a('s_mov_b32 m0, s30')
            a(f's_add_u32 s31, s27, {st*8192 + half*4096}')
            for q in range(4):
                a.vmem(f'buffer_load_dwordx4 v3, s[8:11], s31 offen offset:{q*1024} lds', f'st{st}')
    for st in range(4): dma_stage(st)
    a('s_lshl_b32 s30, s25, 13')
    a('v_add_u32 v4, s30, v3')
    a('s_lshl_b32 s30, s26, 13')
    a('s_add_u32 s30, s30, 16384')
    a('v_add_u32 v5, s30, v3')
    a('v_add_u32 v6, 0x10000, v4')
    a('v_add_u32 v7, 0x10000, v5')
    ACC, FA, FB = 16, 32, 40
    def rd(ks):
        st, k = ks >> 3, ks & 7
        b = st % 4
        off = (b & 1)*32768 + k*1024
        a(f'ds_read_b128 {vr(FA+(ks&1)*4,4)}, {"v5" if b<2 else "v7"} offset:{off}')
        a(f'ds_read_b128 {vr(FB+(ks&1)*4,4)}, {"v4" if b<2 else "v6"} offset:{off}')
    def stage_sync(st):
        a.vm_wait_tag(f'st{st}')
        a('s_barrier')
    a.vm_wait_tag('st0'); a('s_barrier')
    rd(0)
    for ks in range(64):
        if ks + 1 < 64:
            if (ks + 1) % 8 == 0:
                st = (ks+1) >> 3
                a('s_waitcnt lgkmcnt(0)')
                a.vm_wait_tag(f'st{st}')
                a('s_barrier')
                if st + 3 < 8: dma_stage(st + 3)
                rd(ks+1)
            else:
                rd(ks+1)
                a('s_waitcnt lgkmcnt(2)')
        else:
            a('s_waitcnt lgkmcnt(0)')
        c = '0' if ks == 0 else vr(ACC,16)
        a(f'v_mfma_f32_32x32x16_bf16 {vr(ACC,16)}, {vr(FA+(ks&1)*4,4)}, {vr(FB+(ks&1)*4,4)}, {c}')
    a('v_and_b32 v8, 31, v2')
    a('s_lshl_b32 s30, s22, 6'); a('s_lshl_b32 s31, s25, 5'); a('s_add_u32 s30, s30, s31')
    a('v_add_u32 v8, s30, v8')
    a('s_movk_i32 s31, 896')
    a('v_mul_lo_u32 v8, v8, s31')
    a('v_lshrrev_b32 v9, 5, v2')
    a('v_lshl_add_u32 v8, v9, 3, v8')
    a('s_lshl_b32 s30, s23, 7'); a('s_lshl_b32 s31, s26, 6'); a('s_add_u32 s30, s30, s31')
    for i in range(8): a(f'v_cvt_pk_bf16_f32 v{ACC+i}, v{ACC+2*i}, v{ACC+2*i+1}')
    for q in range(4):
        a(f'buffer_store_dwordx2 {vr(ACC+2*q,2)}, v8, s[12:15], s30 offen offset:{16*q}')
    a('s_waitcnt vmcnt(0)')
    rt_end(a, 2, 's24')
    a.label('K3_END')
    a('s_endpgm')
    return descriptor(name, 48)

def main():
    a = Asm()
    hdr = open('cdna_kernels/%s.s.ref' % NAME).read().split('; Override launch')[0]
    out = hdr
    out += f'; @launch kernel=qkv_kernel grid=(256,1,1) block=(512,1,1) lds={K1_STAGE*K1_NBUF}\n'
    out += f'; @launch kernel=attn_kernel grid=(256,1,1) block=(512,1,1) lds={K2_LDS}\n'
    out += f'; @launch kernel=out_kernel grid=(224,1,1) block=(256,1,1) lds={4*32768}\n'
    out += '.amdgcn_target "amdgcn-amd-amdhsa--gfx950"\n.text\n'
    d1 = gen_k1(a); d2 = gen_k2(a); d3 = gen_k3(a)
    out += a.text()
    out += '.section .rodata,"a"\n'
    for d in (d1, d2, d3):
        out += '.p2align 6\n' + d
    open('cdna_kernels/%s.s' % NAME, 'w').write(out)
main()
```

```python
import sys, math
sys.path.insert(0, 'gen')
from asmlib import Asm

NAME = 'gated_mix__sliding_local_dilated__mha_block__prompt'
MB = 1 << 20
QF_OFF, KF_OFF, VF_OFF, OF_OFF, WOF_OFF, G_OFF = 0, 4*MB, 8*MB, 12*MB, 16*MB, 17*MB
WS_BYTES = 18*MB
import struct
def f32bits(x): return struct.unpack('<I', struct.pack('<f', x))[0]
CSCALE = f32bits((28 ** -0.5) * math.log2(math.e))
NLOG2E = f32bits(-math.log2(math.e))

def vr(b, n): return f'v[{b}:{b+n-1}]'

def srd(a, s, lo, hi, size):
    a(f's_mov_b32 s{s}, s{lo}')
    a(f's_and_b32 s{s+1}, s{hi}, 0xffff')
    a(f's_mov_b32 s{s+2}, {size}')
    a(f's_mov_b32 s{s+3}, 0x20000')

import os
STAMP = int(os.environ.get('STAMP', '0'))
STFLAG = os.environ.get('STFLAG', ' sc1')
def stamp(a, i):
    if not STAMP: return
    a('s_memtime s[90:91]')
    a('s_waitcnt lgkmcnt(0)')
    a(f's_mov_b32 s{70+i}, s90')
def stamp_flush(a, n, wavereg):
    if not STAMP: return
    a('s_load_dwordx2 s[92:93], s[0:1], 64')
    a('s_waitcnt lgkmcnt(0)')
    if os.environ.get('HDBG'):
        a('s_add_u32 s92, s92, 1024')
        a('s_addc_u32 s93, s93, 0')
    a(f's_cmp_lg_u32 s2, {STAMP-1}')
    a('s_cbranch_scc1 NOSTAMP_%d' % len(a.lines))
    lab = 'NOSTAMP_%d' % (len(a.lines)-1)
    a(f's_cmp_lg_u32 {wavereg}, 0')
    a('s_cbranch_scc1 ' + lab)
    a('v_mov_b32 v1, 0')
    for i in range(n):
        a(f's_sub_u32 s94, s{70+i}, s70')
        a('v_mov_b32 v2, s94')
        a(f'global_store_dword v1, v2, s[92:93] offset:{4*i}')
    a('s_waitcnt vmcnt(0)')
    a.label(lab)

def rt_start(a):
    if not STAMP: return
    a('s_memrealtime s[86:87]')
    a('s_waitcnt lgkmcnt(0)')
def rt_end(a, kidx, wavereg):
    if not STAMP: return
    a('s_memrealtime s[88:89]')
    a('s_load_dwordx2 s[92:93], s[0:1], 72')
    a('s_load_dwordx2 s[84:85], s[0:1], 64')
    a('s_waitcnt lgkmcnt(0)')
    lab = 'NORT_%d' % len(a.lines)
    a(f's_cmp_lg_u32 {wavereg}, 0')
    a('s_cbranch_scc1 ' + lab)
    a('s_lshl_b32 s94, s2, 3')
    a(f's_add_u32 s94, s94, {32*MB + kidx*4096}')
    a('v_mov_b32 v1, s94')
    a('v_mov_b32 v2, s86')
    a('v_mov_b32 v3, s88')
    a('global_store_dwordx2 v1, v[2:3], s[92:93]')
    if os.environ.get('HDBG'):
        a('s_cmp_lg_u32 s2, 0')
        a('s_cbranch_scc1 ' + lab)
        a(f's_add_u32 s84, s84, {512*(2-kidx)}')
        a('s_addc_u32 s85, s85, 0')
        a('v_mov_b32 v1, 0')
        a(f'global_store_dwordx2 v1, v[2:3], s[84:85] offset:{40+8*kidx}')
    a('s_waitcnt vmcnt(0)')
    a.label(lab)

def header(a, name):
    a.raw('.p2align 8')
    a.raw(f'.globl {name}')
    a.raw(f'.type {name},@function')
    a.label(name)
    a.reset_haz(); a.vm = []

def descriptor(name, vgpr, sgpr=96):
    acc = (vgpr + 3) // 4 * 4
    return f""".amdhsa_kernel {name}
  .amdhsa_next_free_vgpr {vgpr}
  .amdhsa_next_free_sgpr {sgpr}
  .amdhsa_accum_offset {acc}
  .amdhsa_group_segment_fixed_size 0
  .amdhsa_kernarg_size 80
  .amdhsa_user_sgpr_count 2
  .amdhsa_user_sgpr_kernarg_segment_ptr 1
  .amdhsa_system_sgpr_workgroup_id_x 1
.end_amdhsa_kernel
"""

K1_STAGE = 40960
K1_NBUF = 3
NLD = int(os.environ.get('NLD', '4'))
def gen_k1(a):
    name = 'qkv_kernel'
    header(a, name)
    a('s_cmp_ge_u32 s2, 256')
    a('s_cbranch_scc1 K1_END')
    rt_start(a)
    stamp(a, 0)
    a('s_load_dwordx4 s[4:7], s[0:1], 0')
    a('s_load_dwordx2 s[20:21], s[0:1], 16')
    a('s_load_dwordx4 s[24:27], s[0:1], 32')
    a('s_load_dwordx2 s[28:29], s[0:1], 48')
    a('s_load_dwordx2 s[30:31], s[0:1], 72')
    a('s_and_b32 s51, s2, 7')
    a('s_lshr_b32 s52, s2, 3')
    a('s_and_b32 s53, s51, 1'); a('s_lshl_b32 s53, s53, 3'); a('s_lshr_b32 s54, s52, 2'); a('s_add_u32 s44, s53, s54')
    a('s_lshr_b32 s53, s51, 1'); a('s_lshl_b32 s53, s53, 2'); a('s_and_b32 s54, s52, 3'); a('s_add_u32 s45, s53, s54')
    a('s_lshr_b32 s46, s45, 3')
    a('s_and_b32 s47, s45, 7')
    a('v_lshrrev_b32 v1, 6, v0')
    a('v_and_b32 v2, 63, v0')
    a('v_readfirstlane_b32 s59, v1')
    a('s_and_b32 s48, s59, 3')
    a('s_and_b32 s49, s48, 1')
    a('s_lshr_b32 s50, s48, 1')
    a('s_cmp_lt_u32 s59, 4')
    a('s_cbranch_scc1 K1_COMPUTE')
    a('s_sub_u32 s48, s59, 4')
    a('v_lshrrev_b32 v11, 3, v2')
    a('s_lshl_b32 s51, s44, 7')
    a('s_lshl_b32 s52, s48, 3')
    a('s_add_u32 s51, s51, s52')
    a('v_add_u32 v11, s51, v11')
    a('s_movk_i32 s52, 896')
    a('v_mul_lo_u32 v12, v11, s52')
    a('v_lshrrev_b32 v11, 4, v2')
    a('s_lshl_b32 s52, s48, 2')
    a('v_add_u32 v11, s52, v11')
    a('v_and_b32 v11, 7, v11')
    a('v_and_b32 v13, 7, v2')
    a('v_xor_b32 v11, v11, v13')
    a('v_lshl_add_u32 v12, v11, 4, v12')
    a('s_mul_i32 s52, s47, 112')
    for j in range(24//NLD):
        r = 14 + j
        a(f's_lshl_b32 s51, s48, 6')
        a(f's_add_u32 s51, s51, {64*NLD*j}')
        a(f'v_add_u32 v44, s51, v2')
        a('s_movk_i32 s53, 3121')
        a('v_mul_lo_u32 v45, v44, s53')
        a('v_lshrrev_b32 v45, 16, v45')
        a('v_mul_u32_u24 v46, 21, v45')
        a('v_sub_u32 v46, v44, v46')
        a('v_mul_u32_u24 v47, 37, v46')
        a('v_lshrrev_b32 v47, 8, v47')
        a('v_and_b32 v48, 0xfffffff0, v45')
        a('v_and_b32 v49, 3, v45')
        a('v_lshl_or_b32 v48, v49, 2, v48')
        a('v_bfe_u32 v49, v45, 2, 2')
        a('v_or_b32 v48, v48, v49')
        a('s_movk_i32 s53, 2688')
        a('v_mul_lo_u32 v48, v48, s53')
        a('s_movk_i32 s53, 784')
        a('v_mul_lo_u32 v47, v47, s53')
        a(f'v_lshl_add_u32 v{r}, v46, 4, v48')
        a(f'v_add3_u32 v{r}, v{r}, v47, s52')
    a('s_lshl_b32 s55, s48, 10')
    a('s_waitcnt lgkmcnt(0)')
    srd(a, 8, 4, 5, 2048*448*2)
    a('s_cmp_eq_u32 s46, 0')
    a('s_cselect_b32 s12, s6, s24')
    a('s_cselect_b32 s13, s7, s25')
    a('s_and_b32 s13, s13, 0xffff')
    a(f's_mov_b32 s14, {448*1344*2}')
    a('s_mov_b32 s15, 0x20000')
    def dma_stage(st):
        buf = (st % K1_NBUF) * K1_STAGE
        for j in range(16//NLD):
            a(f's_add_u32 s51, s55, {buf + j*1024*NLD}')
            a('s_mov_b32 m0, s51')
            a(f's_mov_b32 s52, {st*128 + j*8*NLD*896}')
            a.vmem('buffer_load_dwordx4 v12, s[8:11], s52 offen lds', f'st{st}')
        for j in range(24//NLD):
            a(f's_add_u32 s51, s55, {buf + 16384 + j*1024*NLD}')
            a('s_mov_b32 m0, s51')
            a(f's_mov_b32 s52, {st*64*2688}')
            a.vmem(f'buffer_load_dwordx4 v{14+j}, s[12:15], s52 offen lds', f'st{st}')
    NST = 7
    for st in range(K1_NBUF): dma_stage(st)
    for st in range(NST):
        a.vm_wait_tag(f'st{st}')
        a('s_barrier')
        if st >= 1 and st + 2 < NST: dma_stage(st + 2)
    a('s_endpgm')
    a.label('K1_COMPUTE')
    a.reset_haz(); a.vm = []
    a('s_waitcnt lgkmcnt(0)')
    stamp(a, 12)
    srd(a, 8, 4, 5, 2048*448*2)
    srd(a, 16, 30, 31, WS_BYTES)
    srd(a, 40, 28, 29, 448*2)
    a('v_and_b32 v3, 31, v2')
    a('v_lshrrev_b32 v4, 5, v2')
    a('s_lshl_b32 s51, s2, 3')
    a('s_lshl_b32 s52, s48, 1')
    a('s_add_u32 s51, s51, s52')
    a('v_add_u32 v5, s51, v4')
    a('s_movk_i32 s52, 896')
    a('v_mul_lo_u32 v6, v5, s52')
    a('v_lshlrev_b32 v7, 5, v3')
    a('v_add_u32 v6, v6, v7')
    a('v_mov_b32 v8, 0x40000000')
    a('v_cmp_gt_u32 vcc, 28, v3')
    a('v_cndmask_b32 v6, v8, v6, vcc')
    a('v_cndmask_b32 v7, v8, v7, vcc')
    a.vmem('buffer_load_dwordx4 v[20:23], v6, s[8:11], 0 offen', 'gate')
    a.vmem('buffer_load_dwordx4 v[24:27], v6, s[8:11], 0 offen offset:16', 'gate')
    a.vmem('buffer_load_dwordx4 v[28:31], v7, s[40:43], 0 offen', 'gate')
    a.vmem('buffer_load_dwordx4 v[32:35], v7, s[40:43], 0 offen offset:16', 'gate')
    a('s_lshl_b32 s51, s2, 2')
    a('s_add_u32 s51, s51, s48')
    a('s_and_b32 s52, s51, 63')
    a('s_lshr_b32 s53, s51, 6')
    a('s_lshr_b32 s54, s52, 5')
    a('s_cmp_eq_u32 s54, 0')
    a('s_cselect_b32 s32, s20, s26')
    a('s_cselect_b32 s33, s21, s27')
    a('s_and_b32 s33, s33, 0xffff')
    a(f's_mov_b32 s34, {448*448*2}')
    a('s_mov_b32 s35, 0x20000')
    a('s_lshr_b32 s55, s52, 1'); a('s_and_b32 s55, s55, 15')
    a('s_and_b32 s56, s52, 1')
    a('s_mul_i32 s55, s55, 28')
    a('s_lshl_b32 s57, s56, 4')
    a('s_add_u32 s55, s55, s57')
    a('v_lshlrev_b32 v9, 2, v4')
    a('v_add_u32 v9, s55, v9')
    a('s_movk_i32 s52, 896')
    a('v_mul_lo_u32 v9, v9, s52')
    a('s_lshl_b32 s53, s53, 6')
    a('v_lshlrev_b32 v10, 1, v3')
    a('v_add3_u32 v9, v9, v10, s53')
    a(f'v_add_u32 v10, {8*896}, v9')
    a('v_and_b32 v11, s56, v4')
    a('v_cmp_eq_u32 vcc, 0, v11')
    a('v_cndmask_b32 v10, v8, v10, vcc')
    a('s_cmp_ge_u32 s2, 224')
    a('s_cselect_b32 s58, 0x40000000, 0')
    for j in range(4):
        a.vmem(f'buffer_load_ushort v{36+j}, v9, s[32:35], s58 offen offset:{896*j}', 'wo')
    for j in range(4):
        a.vmem(f'buffer_load_ushort v{40+j}, v10, s[32:35], s58 offen offset:{896*j}', 'wo')
    stamp(a, 13)
    ACC = 64
    XF = 18
    WF = 34
    for i in range(96):
        a(f'v_mov_b32 v{ACC+i}, 0')
    a.vm_wait_tag('gate')
    a('v_mov_b32 v44, 0')
    for i in range(8):
        xs, gs = 20 + i, 28 + i
        a(f'v_lshlrev_b32 v45, 16, v{xs}')
        a(f'v_and_b32 v46, 0xffff0000, v{xs}')
        a(f'v_lshlrev_b32 v47, 16, v{gs}')
        a(f'v_and_b32 v48, 0xffff0000, v{gs}')
        a('v_mul_f32 v45, v45, v47')
        a('v_mul_f32 v46, v46, v48')
        a('v_cvt_pk_bf16_f32 v45, v45, v46')
        a('v_lshlrev_b32 v46, 16, v45')
        a('v_and_b32 v45, 0xffff0000, v45')
        a('v_add_f32 v44, v44, v46')
        a('v_add_f32 v44, v44, v45')
    for off in (0x041F, 0x081F, 0x101F, 0x201F, 0x401F):
        a(f'ds_swizzle_b32 v45, v44 offset:{off}')
        a('s_waitcnt lgkmcnt(0)')
        a('v_add_f32 v44, v44, v45')
    a('v_cvt_pk_bf16_f32 v44, v44, v44')
    a('v_lshlrev_b32 v44, 16, v44')
    a(f'v_mul_f32 v44, {NLOG2E}, v44')
    a('v_exp_f32 v44, v44')
    a('v_add_f32 v44, 1.0, v44')
    a('v_rcp_f32 v44, v44')
    a('v_cvt_pk_bf16_f32 v44, v44, v44')
    a('v_lshlrev_b32 v44, 16, v44')
    a('v_lshlrev_b32 v45, 2, v5')
    a(f'v_add_u32 v45, {G_OFF}, v45')
    a('v_cmp_eq_u32 vcc, 0, v3')
    a('v_cndmask_b32 v45, v8, v45, vcc')
    a.vmem('buffer_store_dword v44, v45, s[16:19], 0 offen', 'gst')
    a.vm_wait_tag('wo')
    for j in range(4):
        a(f'v_lshl_or_b32 v{44+j}, v{37+2*j}, 16, v{36+2*j}')
    a('s_lshl_b32 s51, s2, 12')
    a(f's_add_u32 s51, s51, {WOF_OFF}')
    a('s_add_u32 s51, s51, s58')
    a('v_lshlrev_b32 v48, 4, v0')
    a.vmem('buffer_store_dwordx4 v[44:47], v48, s[16:19], s51 offen', 'gst')
    a('v_and_b32 v3, 31, v2')
    a('v_lshrrev_b32 v4, 5, v2')
    a('v_bfe_u32 v5, v3, 1, 3')
    a('s_lshl_b32 s51, s49, 13')
    a('v_lshlrev_b32 v6, 7, v3')
    a('v_add_u32 v6, s51, v6')
    for s in range(4):
        a(f'v_add_u32 v7, {2*s}, v4')
        a('v_xor_b32 v7, v7, v5')
        a(f'v_lshl_add_u32 v{8+s}, v7, 4, v6')
    a('v_bfe_u32 v5, v2, 2, 2')
    a('v_lshlrev_b32 v5, 2, v5')
    a('v_lshl_add_u32 v5, v4, 1, v5')
    a('v_mul_u32_u24 v5, 336, v5')
    a('v_bfe_u32 v6, v2, 4, 1')
    a('v_lshl_add_u32 v5, v6, 5, v5')
    a('v_and_b32 v6, 3, v2')
    a('v_lshl_add_u32 v5, v6, 3, v5')
    a('s_mul_i32 s51, s50, 56')
    a(f's_add_u32 s51, s51, 16384')
    a('v_add_u32 v12, s51, v5')
    def acc(which, tt): return ACC + (which*2 + tt)*16
    def rd_list(s, pb):
        l = []
        for tt in range(2):
            l.append(f'ds_read_b128 {vr(XF+pb*8+tt*4,4)}, v{13+s} offset:{tt*4096}')
        for which in range(3):
            for u in range(2):
                l.append(f'ds_read_b64_tr_b16 {vr(WF+pb*12+which*4+u*2,2)}, v17 offset:{s*5376+u*336+which*112}')
        return l
    def set_stage_addr(st):
        buf = (st % K1_NBUF) * K1_STAGE
        for s in range(4):
            a(f'v_add_u32 v{13+s}, {buf}, v{8+s}')
        a(f'v_add_u32 v17, {buf}, v12')
    def mfma_list(pb):
        l = []
        for which in range(3):
            for tt in range(2):
                xf = vr(XF+pb*8+tt*4, 4); wf = vr(WF+pb*12+which*4, 4); d = vr(acc(which, tt), 16)
                if which < 2: l.append(f'v_mfma_f32_32x32x16_bf16 {d}, {wf}, {xf}, {d}')
                else:         l.append(f'v_mfma_f32_32x32x16_bf16 {d}, {xf}, {wf}, {d}')
        return l
    set_stage_addr(0)
    stamp(a, 2)
    a('s_barrier')
    stamp(a, 3)
    for t in rd_list(0, 0): a(t)
    step = 0
    for st in range(NST):
        for s in range(4):
            pb = step & 1
            last = (st == NST-1 and s == 3)
            a('s_waitcnt lgkmcnt(0)')
            rl = []
            if s < 3:
                rl = rd_list(s+1, pb ^ 1)
            elif not last:
                a('s_barrier')
                stamp(a, 4+st)
                set_stage_addr(st+1)
                rl = rd_list(0, pb ^ 1)
            ml = mfma_list(pb)
            for i, m in enumerate(ml):
                a(m)
                for t in rl[2*i:2*i+2]: a(t)
            step += 1
    stamp(a, 10)
    a('s_lshl_b32 s51, s47, 1'); a('s_add_u32 s51, s51, s50')
    a('s_lshl_b32 s52, s46, 4'); a('s_add_u32 s51, s51, s52')
    a('s_lshl_b32 s51, s51, 17')
    a('s_lshl_b32 s52, s44, 2'); a('s_lshl_b32 s53, s49, 1'); a('s_add_u32 s52, s52, s53')
    a('s_lshl_b32 s52, s52, 11')
    a('s_add_u32 s51, s51, s52')
    a('v_lshlrev_b32 v3, 4, v2')
    a(f's_mov_b32 s56, {CSCALE}')
    a('v_cmp_gt_u32 s[60:61], 32, v2')
    a('v_and_b32 v4, 31, v2')
    a('v_cmp_eq_u32 s[62:63], 28, v4')
    a('v_mov_b32 v5, 0')
    a('v_mov_b32 v6, 0x3f803f80')
    for which in range(3):
        a(f's_add_u32 s52, s51, {which*4*MB}')
        for tt in range(2):
            b = acc(which, tt)
            if which == 0:
                for i in range(16): a(f'v_mul_f32 v{b+i}, s56, v{b+i}')
            for i in range(8):
                a(f'v_cvt_pk_bf16_f32 v{b+i}, v{b+2*i}, v{b+2*i+1}')
            if which < 2:
                a(f'v_cndmask_b32 v{b+6}, v5, v{b+6}, s[60:61]')
                a(f'v_cndmask_b32 v{b+7}, v5, v{b+7}, s[60:61]')
            else:
                for i in range(8): a(f'v_cndmask_b32 v{b+i}, v{b+i}, v6, s[62:63]')
            a.vmem(f'buffer_store_dwordx4 {vr(b,4)}, v3, s[16:19], s52 offen offset:{tt*2048}{STFLAG}', 'out')
            a.vmem(f'buffer_store_dwordx4 {vr(b+4,4)}, v3, s[16:19], s52 offen offset:{tt*2048+1024}{STFLAG}', 'out')
    if STAMP: a('s_waitcnt vmcnt(0)')
    stamp(a, 11)
    stamp_flush(a, 10 if os.environ.get('HDBG') else 15, 's59')
    rt_end(a, 0, 's59')
    a.label('K1_END')
    a('s_endpgm')
    return descriptor(name, 160)

K2_BUF = 32768
K2_COMB = 4*K2_BUF
K2_FLAG = K2_COMB + 4*5*1024
K2_LDS = K2_FLAG + 64
VQ, VNEG, VS, VP, VO, VK, VV = 16, 24, 40, 72, 80, 96, 112
AQ, AK, AV = 128, 136, 152
def gen_k2(a):
    name = 'attn_kernel'
    header(a, name)
    a('s_cmp_ge_u32 s2, 256')
    a('s_cbranch_scc1 K2_END')
    rt_start(a)
    stamp(a, 0)
    a('s_load_dwordx2 s[4:5], s[0:1], 72')
    a('s_and_b32 s20, s2, 15')
    a('s_lshr_b32 s21, s2, 4')
    a('v_lshrrev_b32 v1, 6, v0')
    a('v_and_b32 v2, 63, v0')
    a('v_readfirstlane_b32 s22, v1')
    a('s_and_b32 s23, s22, 3')
    a('s_lshr_b32 s24, s22, 2')
    a('s_lshl_b32 s25, s21, 2'); a('s_add_u32 s25, s25, s23')
    a('v_lshlrev_b32 v3, 4, v2')
    a('s_lshl_b32 s26, s22, 11')
    a('v_add_u32 v4, s26, v3')
    a('s_lshl_b32 s27, s24, 13')
    a('v_add_u32 v5, s27, v3')
    a('v_add_u32 v6, 0x10000, v5')
    a('s_lshl_b32 s28, s20, 17')
    a('s_add_u32 s29, s28, 0x200000')
    a('s_lshl_b32 s30, s25, 11')
    a('v_and_b32 v7, 31, v2')
    a('v_lshlrev_b32 v8, 2, v7')
    a('v_mov_b32 v10, 0')
    a(f'v_mov_b32 v11, {K2_FLAG}')
    a('ds_write_b32 v11, v10')
    a('s_waitcnt lgkmcnt(0)')
    srd(a, 8, 4, 5, WS_BYTES)
    def dma_stage(st):
        buf = (st % 4) * K2_BUF
        for reg, loff in ((KF_OFF, 0), (VF_OFF, 16384)):
            a(f's_add_u32 s36, s26, {buf + loff}')
            a('s_mov_b32 m0, s36')
            a(f's_add_u32 s37, s29, {reg + st*16384}')
            a.vmem('buffer_load_dwordx4 v4, s[8:11], s37 offen lds', f'st{st}')
            a.vmem('buffer_load_dwordx4 v4, s[8:11], s37 offen offset:1024 lds', f'st{st}')
    a('s_add_u32 s31, s29, s30')
    a.vmem(f'buffer_load_dwordx4 {vr(VQ,4)}, v3, s[8:11], s31 offen', 'st0')
    a.vmem(f'buffer_load_dwordx4 {vr(VQ+4,4)}, v3, s[8:11], s31 offen offset:1024', 'st0')
    dma_stage(0)
    a('s_lshl_b32 s31, s25, 7')
    a(f's_add_u32 s31, s31, {G_OFF}')
    a.vmem('buffer_load_dword v9, v8, s[8:11], s31 offen', 'st1')
    dma_stage(1)
    a('s_add_u32 s31, s28, s30')
    a('s_sub_u32 s32, s31, 2048')
    a('s_cmp_eq_u32 s25, 0')
    a('s_cselect_b32 s32, s31, s32')
    a('s_cselect_b32 s33, 1000, 32')
    a('s_cmp_eq_u32 s24, 0')
    a('s_cselect_b32 s31, 0x40000000, s31')
    a('s_cselect_b32 s32, 0x40000000, s32')
    a(f's_add_u32 s34, s32, {KF_OFF}')
    a(f's_add_u32 s35, s31, {KF_OFF}')
    a(f's_add_u32 s44, s32, {VF_OFF}')
    a(f's_add_u32 s45, s31, {VF_OFF}')
    deferred = [
        lambda: dma_stage(2),
        lambda: dma_stage(3),
        lambda: (a.vmem(f'buffer_load_dwordx4 {vr(AQ,4)}, v3, s[8:11], s31 offen', 'a'),
                 a.vmem(f'buffer_load_dwordx4 {vr(AQ+4,4)}, v3, s[8:11], s31 offen offset:1024', 'a'),
                 a.vmem(f'buffer_load_dwordx4 {vr(AK,4)}, v3, s[8:11], s34 offen', 'a'),
                 a.vmem(f'buffer_load_dwordx4 {vr(AK+4,4)}, v3, s[8:11], s34 offen offset:1024', 'a')),
        lambda: (a.vmem(f'buffer_load_dwordx4 {vr(AK+8,4)}, v3, s[8:11], s35 offen', 'a'),
                 a.vmem(f'buffer_load_dwordx4 {vr(AK+12,4)}, v3, s[8:11], s35 offen offset:1024', 'a'),
                 a.vmem(f'buffer_load_dwordx4 {vr(AV,4)}, v3, s[8:11], s44 offen', 'a')),
        lambda: (a.vmem(f'buffer_load_dwordx4 {vr(AV+4,4)}, v3, s[8:11], s44 offen offset:1024', 'a'),
                 a.vmem(f'buffer_load_dwordx4 {vr(AV+8,4)}, v3, s[8:11], s45 offen', 'a'),
                 a.vmem(f'buffer_load_dwordx4 {vr(AV+12,4)}, v3, s[8:11], s45 offen offset:1024', 'a')),
    ]

    def finalize(gate_expr_reg, br):
        a(f'v_mov_b32 v13, v{VO+12}')
        a(f'v_mov_b32 v14, v{VO+12}')
        a('v_permlane32_swap_b32 v13, v14')
        a('v_rcp_f32 v14, v14')
        a(f'v_mul_f32 v14, v14, v{gate_expr_reg}')
        for r in range(16): a(f'v_mul_f32 v{VO+r}, v14, v{VO+r}')
        for i in range(8): a(f'v_cvt_pk_bf16_f32 v{VO+i}, v{VO+2*i}, v{VO+2*i+1}')
        a('v_cmp_gt_u32 vcc, 32, v2')
        a('v_mov_b32 v13, 0')
        a(f'v_cndmask_b32 v{VO+6}, v13, v{VO+6}, vcc')
        a(f'v_cndmask_b32 v{VO+7}, v13, v{VO+7}, vcc')
        a('s_lshl_b32 s38, s25, 16')
        a('s_lshl_b32 s39, s20, 11')
        a('s_add_u32 s38, s38, s39')
        a(f's_add_u32 s38, s38, {OF_OFF + br*32768}')
        a(f'buffer_store_dwordx4 {vr(VO,4)}, v3, s[8:11], s38 offen{STFLAG}')
        a(f'buffer_store_dwordx4 {vr(VO+4,4)}, v3, s[8:11], s38 offen offset:1024{STFLAG}')

    def lds_tile(idx, isv, t):
        st, i = idx >> 2, idx & 3
        b = st % 4
        base = 'v5' if b < 2 else 'v6'
        off = (b & 1) * K2_BUF + (16384 if isv else 0) + i*2048 + t*1024
        return base, off
    def rdK(idx):
        for t in range(2):
            base, off = lds_tile(idx, False, t)
            a(f'ds_read_b128 {vr(VK+(idx&1)*8+t*4,4)}, {base} offset:{off}')
    def rdV(idx):
        for t in range(2):
            base, off = lds_tile(idx, True, t)
            a(f'ds_read_b128 {vr(VV+(idx&1)*8+t*4,4)}, {base} offset:{off}')
    def stage_sync(st):
        a.vm_wait_tag(f'st{st}')
        a('s_barrier')
        if st >= 2 and st + 2 < 8: dma_stage(st + 2)
    NT = 32
    def smfma(idx, cneg, part):
        d = vr(VS+(idx&1)*16, 16); k = VK+(idx&1)*8
        c = vr(VNEG,16) if cneg else '0'
        if part == 0: a(f'v_mfma_f32_32x32x16_bf16 {d}, {vr(k,4)}, {vr(VQ,4)}, {c}')
        else:         a(f'v_mfma_f32_32x32x16_bf16 {d}, {vr(k+4,4)}, {vr(VQ+4,4)}, {d}')
    def pv(idx, first, part):
        v = VV+(idx&1)*8
        c = '0' if first else vr(VO,16)
        if part == 0: a(f'v_mfma_f32_32x32x16_bf16 {vr(VO,16)}, {vr(v,4)}, {vr(VP,4)}, {c}')
        else:         a(f'v_mfma_f32_32x32x16_bf16 {vr(VO,16)}, {vr(v+4,4)}, {vr(VP+4,4)}, {vr(VO,16)}')
    def tilemax(sb, dst):
        a(f'v_max3_f32 v{dst}, v{sb}, v{sb+1}, v{sb+2}')
        for r in range(3, 15, 2):
            a(f'v_max3_f32 v{dst}, v{dst}, v{sb+r}, v{sb+r+1}')
        a(f'v_max_f32 v{dst}, v{dst}, v{sb+15}')
        a(f'v_mov_b32 v13, v{dst}')
        a(f'v_permlane32_swap_b32 v{dst}, v13')
        a(f'v_max_f32 v{dst}, v{dst}, v13')
    stamp(a, 1)
    stage_sync(0)
    stamp(a, 2)
    rdK(0)
    rdK(1)
    a('s_waitcnt lgkmcnt(2)')
    d = vr(VS+16, 16)
    a(f'v_mfma_f32_32x32x16_bf16 {d}, {vr(VK,4)}, {vr(VQ,4)}, 0')
    a(f'v_mfma_f32_32x32x16_bf16 {d}, {vr(VK+4,4)}, {vr(VQ+4,4)}, {d}')
    rdV(0)
    tilemax(VS+16, 12)
    for r in range(16): a(f'v_sub_f32 v{VNEG+r}, 0, v12')
    smfma(0, True, 0); smfma(0, True, 1)
    def quarter(sb, q):
        for i in (2*q, 2*q+1):
            a(f'v_exp_f32 v{sb+2*i}, v{sb+2*i}')
            a(f'v_exp_f32 v{sb+2*i+1}, v{sb+2*i+1}')
        for i in (2*q, 2*q+1):
            a(f'v_cvt_pk_bf16_f32 v{VP+i}, v{sb+2*i}, v{sb+2*i+1}')
    for idx in range(NT):
        sb = VS + (idx&1)*16
        n_out = 2
        if idx + 1 < NT:
            a('s_waitcnt lgkmcnt(2)')
            smfma(idx+1, True, 0)
        if idx + 2 < NT:
            if (idx + 2) % 4 == 0:
                stage_sync((idx+2) >> 2)
                stamp(a, 2 + ((idx+2) >> 2))
            rdK(idx+2); n_out += 2
        quarter(sb, 0)
        if idx > 0: pv(idx-1, False, 1)
        if idx + 1 < NT:
            rdV(idx+1); n_out += 2
        quarter(sb, 1)
        if idx + 1 < NT: smfma(idx+1, True, 1)
        if idx < len(deferred): deferred[idx]()
        quarter(sb, 2)
        a(f's_waitcnt lgkmcnt({n_out-2})')
        pv(idx, idx == 0, 0)
        quarter(sb, 3)
    pv(NT-1, False, 1)
    stamp(a, 10)
    a('v_sub_f32 v15, 1.0, v9')
    a(f'v_add_f32 v13, |v{VO}|, |v{VO+1}|')
    for r in range(2, 16): a(f'v_add_f32 v13, v13, |v{VO+r}|')
    a('v_mov_b32 v14, 0x7b800000')
    a('v_cmp_nlt_f32 vcc, v13, v14')
    a('s_cbranch_vccz K2_OKFAST')
    a('v_mov_b32 v10, 1')
    a(f'v_mov_b32 v11, {K2_FLAG}')
    a('ds_write_b32 v11, v10')
    a.label('K2_OKFAST')
    def combine(tag):
        a('s_mul_i32 s38, s23, %d' % (5*1024))
        a(f's_add_u32 s38, s38, {K2_COMB}')
        a('v_add_u32 v10, s38, v3')
        a('s_cmp_eq_u32 s24, 0')
        a(f's_cbranch_scc1 K2_C1_{tag}')
        for r in range(4): a(f'ds_write_b128 v10, {vr(VO+4*r,4)} offset:{1024*r}')
        a(f'ds_write_b32 v10, v12 offset:{4096}')
        a.label(f'K2_C1_{tag}')
        a('s_waitcnt lgkmcnt(0)')
        a('s_barrier')
    combine('F')
    a(f'v_mov_b32 v11, {K2_FLAG}')
    a('ds_read_b32 v11, v11')
    a('s_waitcnt lgkmcnt(0)')
    a('v_readfirstlane_b32 s38, v11')
    a('s_cmp_eq_u32 s38, 0')
    a('s_cbranch_scc1 K2_MERGE')
    a('s_barrier')
    a.vm_wait_all()
    for st in range(4): dma_stage(st)
    a('v_mov_b32 v12, 0xff7fffff')
    for r in range(16): a(f'v_mov_b32 v{VO+r}, 0')
    for idx in range(NT):
        if idx % 4 == 0: stage_sync(idx >> 2)
        rdK(idx); rdV(idx)
        a('s_waitcnt lgkmcnt(0)')
        smfma(idx, False, 0); smfma(idx, False, 1)
        sb = VS + (idx&1)*16
        tilemax(sb, 11)
        a('v_max_f32 v11, v11, v12')
        a('v_sub_f32 v10, v12, v11')
        a('v_exp_f32 v10, v10')
        a('v_mov_b32 v12, v11')
        for r in range(16):
            a(f'v_sub_f32 v{sb+r}, v{sb+r}, v11')
            a(f'v_exp_f32 v{sb+r}, v{sb+r}')
        for i in range(8): a(f'v_cvt_pk_bf16_f32 v{VP+i}, v{sb+2*i}, v{sb+2*i+1}')
        for r in range(16): a(f'v_mul_f32 v{VO+r}, v10, v{VO+r}')
        pv(idx, False, 0); pv(idx, False, 1)
    a('s_barrier')
    combine('S')
    a.label('K2_MERGE')
    a.reset_haz(); a.nop(16)
    a('s_waitcnt vmcnt(0)')
    a('s_cmp_eq_u32 s24, 0')
    a('s_cbranch_scc0 K2_ABR')
    for r in range(4): a(f'ds_read_b128 {vr(VS+4*r,4)}, v10 offset:{1024*r}')
    a(f'ds_read_b32 v11, v10 offset:{4096}')
    a('s_waitcnt lgkmcnt(0)')
    a('v_max_f32 v13, v11, v12')
    a('v_sub_f32 v11, v11, v13')
    a('v_sub_f32 v12, v12, v13')
    a('v_exp_f32 v11, v11')
    a('v_exp_f32 v12, v12')
    for r in range(16):
        a(f'v_mul_f32 v{VO+r}, v12, v{VO+r}')
        a(f'v_fmac_f32 v{VO+r}, v11, v{VS+r}')
    finalize(15, 1)
    a('s_waitcnt vmcnt(0)')
    stamp(a, 11)
    if not os.environ.get('HDBG'): stamp_flush(a, 12, 's22')
    rt_end(a, 1, 's22')
    a('s_endpgm')
    a.label('K2_ABR')
    a.reset_haz(); a.nop(4)
    S0, S1 = VS, VS+16
    a(f'v_mfma_f32_32x32x16_bf16 {vr(S0,16)}, {vr(AK,4)}, {vr(AQ,4)}, 0')
    a(f'v_mfma_f32_32x32x16_bf16 {vr(S0,16)}, {vr(AK+4,4)}, {vr(AQ+4,4)}, {vr(S0,16)}')
    a(f'v_mfma_f32_32x32x16_bf16 {vr(S1,16)}, {vr(AK+8,4)}, {vr(AQ,4)}, 0')
    a(f'v_mfma_f32_32x32x16_bf16 {vr(S1,16)}, {vr(AK+12,4)}, {vr(AQ+4,4)}, {vr(S1,16)}')
    a('v_lshrrev_b32 v10, 5, v2')
    a('v_lshlrev_b32 v10, 2, v10')
    a('v_sub_u32 v10, v7, v10')
    a('v_add_u32 v11, s33, v10')
    a('v_mov_b32 v12, 0xff800000')
    for ti, (sb, db) in enumerate(((S0, 11), (S1, 10))):
        for r in range(16):
            kofs = (r & 3) + 8*(r >> 2)
            a(f'v_subrev_u32 v13, {kofs}, v{db}')
            a('v_and_b32 v14, 1, v13')
            a('v_lshl_or_b32 v13, v14, 8, v13')
            a(f'v_cmp_gt_u32 s[{48+2*(r&3)}:{49+2*(r&3)}], 15, v13')
            if r >= 1:
                rr = r - 1
                a(f'v_cndmask_b32 v{sb+rr}, v12, v{sb+rr}, s[{48+2*(rr&3)}:{49+2*(rr&3)}]')
        a(f'v_cndmask_b32 v{sb+15}, v12, v{sb+15}, s[54:55]')
    a(f'v_max3_f32 v13, v{S0}, v{S0+1}, v{S0+2}')
    for r in range(3, 31, 2):
        a(f'v_max3_f32 v13, v13, v{S0+r}, v{S0+r+1}')
    a(f'v_max_f32 v13, v13, v{S0+31}')
    a('v_mov_b32 v14, v13')
    a('v_permlane32_swap_b32 v13, v14')
    a('v_max_f32 v13, v13, v14')
    for r in range(32):
        a(f'v_sub_f32 v{S0+r}, v{S0+r}, v13')
        a(f'v_exp_f32 v{S0+r}, v{S0+r}')
    for i in range(16):
        a(f'v_cvt_pk_bf16_f32 v{S0+i}, v{S0+2*i}, v{S0+2*i+1}')
    a(f'v_mfma_f32_32x32x16_bf16 {vr(VO,16)}, {vr(AV,4)}, {vr(S0,4)}, 0')
    a(f'v_mfma_f32_32x32x16_bf16 {vr(VO,16)}, {vr(AV+4,4)}, {vr(S0+4,4)}, {vr(VO,16)}')
    a(f'v_mfma_f32_32x32x16_bf16 {vr(VO,16)}, {vr(AV+8,4)}, {vr(S0+8,4)}, {vr(VO,16)}')
    a(f'v_mfma_f32_32x32x16_bf16 {vr(VO,16)}, {vr(AV+12,4)}, {vr(S0+12,4)}, {vr(VO,16)}')
    finalize(9, 0)
    a.label('K2_END')
    a('s_endpgm')
    return descriptor(name, 168)

K3_NB = 5
def gen_k3(a):
    name = 'out_kernel'
    header(a, name)
    a('s_cmp_ge_u32 s2, 224')
    a('s_cbranch_scc1 K3_END')
    rt_start(a)
    stamp(a, 0)
    a('s_load_dwordx2 s[4:5], s[0:1], 72')
    a('s_load_dwordx2 s[6:7], s[0:1], 56')
    a('s_and_b32 s20, s2, 7'); a('s_lshr_b32 s21, s2, 3')
    a('s_mul_i32 s22, s21, 37'); a('s_lshr_b32 s22, s22, 8')
    a('s_mul_i32 s23, s22, 7'); a('s_sub_u32 s23, s21, s23')
    a('s_lshl_b32 s20, s20, 2'); a('s_add_u32 s22, s22, s20')
    a('v_lshrrev_b32 v1, 6, v0')
    a('v_and_b32 v2, 63, v0')
    a('v_readfirstlane_b32 s32, v1')
    a('s_and_b32 s24, s32, 3')
    a('s_and_b32 s25, s24, 1')
    a('s_lshr_b32 s26, s24, 1')
    a('v_lshlrev_b32 v3, 4, v2')
    a('s_cmp_lt_u32 s32, 4')
    a('s_cbranch_scc1 K3_COMPUTE')
    a('s_lshl_b32 s27, s22, 1'); a('s_add_u32 s27, s27, s24'); a('s_lshl_b32 s27, s27, 16'); a(f's_add_u32 s27, s27, {OF_OFF}')
    a('s_lshl_b32 s28, s23, 1'); a('s_add_u32 s28, s28, s24'); a('s_sub_u32 s28, s28, 2'); a('s_lshl_b32 s28, s28, 16'); a(f's_add_u32 s28, s28, {WOF_OFF}')
    a('s_cmp_lt_u32 s24, 2')
    a('s_cselect_b32 s27, s27, s28')
    a('s_lshl_b32 s29, s24, 13')
    a('s_waitcnt lgkmcnt(0)')
    srd(a, 8, 4, 5, WS_BYTES)
    def dma_stage(st):
        buf = (st % K3_NB) * 32768
        for half in range(2):
            a(f's_add_u32 s30, s29, {buf + half*4096}')
            a('s_mov_b32 m0, s30')
            a(f's_add_u32 s31, s27, {st*8192 + half*4096}')
            for q in range(4):
                a.vmem(f'buffer_load_dwordx4 v3, s[8:11], s31 offen offset:{q*1024} lds', f'st{st}')
    for st in range(2): dma_stage(st)
    nxt = 2
    for st in range(8):
        a.vm_wait_tag(f'st{st}')
        a('s_barrier')
        lim = max(K3_NB - 1, st - 2 + K3_NB)
        cnt = 0
        while nxt < 8 and nxt <= lim and cnt < 2:
            dma_stage(nxt); nxt += 1; cnt += 1
    a('s_endpgm')
    a.label('K3_COMPUTE')
    a.reset_haz(); a.vm = []
    a('s_lshl_b32 s30, s25, 13')
    a('v_add_u32 v4, s30, v3')
    a('s_lshl_b32 s30, s26, 13')
    a('s_add_u32 s30, s30, 16384')
    a('v_add_u32 v5, s30, v3')
    a('v_add_u32 v6, 0x10000, v4')
    a('v_add_u32 v7, 0x10000, v5')
    a('v_and_b32 v8, 31, v2')
    a('s_lshl_b32 s30, s22, 6'); a('s_lshl_b32 s31, s25, 5'); a('s_add_u32 s30, s30, s31')
    a('v_add_u32 v8, s30, v8')
    a('s_movk_i32 s31, 896')
    a('v_mul_lo_u32 v8, v8, s31')
    a('v_lshrrev_b32 v9, 5, v2')
    a('v_lshl_add_u32 v8, v9, 4, v8')
    a('s_lshl_b32 s30, s23, 7'); a('s_lshl_b32 s31, s26, 6'); a('s_add_u32 s30, s30, s31')
    a('s_waitcnt lgkmcnt(0)')
    srd(a, 12, 6, 7, 2048*448*2)
    ACC, FA, FB = 16, 32, 48
    PD = 4
    a('v_add_u32 v10, 0x20000, v4')
    a('v_add_u32 v11, 0x20000, v5')
    def rd(ks):
        st, k = ks >> 3, ks & 7
        b = st % K3_NB
        off = (b & 1)*32768 + k*1024
        ra = ('v5', 'v7', 'v11')[b >> 1]; rb = ('v4', 'v6', 'v10')[b >> 1]
        a(f'ds_read_b128 {vr(FA+(ks%PD)*4,4)}, {ra} offset:{off}')
        a(f'ds_read_b128 {vr(FB+(ks%PD)*4,4)}, {rb} offset:{off}')
    stamp(a, 1)
    a('s_barrier')
    stamp(a, 2)
    for ks in range(PD-1): rd(ks)
    for ks in range(64):
        nk = ks + PD - 1
        if nk < 64:
            if nk % 8 == 0:
                a('s_barrier')
                stamp(a, 2 + (nk >> 3))
            rd(nk)
            a(f's_waitcnt lgkmcnt({2*(PD-1)})')
        else:
            a(f's_waitcnt lgkmcnt({2*(63-ks)})')
        c = '0' if ks == 0 else vr(ACC,16)
        a(f'v_mfma_f32_32x32x16_bf16 {vr(ACC,16)}, {vr(FA+(ks%PD)*4,4)}, {vr(FB+(ks%PD)*4,4)}, {c}')
    stamp(a, 10)
    for i in range(8): a(f'v_cvt_pk_bf16_f32 v{ACC+i}, v{ACC+2*i}, v{ACC+2*i+1}')
    for p in range(2):
        b = ACC + 4*p
        a(f'v_permlane32_swap_b32 v{b}, v{b+2}')
        a(f'v_permlane32_swap_b32 v{b+1}, v{b+3}')
    for p in range(2):
        b = ACC + 4*p
        a(f'buffer_store_dwordx4 {vr(b,4)}, v8, s[12:15], s30 offen offset:{32*p}')
    if STAMP: a('s_waitcnt vmcnt(0)')
    stamp(a, 11)
    if not os.environ.get('HDBG'): stamp_flush(a, 12, 's32')
    rt_end(a, 2, 's32')
    a.label('K3_END')
    a('s_endpgm')
    return descriptor(name, 64)

def main():
    a = Asm()
    hdr = open('cdna_kernels/%s.s.ref' % NAME).read().split('; Override launch')[0]
    out = hdr
    out += f'; @launch kernel=qkv_kernel grid=(256,1,1) block=({256+64*NLD},1,1) lds={K1_STAGE*K1_NBUF}\n'
    out += f'; @launch kernel=attn_kernel grid=(256,1,1) block=(512,1,1) lds={K2_LDS}\n'
    out += f'; @launch kernel=out_kernel grid=(224,1,1) block=(512,1,1) lds={K3_NB*32768}\n'
    out += '.amdgcn_target "amdgcn-amd-amdhsa--gfx950"\n.text\n'
    d1 = gen_k1(a); d2 = gen_k2(a); d3 = gen_k3(a)
    out += a.text()
    out += '.section .rodata,"a"\n'
    for d in (d1, d2, d3):
        out += '.p2align 6\n' + d
    open('cdna_kernels/%s.s' % NAME, 'w').write(out)
main()
```

```python
import sys, math
sys.path.insert(0, 'gen')
from asmlib import Asm

NAME = 'gated_mix__sliding_local_dilated__mha_block__prompt'
MB = 1 << 20
QF_OFF, KF_OFF, VF_OFF, OF_OFF, WOF_OFF, G_OFF = 0, 4*MB, 8*MB, 12*MB, 16*MB, 17*MB
WS_BYTES = 18*MB
import struct
def f32bits(x): return struct.unpack('<I', struct.pack('<f', x))[0]
CSCALE = f32bits((28 ** -0.5) * math.log2(math.e))
NLOG2E = f32bits(-math.log2(math.e))

def vr(b, n): return f'v[{b}:{b+n-1}]'

def srd(a, s, lo, hi, size):
    a(f's_mov_b32 s{s}, s{lo}')
    a(f's_and_b32 s{s+1}, s{hi}, 0xffff')
    a(f's_mov_b32 s{s+2}, {size}')
    a(f's_mov_b32 s{s+3}, 0x20000')

import os
STAMP = int(os.environ.get('STAMP', '0'))
STFLAG = os.environ.get('STFLAG', ' sc1')
def stamp(a, i):
    if not STAMP: return
    a('s_memtime s[90:91]')
    a('s_waitcnt lgkmcnt(0)')
    a(f's_mov_b32 s{70+i}, s90')
def stamp_flush(a, n, wavereg):
    if not STAMP: return
    a('s_load_dwordx2 s[92:93], s[0:1], 64')
    a('s_waitcnt lgkmcnt(0)')
    if os.environ.get('HDBG'):
        a('s_add_u32 s92, s92, 1024')
        a('s_addc_u32 s93, s93, 0')
    a(f's_cmp_lg_u32 s2, {STAMP-1}')
    a('s_cbranch_scc1 NOSTAMP_%d' % len(a.lines))
    lab = 'NOSTAMP_%d' % (len(a.lines)-1)
    a(f's_cmp_lg_u32 {wavereg}, 0')
    a('s_cbranch_scc1 ' + lab)
    a('v_mov_b32 v1, 0')
    for i in range(n):
        a(f's_sub_u32 s94, s{70+i}, s70')
        a('v_mov_b32 v2, s94')
        a(f'global_store_dword v1, v2, s[92:93] offset:{4*i}')
    a('s_waitcnt vmcnt(0)')
    a.label(lab)

def rt_start(a):
    if not STAMP: return
    a('s_memrealtime s[86:87]')
    a('s_waitcnt lgkmcnt(0)')
def rt_end(a, kidx, wavereg):
    if not STAMP: return
    a('s_memrealtime s[88:89]')
    a('s_load_dwordx2 s[92:93], s[0:1], 72')
    a('s_load_dwordx2 s[84:85], s[0:1], 64')
    a('s_waitcnt lgkmcnt(0)')
    lab = 'NORT_%d' % len(a.lines)
    a(f's_cmp_lg_u32 {wavereg}, 0')
    a('s_cbranch_scc1 ' + lab)
    a('s_lshl_b32 s94, s2, 3')
    a(f's_add_u32 s94, s94, {32*MB + kidx*4096}')
    a('v_mov_b32 v1, s94')
    a('v_mov_b32 v2, s86')
    a('v_mov_b32 v3, s88')
    a('global_store_dwordx2 v1, v[2:3], s[92:93]')
    if os.environ.get('HDBG'):
        a(f's_add_u32 s84, s84, {512*(2-kidx)}')
        a('s_addc_u32 s85, s85, 0')
        a('v_mov_b32 v1, 0')
        a('s_mov_b64 exec, 1')
        a(f'global_atomic_umax v1, v2, s[84:85] offset:{24+8*kidx}')
        a(f'global_atomic_umax v1, v3, s[84:85] offset:{28+8*kidx}')
        a('s_cmp_lg_u32 s2, 0')
        a('s_cbranch_scc1 ' + lab)
        a(f'global_store_dwordx2 v1, v[2:3], s[84:85] offset:{8*kidx}')
    a('s_waitcnt vmcnt(0)')
    a.label(lab)

def header(a, name):
    a.raw('.p2align 8')
    a.raw(f'.globl {name}')
    a.raw(f'.type {name},@function')
    a.label(name)
    a.reset_haz(); a.vm = []

def descriptor(name, vgpr, sgpr=96):
    acc = (vgpr + 3) // 4 * 4
    return f""".amdhsa_kernel {name}
  .amdhsa_next_free_vgpr {vgpr}
  .amdhsa_next_free_sgpr {sgpr}
  .amdhsa_accum_offset {acc}
  .amdhsa_group_segment_fixed_size 0
  .amdhsa_kernarg_size 80
  .amdhsa_user_sgpr_count 2
  .amdhsa_user_sgpr_kernarg_segment_ptr 1
  .amdhsa_system_sgpr_workgroup_id_x 1
.end_amdhsa_kernel
"""

K1_STAGE = 40960
K1_NBUF = 3
NLD = int(os.environ.get('NLD', '4'))
def gen_k1(a):
    name = 'qkv_kernel'
    header(a, name)
    a('s_cmp_ge_u32 s2, 256')
    a('s_cbranch_scc1 K1_END')
    rt_start(a)
    stamp(a, 0)
    a('s_load_dwordx4 s[4:7], s[0:1], 0')
    a('s_load_dwordx2 s[20:21], s[0:1], 16')
    a('s_load_dwordx4 s[24:27], s[0:1], 32')
    a('s_load_dwordx2 s[28:29], s[0:1], 48')
    a('s_load_dwordx2 s[30:31], s[0:1], 72')
    a('s_and_b32 s51, s2, 7')
    a('s_lshr_b32 s52, s2, 3')
    a('s_and_b32 s53, s51, 1'); a('s_lshl_b32 s53, s53, 3'); a('s_lshr_b32 s54, s52, 2'); a('s_add_u32 s44, s53, s54')
    a('s_lshr_b32 s53, s51, 1'); a('s_lshl_b32 s53, s53, 2'); a('s_and_b32 s54, s52, 3'); a('s_add_u32 s45, s53, s54')
    a('s_lshr_b32 s46, s45, 3')
    a('s_and_b32 s47, s45, 7')
    a('v_lshrrev_b32 v1, 6, v0')
    a('v_and_b32 v2, 63, v0')
    a('v_readfirstlane_b32 s59, v1')
    a('s_and_b32 s48, s59, 3')
    a('s_and_b32 s49, s48, 1')
    a('s_lshr_b32 s50, s48, 1')
    a('s_cmp_lt_u32 s59, 4')
    a('s_cbranch_scc1 K1_COMPUTE')
    a('s_sub_u32 s48, s59, 4')
    a('v_lshrrev_b32 v11, 3, v2')
    a('s_lshl_b32 s51, s44, 7')
    a('s_lshl_b32 s52, s48, 3')
    a('s_add_u32 s51, s51, s52')
    a('v_add_u32 v11, s51, v11')
    a('s_movk_i32 s52, 896')
    a('v_mul_lo_u32 v12, v11, s52')
    a('v_lshrrev_b32 v11, 4, v2')
    a('s_lshl_b32 s52, s48, 2')
    a('v_add_u32 v11, s52, v11')
    a('v_and_b32 v11, 7, v11')
    a('v_and_b32 v13, 7, v2')
    a('v_xor_b32 v11, v11, v13')
    a('v_lshl_add_u32 v12, v11, 4, v12')
    a('s_mul_i32 s52, s47, 112')
    for j in range(24//NLD):
        r = 14 + j
        a(f's_lshl_b32 s51, s48, 6')
        a(f's_add_u32 s51, s51, {64*NLD*j}')
        a(f'v_add_u32 v44, s51, v2')
        a('s_movk_i32 s53, 3121')
        a('v_mul_lo_u32 v45, v44, s53')
        a('v_lshrrev_b32 v45, 16, v45')
        a('v_mul_u32_u24 v46, 21, v45')
        a('v_sub_u32 v46, v44, v46')
        a('v_mul_u32_u24 v47, 37, v46')
        a('v_lshrrev_b32 v47, 8, v47')
        a('v_and_b32 v48, 0xfffffff0, v45')
        a('v_and_b32 v49, 3, v45')
        a('v_lshl_or_b32 v48, v49, 2, v48')
        a('v_bfe_u32 v49, v45, 2, 2')
        a('v_or_b32 v48, v48, v49')
        a('s_movk_i32 s53, 2688')
        a('v_mul_lo_u32 v48, v48, s53')
        a('s_movk_i32 s53, 784')
        a('v_mul_lo_u32 v47, v47, s53')
        a(f'v_lshl_add_u32 v{r}, v46, 4, v48')
        a(f'v_add3_u32 v{r}, v{r}, v47, s52')
    a('s_lshl_b32 s55, s48, 10')
    a('s_waitcnt lgkmcnt(0)')
    srd(a, 8, 4, 5, 2048*448*2)
    a('s_cmp_eq_u32 s46, 0')
    a('s_cselect_b32 s12, s6, s24')
    a('s_cselect_b32 s13, s7, s25')
    a('s_and_b32 s13, s13, 0xffff')
    a(f's_mov_b32 s14, {448*1344*2}')
    a('s_mov_b32 s15, 0x20000')
    def dma_stage(st):
        buf = (st % K1_NBUF) * K1_STAGE
        for j in range(16//NLD):
            a(f's_add_u32 s51, s55, {buf + j*1024*NLD}')
            a('s_mov_b32 m0, s51')
            a(f's_mov_b32 s52, {st*128 + j*8*NLD*896}')
            a.vmem('buffer_load_dwordx4 v12, s[8:11], s52 offen lds', f'st{st}')
        for j in range(24//NLD):
            a(f's_add_u32 s51, s55, {buf + 16384 + j*1024*NLD}')
            a('s_mov_b32 m0, s51')
            a(f's_mov_b32 s52, {st*64*2688}')
            a.vmem(f'buffer_load_dwordx4 v{14+j}, s[12:15], s52 offen lds', f'st{st}')
    NST = 7
    for st in range(K1_NBUF): dma_stage(st)
    for st in range(NST):
        a.vm_wait_tag(f'st{st}')
        a('s_barrier')
        if st >= 1 and st + 2 < NST: dma_stage(st + 2)
    a('s_endpgm')
    a.label('K1_COMPUTE')
    a.reset_haz(); a.vm = []
    a('s_waitcnt lgkmcnt(0)')
    stamp(a, 12)
    srd(a, 8, 4, 5, 2048*448*2)
    srd(a, 16, 30, 31, WS_BYTES)
    srd(a, 40, 28, 29, 448*2)
    a('v_and_b32 v3, 31, v2')
    a('v_lshrrev_b32 v4, 5, v2')
    a('s_lshl_b32 s51, s2, 3')
    a('s_lshl_b32 s52, s48, 1')
    a('s_add_u32 s51, s51, s52')
    a('v_add_u32 v5, s51, v4')
    a('s_movk_i32 s52, 896')
    a('v_mul_lo_u32 v6, v5, s52')
    a('v_lshlrev_b32 v7, 5, v3')
    a('v_add_u32 v6, v6, v7')
    a('v_mov_b32 v8, 0x40000000')
    a('v_cmp_gt_u32 vcc, 28, v3')
    a('v_cndmask_b32 v6, v8, v6, vcc')
    a('v_cndmask_b32 v7, v8, v7, vcc')
    a.vmem('buffer_load_dwordx4 v[20:23], v6, s[8:11], 0 offen', 'gate')
    a.vmem('buffer_load_dwordx4 v[24:27], v6, s[8:11], 0 offen offset:16', 'gate')
    a.vmem('buffer_load_dwordx4 v[28:31], v7, s[40:43], 0 offen', 'gate')
    a.vmem('buffer_load_dwordx4 v[32:35], v7, s[40:43], 0 offen offset:16', 'gate')
    a('s_lshl_b32 s51, s2, 2')
    a('s_add_u32 s51, s51, s48')
    a('s_and_b32 s52, s51, 63')
    a('s_lshr_b32 s53, s51, 6')
    a('s_lshr_b32 s54, s52, 5')
    a('s_cmp_eq_u32 s54, 0')
    a('s_cselect_b32 s32, s20, s26')
    a('s_cselect_b32 s33, s21, s27')
    a('s_and_b32 s33, s33, 0xffff')
    a(f's_mov_b32 s34, {448*448*2}')
    a('s_mov_b32 s35, 0x20000')
    a('s_lshr_b32 s55, s52, 1'); a('s_and_b32 s55, s55, 15')
    a('s_and_b32 s56, s52, 1')
    a('s_mul_i32 s55, s55, 28')
    a('s_lshl_b32 s57, s56, 4')
    a('s_add_u32 s55, s55, s57')
    a('v_lshlrev_b32 v9, 2, v4')
    a('v_add_u32 v9, s55, v9')
    a('s_movk_i32 s52, 896')
    a('v_mul_lo_u32 v9, v9, s52')
    a('s_lshl_b32 s53, s53, 6')
    a('v_lshlrev_b32 v10, 1, v3')
    a('v_add3_u32 v9, v9, v10, s53')
    a(f'v_add_u32 v10, {8*896}, v9')
    a('v_and_b32 v11, s56, v4')
    a('v_cmp_eq_u32 vcc, 0, v11')
    a('v_cndmask_b32 v10, v8, v10, vcc')
    a('s_cmp_ge_u32 s2, 224')
    a('s_cselect_b32 s58, 0x40000000, 0')
    for j in range(4):
        a.vmem(f'buffer_load_ushort v{36+j}, v9, s[32:35], s58 offen offset:{896*j}', 'wo')
    for j in range(4):
        a.vmem(f'buffer_load_ushort v{40+j}, v10, s[32:35], s58 offen offset:{896*j}', 'wo')
    stamp(a, 13)
    ACC = 64
    XF = 18
    WF = 34
    for i in range(96):
        a(f'v_mov_b32 v{ACC+i}, 0')
    a.vm_wait_tag('gate')
    a('v_mov_b32 v44, 0')
    for i in range(8):
        xs, gs = 20 + i, 28 + i
        a(f'v_lshlrev_b32 v45, 16, v{xs}')
        a(f'v_and_b32 v46, 0xffff0000, v{xs}')
        a(f'v_lshlrev_b32 v47, 16, v{gs}')
        a(f'v_and_b32 v48, 0xffff0000, v{gs}')
        a('v_mul_f32 v45, v45, v47')
        a('v_mul_f32 v46, v46, v48')
        a('v_cvt_pk_bf16_f32 v45, v45, v46')
        a('v_lshlrev_b32 v46, 16, v45')
        a('v_and_b32 v45, 0xffff0000, v45')
        a('v_add_f32 v44, v44, v46')
        a('v_add_f32 v44, v44, v45')
    for off in (0x041F, 0x081F, 0x101F, 0x201F, 0x401F):
        a(f'ds_swizzle_b32 v45, v44 offset:{off}')
        a('s_waitcnt lgkmcnt(0)')
        a('v_add_f32 v44, v44, v45')
    a('v_cvt_pk_bf16_f32 v44, v44, v44')
    a('v_lshlrev_b32 v44, 16, v44')
    a(f'v_mul_f32 v44, {NLOG2E}, v44')
    a('v_exp_f32 v44, v44')
    a('v_add_f32 v44, 1.0, v44')
    a('v_rcp_f32 v44, v44')
    a('v_cvt_pk_bf16_f32 v44, v44, v44')
    a('v_lshlrev_b32 v44, 16, v44')
    a('v_lshlrev_b32 v45, 2, v5')
    a(f'v_add_u32 v45, {G_OFF}, v45')
    a('v_cmp_eq_u32 vcc, 0, v3')
    a('v_cndmask_b32 v45, v8, v45, vcc')
    a.vmem('buffer_store_dword v44, v45, s[16:19], 0 offen', 'gst')
    a.vm_wait_tag('wo')
    for j in range(4):
        a(f'v_lshl_or_b32 v{44+j}, v{37+2*j}, 16, v{36+2*j}')
    a('s_lshl_b32 s51, s2, 12')
    a(f's_add_u32 s51, s51, {WOF_OFF}')
    a('s_add_u32 s51, s51, s58')
    a('v_lshlrev_b32 v48, 4, v0')
    a.vmem('buffer_store_dwordx4 v[44:47], v48, s[16:19], s51 offen', 'gst')
    a('v_and_b32 v3, 31, v2')
    a('v_lshrrev_b32 v4, 5, v2')
    a('v_bfe_u32 v5, v3, 1, 3')
    a('s_lshl_b32 s51, s49, 13')
    a('v_lshlrev_b32 v6, 7, v3')
    a('v_add_u32 v6, s51, v6')
    for s in range(4):
        a(f'v_add_u32 v7, {2*s}, v4')
        a('v_xor_b32 v7, v7, v5')
        a(f'v_lshl_add_u32 v{8+s}, v7, 4, v6')
    a('v_bfe_u32 v5, v2, 2, 2')
    a('v_lshlrev_b32 v5, 2, v5')
    a('v_lshl_add_u32 v5, v4, 1, v5')
    a('v_mul_u32_u24 v5, 336, v5')
    a('v_bfe_u32 v6, v2, 4, 1')
    a('v_lshl_add_u32 v5, v6, 5, v5')
    a('v_and_b32 v6, 3, v2')
    a('v_lshl_add_u32 v5, v6, 3, v5')
    a('s_mul_i32 s51, s50, 56')
    a(f's_add_u32 s51, s51, 16384')
    a('v_add_u32 v12, s51, v5')
    def acc(which, tt): return ACC + (which*2 + tt)*16
    def rd_list(s, pb):
        l = []
        for tt in range(2):
            l.append(f'ds_read_b128 {vr(XF+pb*8+tt*4,4)}, v{13+s} offset:{tt*4096}')
        for which in range(3):
            for u in range(2):
                l.append(f'ds_read_b64_tr_b16 {vr(WF+pb*12+which*4+u*2,2)}, v17 offset:{s*5376+u*336+which*112}')
        return l
    def set_stage_addr(st):
        buf = (st % K1_NBUF) * K1_STAGE
        for s in range(4):
            a(f'v_add_u32 v{13+s}, {buf}, v{8+s}')
        a(f'v_add_u32 v17, {buf}, v12')
    def mfma_list(pb):
        l = []
        for which in range(3):
            for tt in range(2):
                xf = vr(XF+pb*8+tt*4, 4); wf = vr(WF+pb*12+which*4, 4); d = vr(acc(which, tt), 16)
                if which < 2: l.append(f'v_mfma_f32_32x32x16_bf16 {d}, {wf}, {xf}, {d}')
                else:         l.append(f'v_mfma_f32_32x32x16_bf16 {d}, {xf}, {wf}, {d}')
        return l
    set_stage_addr(0)
    stamp(a, 2)
    a('s_barrier')
    stamp(a, 3)
    for t in rd_list(0, 0): a(t)
    step = 0
    for st in range(NST):
        for s in range(4):
            pb = step & 1
            last = (st == NST-1 and s == 3)
            a('s_waitcnt lgkmcnt(0)')
            rl = []
            if s < 3:
                rl = rd_list(s+1, pb ^ 1)
            elif not last:
                a('s_barrier')
                stamp(a, 4+st)
                set_stage_addr(st+1)
                rl = rd_list(0, pb ^ 1)
            ml = mfma_list(pb)
            for i, m in enumerate(ml):
                a(m)
                for t in rl[2*i:2*i+2]: a(t)
            step += 1
    stamp(a, 10)
    a('s_lshl_b32 s51, s47, 1'); a('s_add_u32 s51, s51, s50')
    a('s_lshl_b32 s52, s46, 4'); a('s_add_u32 s51, s51, s52')
    a('s_lshl_b32 s51, s51, 17')
    a('s_lshl_b32 s52, s44, 2'); a('s_lshl_b32 s53, s49, 1'); a('s_add_u32 s52, s52, s53')
    a('s_lshl_b32 s52, s52, 11')
    a('s_add_u32 s51, s51, s52')
    a('v_lshlrev_b32 v3, 4, v2')
    a(f's_mov_b32 s56, {CSCALE}')
    a('v_cmp_gt_u32 s[60:61], 32, v2')
    a('v_and_b32 v4, 31, v2')
    a('v_cmp_eq_u32 s[62:63], 28, v4')
    a('v_mov_b32 v5, 0')
    a('v_mov_b32 v6, 0x3f803f80')
    for which in range(3):
        a(f's_add_u32 s52, s51, {which*4*MB}')
        for tt in range(2):
            b = acc(which, tt)
            if which == 0:
                for i in range(16): a(f'v_mul_f32 v{b+i}, s56, v{b+i}')
            for i in range(8):
                a(f'v_cvt_pk_bf16_f32 v{b+i}, v{b+2*i}, v{b+2*i+1}')
            if which < 2:
                a(f'v_cndmask_b32 v{b+6}, v5, v{b+6}, s[60:61]')
                a(f'v_cndmask_b32 v{b+7}, v5, v{b+7}, s[60:61]')
            else:
                for i in range(8): a(f'v_cndmask_b32 v{b+i}, v{b+i}, v6, s[62:63]')
            a.vmem(f'buffer_store_dwordx4 {vr(b,4)}, v3, s[16:19], s52 offen offset:{tt*2048}{STFLAG}', 'out')
            a.vmem(f'buffer_store_dwordx4 {vr(b+4,4)}, v3, s[16:19], s52 offen offset:{tt*2048+1024}{STFLAG}', 'out')
    if STAMP: a('s_waitcnt vmcnt(0)')
    stamp(a, 11)
    if not os.environ.get('HDBG'): stamp_flush(a, 15, 's59')
    rt_end(a, 0, 's59')
    a.label('K1_END')
    a('s_endpgm')
    return descriptor(name, 160)

K2_BUF = 32768
K2_COMB = 4*K2_BUF
K2_FLAG = K2_COMB + 4*5*1024
K2_LDS = K2_FLAG + 64
VQ, VNEG, VS, VP, VO, VK, VV = 16, 24, 40, 72, 80, 96, 112
AQ, AK, AV = 128, 136, 152
def gen_k2(a):
    name = 'attn_kernel'
    header(a, name)
    a('s_cmp_ge_u32 s2, 256')
    a('s_cbranch_scc1 K2_END')
    rt_start(a)
    stamp(a, 0)
    a('s_load_dwordx2 s[4:5], s[0:1], 72')
    a('s_and_b32 s20, s2, 15')
    a('s_lshr_b32 s21, s2, 4')
    a('v_lshrrev_b32 v1, 6, v0')
    a('v_and_b32 v2, 63, v0')
    a('v_readfirstlane_b32 s22, v1')
    a('s_and_b32 s23, s22, 3')
    a('s_lshr_b32 s24, s22, 2')
    a('s_lshl_b32 s25, s21, 2'); a('s_add_u32 s25, s25, s23')
    a('v_lshlrev_b32 v3, 4, v2')
    a('s_lshl_b32 s26, s22, 11')
    a('v_add_u32 v4, s26, v3')
    a('s_lshl_b32 s27, s24, 13')
    a('v_add_u32 v5, s27, v3')
    a('v_add_u32 v6, 0x10000, v5')
    a('s_lshl_b32 s28, s20, 17')
    a('s_add_u32 s29, s28, 0x200000')
    a('s_lshl_b32 s30, s25, 11')
    a('v_and_b32 v7, 31, v2')
    a('v_lshlrev_b32 v8, 2, v7')
    a('v_mov_b32 v10, 0')
    a(f'v_mov_b32 v11, {K2_FLAG}')
    a('ds_write_b32 v11, v10')
    a('s_waitcnt lgkmcnt(0)')
    srd(a, 8, 4, 5, WS_BYTES)
    def dma_stage(st):
        buf = (st % 4) * K2_BUF
        for reg, loff in ((KF_OFF, 0), (VF_OFF, 16384)):
            a(f's_add_u32 s36, s26, {buf + loff}')
            a('s_mov_b32 m0, s36')
            a(f's_add_u32 s37, s29, {reg + st*16384}')
            a.vmem('buffer_load_dwordx4 v4, s[8:11], s37 offen lds', f'st{st}')
            a.vmem('buffer_load_dwordx4 v4, s[8:11], s37 offen offset:1024 lds', f'st{st}')
    a('s_add_u32 s31, s29, s30')
    a.vmem(f'buffer_load_dwordx4 {vr(VQ,4)}, v3, s[8:11], s31 offen', 'st0')
    a.vmem(f'buffer_load_dwordx4 {vr(VQ+4,4)}, v3, s[8:11], s31 offen offset:1024', 'st0')
    dma_stage(0)
    a('s_lshl_b32 s31, s25, 7')
    a(f's_add_u32 s31, s31, {G_OFF}')
    a.vmem('buffer_load_dword v9, v8, s[8:11], s31 offen', 'st1')
    dma_stage(1)
    a('s_add_u32 s31, s28, s30')
    a('s_sub_u32 s32, s31, 2048')
    a('s_cmp_eq_u32 s25, 0')
    a('s_cselect_b32 s32, s31, s32')
    a('s_cselect_b32 s33, 1000, 32')
    a('s_cmp_eq_u32 s24, 0')
    a('s_cselect_b32 s31, 0x40000000, s31')
    a('s_cselect_b32 s32, 0x40000000, s32')
    a(f's_add_u32 s34, s32, {KF_OFF}')
    a(f's_add_u32 s35, s31, {KF_OFF}')
    a(f's_add_u32 s44, s32, {VF_OFF}')
    a(f's_add_u32 s45, s31, {VF_OFF}')
    deferred = [
        lambda: dma_stage(2),
        lambda: dma_stage(3),
        lambda: (a.vmem(f'buffer_load_dwordx4 {vr(AQ,4)}, v3, s[8:11], s31 offen', 'a'),
                 a.vmem(f'buffer_load_dwordx4 {vr(AQ+4,4)}, v3, s[8:11], s31 offen offset:1024', 'a'),
                 a.vmem(f'buffer_load_dwordx4 {vr(AK,4)}, v3, s[8:11], s34 offen', 'a'),
                 a.vmem(f'buffer_load_dwordx4 {vr(AK+4,4)}, v3, s[8:11], s34 offen offset:1024', 'a')),
        lambda: (a.vmem(f'buffer_load_dwordx4 {vr(AK+8,4)}, v3, s[8:11], s35 offen', 'a'),
                 a.vmem(f'buffer_load_dwordx4 {vr(AK+12,4)}, v3, s[8:11], s35 offen offset:1024', 'a'),
                 a.vmem(f'buffer_load_dwordx4 {vr(AV,4)}, v3, s[8:11], s44 offen', 'a')),
        lambda: (a.vmem(f'buffer_load_dwordx4 {vr(AV+4,4)}, v3, s[8:11], s44 offen offset:1024', 'a'),
                 a.vmem(f'buffer_load_dwordx4 {vr(AV+8,4)}, v3, s[8:11], s45 offen', 'a'),
                 a.vmem(f'buffer_load_dwordx4 {vr(AV+12,4)}, v3, s[8:11], s45 offen offset:1024', 'a')),
    ]

    def finalize(gate_expr_reg, br):
        a(f'v_mov_b32 v13, v{VO+12}')
        a(f'v_mov_b32 v14, v{VO+12}')
        a('v_permlane32_swap_b32 v13, v14')
        a('v_rcp_f32 v14, v14')
        a(f'v_mul_f32 v14, v14, v{gate_expr_reg}')
        for r in range(16): a(f'v_mul_f32 v{VO+r}, v14, v{VO+r}')
        for i in range(8): a(f'v_cvt_pk_bf16_f32 v{VO+i}, v{VO+2*i}, v{VO+2*i+1}')
        a('v_cmp_gt_u32 vcc, 32, v2')
        a('v_mov_b32 v13, 0')
        a(f'v_cndmask_b32 v{VO+6}, v13, v{VO+6}, vcc')
        a(f'v_cndmask_b32 v{VO+7}, v13, v{VO+7}, vcc')
        a('s_lshl_b32 s38, s25, 16')
        a('s_lshl_b32 s39, s20, 11')
        a('s_add_u32 s38, s38, s39')
        a(f's_add_u32 s38, s38, {OF_OFF + br*32768}')
        a(f'buffer_store_dwordx4 {vr(VO,4)}, v3, s[8:11], s38 offen{STFLAG}')
        a(f'buffer_store_dwordx4 {vr(VO+4,4)}, v3, s[8:11], s38 offen offset:1024{STFLAG}')

    def lds_tile(idx, isv, t):
        st, i = idx >> 2, idx & 3
        b = st % 4
        base = 'v5' if b < 2 else 'v6'
        off = (b & 1) * K2_BUF + (16384 if isv else 0) + i*2048 + t*1024
        return base, off
    def rdK(idx):
        for t in range(2):
            base, off = lds_tile(idx, False, t)
            a(f'ds_read_b128 {vr(VK+(idx&1)*8+t*4,4)}, {base} offset:{off}')
    def rdV(idx):
        for t in range(2):
            base, off = lds_tile(idx, True, t)
            a(f'ds_read_b128 {vr(VV+(idx&1)*8+t*4,4)}, {base} offset:{off}')
    def stage_sync(st):
        a.vm_wait_tag(f'st{st}')
        a('s_barrier')
        if st >= 2 and st + 2 < 8: dma_stage(st + 2)
    NT = 32
    def smfma(idx, cneg, part):
        d = vr(VS+(idx&1)*16, 16); k = VK+(idx&1)*8
        c = vr(VNEG,16) if cneg else '0'
        if part == 0: a(f'v_mfma_f32_32x32x16_bf16 {d}, {vr(k,4)}, {vr(VQ,4)}, {c}')
        else:         a(f'v_mfma_f32_32x32x16_bf16 {d}, {vr(k+4,4)}, {vr(VQ+4,4)}, {d}')
    def pv(idx, first, part):
        v = VV+(idx&1)*8
        c = '0' if first else vr(VO,16)
        if part == 0: a(f'v_mfma_f32_32x32x16_bf16 {vr(VO,16)}, {vr(v,4)}, {vr(VP,4)}, {c}')
        else:         a(f'v_mfma_f32_32x32x16_bf16 {vr(VO,16)}, {vr(v+4,4)}, {vr(VP+4,4)}, {vr(VO,16)}')
    def tilemax(sb, dst):
        a(f'v_max3_f32 v{dst}, v{sb}, v{sb+1}, v{sb+2}')
        for r in range(3, 15, 2):
            a(f'v_max3_f32 v{dst}, v{dst}, v{sb+r}, v{sb+r+1}')
        a(f'v_max_f32 v{dst}, v{dst}, v{sb+15}')
        a(f'v_mov_b32 v13, v{dst}')
        a(f'v_permlane32_swap_b32 v{dst}, v13')
        a(f'v_max_f32 v{dst}, v{dst}, v13')
    stamp(a, 1)
    stage_sync(0)
    stamp(a, 2)
    rdK(0)
    rdK(1)
    a('s_waitcnt lgkmcnt(2)')
    d = vr(VS+16, 16)
    a(f'v_mfma_f32_32x32x16_bf16 {d}, {vr(VK,4)}, {vr(VQ,4)}, 0')
    a(f'v_mfma_f32_32x32x16_bf16 {d}, {vr(VK+4,4)}, {vr(VQ+4,4)}, {d}')
    rdV(0)
    tilemax(VS+16, 12)
    for r in range(16): a(f'v_sub_f32 v{VNEG+r}, 0, v12')
    smfma(0, True, 0); smfma(0, True, 1)
    def quarter(sb, q):
        for i in (2*q, 2*q+1):
            a(f'v_exp_f32 v{sb+2*i}, v{sb+2*i}')
            a(f'v_exp_f32 v{sb+2*i+1}, v{sb+2*i+1}')
        for i in (2*q, 2*q+1):
            a(f'v_cvt_pk_bf16_f32 v{VP+i}, v{sb+2*i}, v{sb+2*i+1}')
    for idx in range(NT):
        sb = VS + (idx&1)*16
        n_out = 2
        if idx + 1 < NT:
            a('s_waitcnt lgkmcnt(2)')
            smfma(idx+1, True, 0)
        if idx + 2 < NT:
            if (idx + 2) % 4 == 0:
                stage_sync((idx+2) >> 2)
                stamp(a, 2 + ((idx+2) >> 2))
            rdK(idx+2); n_out += 2
        quarter(sb, 0)
        if idx > 0: pv(idx-1, False, 1)
        if idx + 1 < NT:
            rdV(idx+1); n_out += 2
        quarter(sb, 1)
        if idx + 1 < NT: smfma(idx+1, True, 1)
        if idx < len(deferred): deferred[idx]()
        quarter(sb, 2)
        a(f's_waitcnt lgkmcnt({n_out-2})')
        pv(idx, idx == 0, 0)
        quarter(sb, 3)
    pv(NT-1, False, 1)
    stamp(a, 10)
    a('v_sub_f32 v15, 1.0, v9')
    a(f'v_add_f32 v13, |v{VO}|, |v{VO+1}|')
    for r in range(2, 16): a(f'v_add_f32 v13, v13, |v{VO+r}|')
    a('v_mov_b32 v14, 0x7b800000')
    a('v_cmp_nlt_f32 vcc, v13, v14')
    a('s_cbranch_vccz K2_OKFAST')
    a('v_mov_b32 v10, 1')
    a(f'v_mov_b32 v11, {K2_FLAG}')
    a('ds_write_b32 v11, v10')
    a.label('K2_OKFAST')
    def combine(tag):
        a('s_mul_i32 s38, s23, %d' % (5*1024))
        a(f's_add_u32 s38, s38, {K2_COMB}')
        a('v_add_u32 v10, s38, v3')
        a('s_cmp_eq_u32 s24, 0')
        a(f's_cbranch_scc1 K2_C1_{tag}')
        for r in range(4): a(f'ds_write_b128 v10, {vr(VO+4*r,4)} offset:{1024*r}')
        a(f'ds_write_b32 v10, v12 offset:{4096}')
        a.label(f'K2_C1_{tag}')
        a('s_waitcnt lgkmcnt(0)')
        a('s_barrier')
    combine('F')
    a(f'v_mov_b32 v11, {K2_FLAG}')
    a('ds_read_b32 v11, v11')
    a('s_waitcnt lgkmcnt(0)')
    a('v_readfirstlane_b32 s38, v11')
    a('s_cmp_eq_u32 s38, 0')
    a('s_cbranch_scc1 K2_MERGE')
    a('s_barrier')
    a.vm_wait_all()
    for st in range(4): dma_stage(st)
    a('v_mov_b32 v12, 0xff7fffff')
    for r in range(16): a(f'v_mov_b32 v{VO+r}, 0')
    for idx in range(NT):
        if idx % 4 == 0: stage_sync(idx >> 2)
        rdK(idx); rdV(idx)
        a('s_waitcnt lgkmcnt(0)')
        smfma(idx, False, 0); smfma(idx, False, 1)
        sb = VS + (idx&1)*16
        tilemax(sb, 11)
        a('v_max_f32 v11, v11, v12')
        a('v_sub_f32 v10, v12, v11')
        a('v_exp_f32 v10, v10')
        a('v_mov_b32 v12, v11')
        for r in range(16):
            a(f'v_sub_f32 v{sb+r}, v{sb+r}, v11')
            a(f'v_exp_f32 v{sb+r}, v{sb+r}')
        for i in range(8): a(f'v_cvt_pk_bf16_f32 v{VP+i}, v{sb+2*i}, v{sb+2*i+1}')
        for r in range(16): a(f'v_mul_f32 v{VO+r}, v10, v{VO+r}')
        pv(idx, False, 0); pv(idx, False, 1)
    a('s_barrier')
    combine('S')
    a.label('K2_MERGE')
    a.reset_haz(); a.nop(16)
    a('s_waitcnt vmcnt(0)')
    a('s_cmp_eq_u32 s24, 0')
    a('s_cbranch_scc0 K2_ABR')
    for r in range(4): a(f'ds_read_b128 {vr(VS+4*r,4)}, v10 offset:{1024*r}')
    a(f'ds_read_b32 v11, v10 offset:{4096}')
    a('s_waitcnt lgkmcnt(0)')
    a('v_max_f32 v13, v11, v12')
    a('v_sub_f32 v11, v11, v13')
    a('v_sub_f32 v12, v12, v13')
    a('v_exp_f32 v11, v11')
    a('v_exp_f32 v12, v12')
    for r in range(16):
        a(f'v_mul_f32 v{VO+r}, v12, v{VO+r}')
        a(f'v_fmac_f32 v{VO+r}, v11, v{VS+r}')
    finalize(15, 1)
    a('s_waitcnt vmcnt(0)')
    stamp(a, 11)
    if not os.environ.get('HDBG'): stamp_flush(a, 12, 's22')
    rt_end(a, 1, 's22')
    a('s_endpgm')
    a.label('K2_ABR')
    a.reset_haz(); a.nop(4)
    S0, S1 = VS, VS+16
    a(f'v_mfma_f32_32x32x16_bf16 {vr(S0,16)}, {vr(AK,4)}, {vr(AQ,4)}, 0')
    a(f'v_mfma_f32_32x32x16_bf16 {vr(S0,16)}, {vr(AK+4,4)}, {vr(AQ+4,4)}, {vr(S0,16)}')
    a(f'v_mfma_f32_32x32x16_bf16 {vr(S1,16)}, {vr(AK+8,4)}, {vr(AQ,4)}, 0')
    a(f'v_mfma_f32_32x32x16_bf16 {vr(S1,16)}, {vr(AK+12,4)}, {vr(AQ+4,4)}, {vr(S1,16)}')
    a('v_lshrrev_b32 v10, 5, v2')
    a('v_lshlrev_b32 v10, 2, v10')
    a('v_sub_u32 v10, v7, v10')
    a('v_add_u32 v11, s33, v10')
    a('v_mov_b32 v12, 0xff800000')
    for ti, (sb, db) in enumerate(((S0, 11), (S1, 10))):
        for r in range(16):
            kofs = (r & 3) + 8*(r >> 2)
            a(f'v_subrev_u32 v13, {kofs}, v{db}')
            a('v_and_b32 v14, 1, v13')
            a('v_lshl_or_b32 v13, v14, 8, v13')
            a(f'v_cmp_gt_u32 s[{48+2*(r&3)}:{49+2*(r&3)}], 15, v13')
            if r >= 1:
                rr = r - 1
                a(f'v_cndmask_b32 v{sb+rr}, v12, v{sb+rr}, s[{48+2*(rr&3)}:{49+2*(rr&3)}]')
        a(f'v_cndmask_b32 v{sb+15}, v12, v{sb+15}, s[54:55]')
    a(f'v_max3_f32 v13, v{S0}, v{S0+1}, v{S0+2}')
    for r in range(3, 31, 2):
        a(f'v_max3_f32 v13, v13, v{S0+r}, v{S0+r+1}')
    a(f'v_max_f32 v13, v13, v{S0+31}')
    a('v_mov_b32 v14, v13')
    a('v_permlane32_swap_b32 v13, v14')
    a('v_max_f32 v13, v13, v14')
    for r in range(32):
        a(f'v_sub_f32 v{S0+r}, v{S0+r}, v13')
        a(f'v_exp_f32 v{S0+r}, v{S0+r}')
    for i in range(16):
        a(f'v_cvt_pk_bf16_f32 v{S0+i}, v{S0+2*i}, v{S0+2*i+1}')
    a(f'v_mfma_f32_32x32x16_bf16 {vr(VO,16)}, {vr(AV,4)}, {vr(S0,4)}, 0')
    a(f'v_mfma_f32_32x32x16_bf16 {vr(VO,16)}, {vr(AV+4,4)}, {vr(S0+4,4)}, {vr(VO,16)}')
    a(f'v_mfma_f32_32x32x16_bf16 {vr(VO,16)}, {vr(AV+8,4)}, {vr(S0+8,4)}, {vr(VO,16)}')
    a(f'v_mfma_f32_32x32x16_bf16 {vr(VO,16)}, {vr(AV+12,4)}, {vr(S0+12,4)}, {vr(VO,16)}')
    finalize(9, 0)
    a.label('K2_END')
    a('s_endpgm')
    return descriptor(name, 168)

K3_NB = 5
def gen_k3(a):
    name = 'out_kernel'
    header(a, name)
    a('s_cmp_ge_u32 s2, 224')
    a('s_cbranch_scc1 K3_END')
    rt_start(a)
    stamp(a, 0)
    a('s_load_dwordx2 s[4:5], s[0:1], 72')
    a('s_load_dwordx2 s[6:7], s[0:1], 56')
    a('s_and_b32 s20, s2, 7'); a('s_lshr_b32 s21, s2, 3')
    a('s_mul_i32 s22, s21, 37'); a('s_lshr_b32 s22, s22, 8')
    a('s_mul_i32 s23, s22, 7'); a('s_sub_u32 s23, s21, s23')
    a('s_lshl_b32 s20, s20, 2'); a('s_add_u32 s22, s22, s20')
    a('v_lshrrev_b32 v1, 6, v0')
    a('v_and_b32 v2, 63, v0')
    a('v_readfirstlane_b32 s32, v1')
    a('s_and_b32 s24, s32, 3')
    a('s_and_b32 s25, s24, 1')
    a('s_lshr_b32 s26, s24, 1')
    a('v_lshlrev_b32 v3, 4, v2')
    a('s_cmp_lt_u32 s32, 4')
    a('s_cbranch_scc1 K3_COMPUTE')
    a('s_lshl_b32 s27, s22, 1'); a('s_add_u32 s27, s27, s24'); a('s_lshl_b32 s27, s27, 16'); a(f's_add_u32 s27, s27, {OF_OFF}')
    a('s_lshl_b32 s28, s23, 1'); a('s_add_u32 s28, s28, s24'); a('s_sub_u32 s28, s28, 2'); a('s_lshl_b32 s28, s28, 16'); a(f's_add_u32 s28, s28, {WOF_OFF}')
    a('s_cmp_lt_u32 s24, 2')
    a('s_cselect_b32 s27, s27, s28')
    a('s_lshl_b32 s29, s24, 13')
    a('s_waitcnt lgkmcnt(0)')
    srd(a, 8, 4, 5, WS_BYTES)
    def dma_stage(st):
        buf = (st % K3_NB) * 32768
        for half in range(2):
            a(f's_add_u32 s30, s29, {buf + half*4096}')
            a('s_mov_b32 m0, s30')
            a(f's_add_u32 s31, s27, {st*8192 + half*4096}')
            for q in range(4):
                a.vmem(f'buffer_load_dwordx4 v3, s[8:11], s31 offen offset:{q*1024} lds', f'st{st}')
    for st in range(2): dma_stage(st)
    nxt = 2
    for st in range(8):
        a.vm_wait_tag(f'st{st}')
        a('s_barrier')
        lim = max(K3_NB - 1, st - 2 + K3_NB)
        cnt = 0
        while nxt < 8 and nxt <= lim and cnt < 2:
            dma_stage(nxt); nxt += 1; cnt += 1
    a('s_endpgm')
    a.label('K3_COMPUTE')
    a.reset_haz(); a.vm = []
    a('s_lshl_b32 s30, s25, 13')
    a('v_add_u32 v4, s30, v3')
    a('s_lshl_b32 s30, s26, 13')
    a('s_add_u32 s30, s30, 16384')
    a('v_add_u32 v5, s30, v3')
    a('v_add_u32 v6, 0x10000, v4')
    a('v_add_u32 v7, 0x10000, v5')
    a('v_and_b32 v8, 31, v2')
    a('s_lshl_b32 s30, s22, 6'); a('s_lshl_b32 s31, s25, 5'); a('s_add_u32 s30, s30, s31')
    a('v_add_u32 v8, s30, v8')
    a('s_movk_i32 s31, 896')
    a('v_mul_lo_u32 v8, v8, s31')
    a('v_lshrrev_b32 v9, 5, v2')
    a('v_lshl_add_u32 v8, v9, 4, v8')
    a('s_lshl_b32 s30, s23, 7'); a('s_lshl_b32 s31, s26, 6'); a('s_add_u32 s30, s30, s31')
    a('s_waitcnt lgkmcnt(0)')
    srd(a, 12, 6, 7, 2048*448*2)
    ACC, FA, FB = 16, 32, 48
    PD = 4
    a('v_add_u32 v10, 0x20000, v4')
    a('v_add_u32 v11, 0x20000, v5')
    def rd(ks):
        st, k = ks >> 3, ks & 7
        b = st % K3_NB
        off = (b & 1)*32768 + k*1024
        ra = ('v5', 'v7', 'v11')[b >> 1]; rb = ('v4', 'v6', 'v10')[b >> 1]
        a(f'ds_read_b128 {vr(FA+(ks%PD)*4,4)}, {ra} offset:{off}')
        a(f'ds_read_b128 {vr(FB+(ks%PD)*4,4)}, {rb} offset:{off}')
    stamp(a, 1)
    a('s_barrier')
    stamp(a, 2)
    for ks in range(PD-1): rd(ks)
    for ks in range(64):
        nk = ks + PD - 1
        if nk < 64:
            if nk % 8 == 0:
                a('s_barrier')
                stamp(a, 2 + (nk >> 3))
            rd(nk)
            a(f's_waitcnt lgkmcnt({2*(PD-1)})')
        else:
            a(f's_waitcnt lgkmcnt({2*(63-ks)})')
        c = '0' if ks == 0 else vr(ACC,16)
        a(f'v_mfma_f32_32x32x16_bf16 {vr(ACC,16)}, {vr(FA+(ks%PD)*4,4)}, {vr(FB+(ks%PD)*4,4)}, {c}')
    stamp(a, 10)
    for i in range(8): a(f'v_cvt_pk_bf16_f32 v{ACC+i}, v{ACC+2*i}, v{ACC+2*i+1}')
    for p in range(2):
        b = ACC + 4*p
        a(f'v_permlane32_swap_b32 v{b}, v{b+2}')
        a(f'v_permlane32_swap_b32 v{b+1}, v{b+3}')
    for p in range(2):
        b = ACC + 4*p
        a(f'buffer_store_dwordx4 {vr(b,4)}, v8, s[12:15], s30 offen offset:{32*p}')
    if STAMP: a('s_waitcnt vmcnt(0)')
    stamp(a, 11)
    if not os.environ.get('HDBG'): stamp_flush(a, 12, 's32')
    rt_end(a, 2, 's32')
    a.label('K3_END')
    a('s_endpgm')
    return descriptor(name, 64)

def main():
    a = Asm()
    hdr = open('cdna_kernels/%s.s.ref' % NAME).read().split('; Override launch')[0]
    out = hdr
    out += f'; @launch kernel=qkv_kernel grid=(256,1,1) block=({256+64*NLD},1,1) lds={K1_STAGE*K1_NBUF}\n'
    out += f'; @launch kernel=attn_kernel grid=(256,1,1) block=(512,1,1) lds={K2_LDS}\n'
    out += f'; @launch kernel=out_kernel grid=(224,1,1) block=(512,1,1) lds={K3_NB*32768}\n'
    out += '.amdgcn_target "amdgcn-amd-amdhsa--gfx950"\n.text\n'
    d1 = gen_k1(a); d2 = gen_k2(a); d3 = gen_k3(a)
    out += a.text()
    out += '.section .rodata,"a"\n'
    for d in (d1, d2, d3):
        out += '.p2align 6\n' + d
    open('cdna_kernels/%s.s' % NAME, 'w').write(out)
main()
```

```python
import sys, math
sys.path.insert(0, 'gen')
from asmlib import Asm

NAME = 'gated_mix__sliding_local_dilated__mha_block__prompt'
MB = 1 << 20
QF_OFF, KF_OFF, VF_OFF, OF_OFF, WOF_OFF, G_OFF = 0, 4*MB, 8*MB, 12*MB, 16*MB, 17*MB
WS_BYTES = 18*MB
import struct
def f32bits(x): return struct.unpack('<I', struct.pack('<f', x))[0]
CSCALE = f32bits((28 ** -0.5) * math.log2(math.e))
NLOG2E = f32bits(-math.log2(math.e))

def vr(b, n): return f'v[{b}:{b+n-1}]'

def srd(a, s, lo, hi, size):
    a(f's_mov_b32 s{s}, s{lo}')
    a(f's_and_b32 s{s+1}, s{hi}, 0xffff')
    a(f's_mov_b32 s{s+2}, {size}')
    a(f's_mov_b32 s{s+3}, 0x20000')

import os
STAMP = int(os.environ.get('STAMP', '0'))
STFLAG = os.environ.get('STFLAG', ' sc1')
def stamp(a, i):
    if not STAMP: return
    a('s_memtime s[90:91]')
    a('s_waitcnt lgkmcnt(0)')
    a(f's_mov_b32 s{70+i}, s90')
def stamp_flush(a, n, wavereg):
    if not STAMP: return
    a('s_load_dwordx2 s[92:93], s[0:1], 64')
    a('s_waitcnt lgkmcnt(0)')
    if os.environ.get('HDBG'):
        a('s_add_u32 s92, s92, 1024')
        a('s_addc_u32 s93, s93, 0')
    a(f's_cmp_lg_u32 s2, {STAMP-1}')
    a('s_cbranch_scc1 NOSTAMP_%d' % len(a.lines))
    lab = 'NOSTAMP_%d' % (len(a.lines)-1)
    a(f's_cmp_lg_u32 {wavereg}, 0')
    a('s_cbranch_scc1 ' + lab)
    a('v_mov_b32 v1, 0')
    for i in range(n):
        a(f's_sub_u32 s94, s{70+i}, s70')
        a('v_mov_b32 v2, s94')
        a(f'global_store_dword v1, v2, s[92:93] offset:{4*i}')
    a('s_waitcnt vmcnt(0)')
    a.label(lab)

def rt_start(a):
    if not STAMP: return
    a('s_memrealtime s[86:87]')
    a('s_waitcnt lgkmcnt(0)')
def rt_end(a, kidx, wavereg):
    if not STAMP: return
    a('s_memrealtime s[88:89]')
    a('s_load_dwordx2 s[92:93], s[0:1], 72')
    a('s_load_dwordx2 s[84:85], s[0:1], 64')
    a('s_waitcnt lgkmcnt(0)')
    lab = 'NORT_%d' % len(a.lines)
    a(f's_cmp_lg_u32 {wavereg}, 0')
    a('s_cbranch_scc1 ' + lab)
    a('s_lshl_b32 s94, s2, 3')
    a(f's_add_u32 s94, s94, {32*MB + kidx*4096}')
    a('v_mov_b32 v1, s94')
    a('v_mov_b32 v2, s86')
    a('v_mov_b32 v3, s88')
    a('global_store_dwordx2 v1, v[2:3], s[92:93]')
    if os.environ.get('HDBG'):
        a(f's_add_u32 s84, s84, {512*(2-kidx)}')
        a('s_addc_u32 s85, s85, 0')
        a('v_mov_b32 v1, 0')
        a('s_mov_b64 exec, 1')
        a(f'global_atomic_umax v1, v2, s[84:85] offset:{24+8*kidx}')
        a(f'global_atomic_umax v1, v3, s[84:85] offset:{28+8*kidx}')
        a('s_cmp_lg_u32 s2, 0')
        a('s_cbranch_scc1 ' + lab)
        a(f'global_store_dwordx2 v1, v[2:3], s[84:85] offset:{8*kidx}')
    a('s_waitcnt vmcnt(0)')
    a.label(lab)

def header(a, name):
    a.raw('.p2align 8')
    a.raw(f'.globl {name}')
    a.raw(f'.type {name},@function')
    a.label(name)
    a.reset_haz(); a.vm = []

def descriptor(name, vgpr, sgpr=96):
    acc = (vgpr + 3) // 4 * 4
    return f""".amdhsa_kernel {name}
  .amdhsa_next_free_vgpr {vgpr}
  .amdhsa_next_free_sgpr {sgpr}
  .amdhsa_accum_offset {acc}
  .amdhsa_group_segment_fixed_size 0
  .amdhsa_kernarg_size 80
  .amdhsa_user_sgpr_count 2
  .amdhsa_user_sgpr_kernarg_segment_ptr 1
  .amdhsa_system_sgpr_workgroup_id_x 1
.end_amdhsa_kernel
"""

K1_STAGE = 40960
K1_NBUF = 3
PREF = int(os.environ.get('PREF', '2'))
NLD = int(os.environ.get('NLD', '4'))
def gen_k1(a):
    name = 'qkv_kernel'
    header(a, name)
    def l2_prefetch(loader):
        if not loader:
            a('s_cmp_eq_u32 s46, 0')
            a('s_cselect_b32 s12, s6, s24')
            a('s_cselect_b32 s13, s7, s25')
            a('s_and_b32 s13, s13, 0xffff')
            a(f's_mov_b32 s14, {448*1344*2}')
            a('s_mov_b32 s15, 0x20000')
        a('s_lshr_b32 s51, s2, 3')
        a('s_and_b32 s52, s2, 1')
        a(f's_mul_i32 s52, s52, {1024*896}')
        a(f's_mul_i32 s53, s51, {224*128}')
        a('s_add_u32 s52, s52, s53')
        a('v_and_b32 v7, 255, v0')
        a('v_lshlrev_b32 v3, 7, v7')
        a('v_mov_b32 v8, 0x40000000')
        a('v_cmp_gt_u32 vcc, 224, v7')
        a('v_cndmask_b32 v3, v8, v3, vcc')
        a.vmem('buffer_load_dword v20, v3, s[8:11], s52 offen', 'pf')
        a('s_mul_i32 s53, s51, 210')
        a('v_add_u32 v3, s53, v7')
        a('s_mov_b32 s53, 52429')
        a('v_mul_lo_u32 v4, v3, s53')
        a('v_lshrrev_b32 v4, 18, v4')
        a('v_mul_u32_u24 v5, 5, v4')
        a('v_sub_u32 v5, v3, v5')
        a('v_mul_u32_u24 v6, 896, v4')
        a('v_lshlrev_b32 v5, 7, v5')
        a('v_min_u32 v5, 444, v5')
        a('v_add_u32 v6, v6, v5')
        a('v_cmp_gt_u32 vcc, 210, v7')
        a('v_cndmask_b32 v6, v8, v6, vcc')
        a('s_and_b32 s53, s47, 4')
        a('s_mul_i32 s53, s53, 112')
        a.vmem('buffer_load_dword v21, v6, s[12:15], s53 offen', 'pf')
    a('s_cmp_ge_u32 s2, 256')
    a('s_cbranch_scc1 K1_END')
    rt_start(a)
    stamp(a, 0)
    a('s_load_dwordx4 s[4:7], s[0:1], 0')
    a('s_load_dwordx2 s[20:21], s[0:1], 16')
    a('s_load_dwordx4 s[24:27], s[0:1], 32')
    a('s_load_dwordx2 s[28:29], s[0:1], 48')
    a('s_load_dwordx2 s[30:31], s[0:1], 72')
    a('s_and_b32 s51, s2, 7')
    a('s_lshr_b32 s52, s2, 3')
    a('s_and_b32 s53, s51, 1'); a('s_lshl_b32 s53, s53, 3'); a('s_lshr_b32 s54, s52, 2'); a('s_add_u32 s44, s53, s54')
    a('s_lshr_b32 s53, s51, 1'); a('s_lshl_b32 s53, s53, 2'); a('s_and_b32 s54, s52, 3'); a('s_add_u32 s45, s53, s54')
    a('s_lshr_b32 s46, s45, 3')
    a('s_and_b32 s47, s45, 7')
    a('v_lshrrev_b32 v1, 6, v0')
    a('v_and_b32 v2, 63, v0')
    a('v_readfirstlane_b32 s59, v1')
    a('s_and_b32 s48, s59, 3')
    a('s_and_b32 s49, s48, 1')
    a('s_lshr_b32 s50, s48, 1')
    a('s_cmp_lt_u32 s59, 4')
    a('s_cbranch_scc1 K1_COMPUTE')
    a('s_sub_u32 s48, s59, 4')
    a('v_lshrrev_b32 v11, 3, v2')
    a('s_lshl_b32 s51, s44, 7')
    a('s_lshl_b32 s52, s48, 3')
    a('s_add_u32 s51, s51, s52')
    a('v_add_u32 v11, s51, v11')
    a('s_movk_i32 s52, 896')
    a('v_mul_lo_u32 v12, v11, s52')
    a('v_lshrrev_b32 v11, 4, v2')
    a('s_lshl_b32 s52, s48, 2')
    a('v_add_u32 v11, s52, v11')
    a('v_and_b32 v11, 7, v11')
    a('v_and_b32 v13, 7, v2')
    a('v_xor_b32 v11, v11, v13')
    a('v_lshl_add_u32 v12, v11, 4, v12')
    a('s_mul_i32 s52, s47, 112')
    for j in range(24//NLD):
        r = 14 + j
        a(f's_lshl_b32 s51, s48, 6')
        a(f's_add_u32 s51, s51, {64*NLD*j}')
        a(f'v_add_u32 v44, s51, v2')
        a('s_movk_i32 s53, 3121')
        a('v_mul_lo_u32 v45, v44, s53')
        a('v_lshrrev_b32 v45, 16, v45')
        a('v_mul_u32_u24 v46, 21, v45')
        a('v_sub_u32 v46, v44, v46')
        a('v_mul_u32_u24 v47, 37, v46')
        a('v_lshrrev_b32 v47, 8, v47')
        a('v_and_b32 v48, 0xfffffff0, v45')
        a('v_and_b32 v49, 3, v45')
        a('v_lshl_or_b32 v48, v49, 2, v48')
        a('v_bfe_u32 v49, v45, 2, 2')
        a('v_or_b32 v48, v48, v49')
        a('s_movk_i32 s53, 2688')
        a('v_mul_lo_u32 v48, v48, s53')
        a('s_movk_i32 s53, 784')
        a('v_mul_lo_u32 v47, v47, s53')
        a(f'v_lshl_add_u32 v{r}, v46, 4, v48')
        a(f'v_add3_u32 v{r}, v{r}, v47, s52')
    a('s_lshl_b32 s55, s48, 10')
    a('s_waitcnt lgkmcnt(0)')
    srd(a, 8, 4, 5, 2048*448*2)
    a('s_cmp_eq_u32 s46, 0')
    a('s_cselect_b32 s12, s6, s24')
    a('s_cselect_b32 s13, s7, s25')
    a('s_and_b32 s13, s13, 0xffff')
    a(f's_mov_b32 s14, {448*1344*2}')
    a('s_mov_b32 s15, 0x20000')
    def dma_stage(st):
        buf = (st % K1_NBUF) * K1_STAGE
        for j in range(16//NLD):
            a(f's_add_u32 s51, s55, {buf + j*1024*NLD}')
            a('s_mov_b32 m0, s51')
            a(f's_mov_b32 s52, {st*128 + j*8*NLD*896}')
            a.vmem('buffer_load_dwordx4 v12, s[8:11], s52 offen lds', f'st{st}')
        for j in range(24//NLD):
            a(f's_add_u32 s51, s55, {buf + 16384 + j*1024*NLD}')
            a('s_mov_b32 m0, s51')
            a(f's_mov_b32 s52, {st*64*2688}')
            a.vmem(f'buffer_load_dwordx4 v{14+j}, s[12:15], s52 offen lds', f'st{st}')
    NST = 7
    for st in range(K1_NBUF):
        dma_stage(st)
        if PREF == 2 + st: l2_prefetch(True)
    for st in range(NST):
        a.vm_wait_tag(f'st{st}')
        a('s_barrier')
        if st >= 1 and st + 2 < NST: dma_stage(st + 2)
    a('s_endpgm')
    a.label('K1_COMPUTE')
    a.reset_haz(); a.vm = []
    a('s_waitcnt lgkmcnt(0)')
    stamp(a, 12)
    srd(a, 8, 4, 5, 2048*448*2)
    srd(a, 16, 30, 31, WS_BYTES)
    srd(a, 40, 28, 29, 448*2)
    if PREF == 1: l2_prefetch(False)
    a('v_and_b32 v3, 31, v2')
    a('v_lshrrev_b32 v4, 5, v2')
    a('s_lshl_b32 s51, s2, 3')
    a('s_lshl_b32 s52, s48, 1')
    a('s_add_u32 s51, s51, s52')
    a('v_add_u32 v5, s51, v4')
    a('s_movk_i32 s52, 896')
    a('v_mul_lo_u32 v6, v5, s52')
    a('v_lshlrev_b32 v7, 5, v3')
    a('v_add_u32 v6, v6, v7')
    a('v_mov_b32 v8, 0x40000000')
    a('v_cmp_gt_u32 vcc, 28, v3')
    a('v_cndmask_b32 v6, v8, v6, vcc')
    a('v_cndmask_b32 v7, v8, v7, vcc')
    a.vmem('buffer_load_dwordx4 v[20:23], v6, s[8:11], 0 offen', 'gate')
    a.vmem('buffer_load_dwordx4 v[24:27], v6, s[8:11], 0 offen offset:16', 'gate')
    a.vmem('buffer_load_dwordx4 v[28:31], v7, s[40:43], 0 offen', 'gate')
    a.vmem('buffer_load_dwordx4 v[32:35], v7, s[40:43], 0 offen offset:16', 'gate')
    a('s_lshl_b32 s51, s2, 2')
    a('s_add_u32 s51, s51, s48')
    a('s_and_b32 s52, s51, 63')
    a('s_lshr_b32 s53, s51, 6')
    a('s_lshr_b32 s54, s52, 5')
    a('s_cmp_eq_u32 s54, 0')
    a('s_cselect_b32 s32, s20, s26')
    a('s_cselect_b32 s33, s21, s27')
    a('s_and_b32 s33, s33, 0xffff')
    a(f's_mov_b32 s34, {448*448*2}')
    a('s_mov_b32 s35, 0x20000')
    a('s_lshr_b32 s55, s52, 1'); a('s_and_b32 s55, s55, 15')
    a('s_and_b32 s56, s52, 1')
    a('s_mul_i32 s55, s55, 28')
    a('s_lshl_b32 s57, s56, 4')
    a('s_add_u32 s55, s55, s57')
    a('v_lshlrev_b32 v9, 2, v4')
    a('v_add_u32 v9, s55, v9')
    a('s_movk_i32 s52, 896')
    a('v_mul_lo_u32 v9, v9, s52')
    a('s_lshl_b32 s53, s53, 6')
    a('v_lshlrev_b32 v10, 1, v3')
    a('v_add3_u32 v9, v9, v10, s53')
    a(f'v_add_u32 v10, {8*896}, v9')
    a('v_and_b32 v11, s56, v4')
    a('v_cmp_eq_u32 vcc, 0, v11')
    a('v_cndmask_b32 v10, v8, v10, vcc')
    a('s_cmp_ge_u32 s2, 224')
    a('s_cselect_b32 s58, 0x40000000, 0')
    for j in range(4):
        a.vmem(f'buffer_load_ushort v{36+j}, v9, s[32:35], s58 offen offset:{896*j}', 'wo')
    for j in range(4):
        a.vmem(f'buffer_load_ushort v{40+j}, v10, s[32:35], s58 offen offset:{896*j}', 'wo')
    stamp(a, 13)
    ACC = 64
    XF = 18
    WF = 34
    for i in range(96):
        a(f'v_mov_b32 v{ACC+i}, 0')
    a.vm_wait_tag('gate')
    a('v_mov_b32 v44, 0')
    for i in range(8):
        xs, gs = 20 + i, 28 + i
        a(f'v_lshlrev_b32 v45, 16, v{xs}')
        a(f'v_and_b32 v46, 0xffff0000, v{xs}')
        a(f'v_lshlrev_b32 v47, 16, v{gs}')
        a(f'v_and_b32 v48, 0xffff0000, v{gs}')
        a('v_mul_f32 v45, v45, v47')
        a('v_mul_f32 v46, v46, v48')
        a('v_cvt_pk_bf16_f32 v45, v45, v46')
        a('v_lshlrev_b32 v46, 16, v45')
        a('v_and_b32 v45, 0xffff0000, v45')
        a('v_add_f32 v44, v44, v46')
        a('v_add_f32 v44, v44, v45')
    for off in (0x041F, 0x081F, 0x101F, 0x201F, 0x401F):
        a(f'ds_swizzle_b32 v45, v44 offset:{off}')
        a('s_waitcnt lgkmcnt(0)')
        a('v_add_f32 v44, v44, v45')
    a('v_cvt_pk_bf16_f32 v44, v44, v44')
    a('v_lshlrev_b32 v44, 16, v44')
    a(f'v_mul_f32 v44, {NLOG2E}, v44')
    a('v_exp_f32 v44, v44')
    a('v_add_f32 v44, 1.0, v44')
    a('v_rcp_f32 v44, v44')
    a('v_cvt_pk_bf16_f32 v44, v44, v44')
    a('v_lshlrev_b32 v44, 16, v44')
    a('v_lshlrev_b32 v45, 2, v5')
    a(f'v_add_u32 v45, {G_OFF}, v45')
    a('v_cmp_eq_u32 vcc, 0, v3')
    a('v_cndmask_b32 v45, v8, v45, vcc')
    a.vmem('buffer_store_dword v44, v45, s[16:19], 0 offen', 'gst')
    a.vm_wait_tag('wo')
    for j in range(4):
        a(f'v_lshl_or_b32 v{44+j}, v{37+2*j}, 16, v{36+2*j}')
    a('s_lshl_b32 s51, s2, 12')
    a(f's_add_u32 s51, s51, {WOF_OFF}')
    a('s_add_u32 s51, s51, s58')
    a('v_lshlrev_b32 v48, 4, v0')
    a.vmem('buffer_store_dwordx4 v[44:47], v48, s[16:19], s51 offen', 'gst')
    a('v_and_b32 v3, 31, v2')
    a('v_lshrrev_b32 v4, 5, v2')
    a('v_bfe_u32 v5, v3, 1, 3')
    a('s_lshl_b32 s51, s49, 13')
    a('v_lshlrev_b32 v6, 7, v3')
    a('v_add_u32 v6, s51, v6')
    for s in range(4):
        a(f'v_add_u32 v7, {2*s}, v4')
        a('v_xor_b32 v7, v7, v5')
        a(f'v_lshl_add_u32 v{8+s}, v7, 4, v6')
    a('v_bfe_u32 v5, v2, 2, 2')
    a('v_lshlrev_b32 v5, 2, v5')
    a('v_lshl_add_u32 v5, v4, 1, v5')
    a('v_mul_u32_u24 v5, 336, v5')
    a('v_bfe_u32 v6, v2, 4, 1')
    a('v_lshl_add_u32 v5, v6, 5, v5')
    a('v_and_b32 v6, 3, v2')
    a('v_lshl_add_u32 v5, v6, 3, v5')
    a('s_mul_i32 s51, s50, 56')
    a(f's_add_u32 s51, s51, 16384')
    a('v_add_u32 v12, s51, v5')
    def acc(which, tt): return ACC + (which*2 + tt)*16
    def rd_list(s, pb):
        l = []
        for tt in range(2):
            l.append(f'ds_read_b128 {vr(XF+pb*8+tt*4,4)}, v{13+s} offset:{tt*4096}')
        for which in range(3):
            for u in range(2):
                l.append(f'ds_read_b64_tr_b16 {vr(WF+pb*12+which*4+u*2,2)}, v17 offset:{s*5376+u*336+which*112}')
        return l
    def set_stage_addr(st):
        buf = (st % K1_NBUF) * K1_STAGE
        for s in range(4):
            a(f'v_add_u32 v{13+s}, {buf}, v{8+s}')
        a(f'v_add_u32 v17, {buf}, v12')
    def mfma_list(pb):
        l = []
        for which in range(3):
            for tt in range(2):
                xf = vr(XF+pb*8+tt*4, 4); wf = vr(WF+pb*12+which*4, 4); d = vr(acc(which, tt), 16)
                if which < 2: l.append(f'v_mfma_f32_32x32x16_bf16 {d}, {wf}, {xf}, {d}')
                else:         l.append(f'v_mfma_f32_32x32x16_bf16 {d}, {xf}, {wf}, {d}')
        return l
    set_stage_addr(0)
    stamp(a, 2)
    a('s_barrier')
    stamp(a, 3)
    for t in rd_list(0, 0): a(t)
    step = 0
    for st in range(NST):
        for s in range(4):
            pb = step & 1
            last = (st == NST-1 and s == 3)
            a('s_waitcnt lgkmcnt(0)')
            rl = []
            if s < 3:
                rl = rd_list(s+1, pb ^ 1)
            elif not last:
                a('s_barrier')
                stamp(a, 4+st)
                set_stage_addr(st+1)
                rl = rd_list(0, pb ^ 1)
            ml = mfma_list(pb)
            for i, m in enumerate(ml):
                a(m)
                for t in rl[2*i:2*i+2]: a(t)
            step += 1
    stamp(a, 10)
    a('s_lshl_b32 s51, s47, 1'); a('s_add_u32 s51, s51, s50')
    a('s_lshl_b32 s52, s46, 4'); a('s_add_u32 s51, s51, s52')
    a('s_lshl_b32 s51, s51, 17')
    a('s_lshl_b32 s52, s44, 2'); a('s_lshl_b32 s53, s49, 1'); a('s_add_u32 s52, s52, s53')
    a('s_lshl_b32 s52, s52, 11')
    a('s_add_u32 s51, s51, s52')
    a('v_lshlrev_b32 v3, 4, v2')
    a(f's_mov_b32 s56, {CSCALE}')
    a('v_cmp_gt_u32 s[60:61], 32, v2')
    a('v_and_b32 v4, 31, v2')
    a('v_cmp_eq_u32 s[62:63], 28, v4')
    a('v_mov_b32 v5, 0')
    a('v_mov_b32 v6, 0x3f803f80')
    for which in range(3):
        a(f's_add_u32 s52, s51, {which*4*MB}')
        for tt in range(2):
            b = acc(which, tt)
            if which == 0:
                for i in range(16): a(f'v_mul_f32 v{b+i}, s56, v{b+i}')
            for i in range(8):
                a(f'v_cvt_pk_bf16_f32 v{b+i}, v{b+2*i}, v{b+2*i+1}')
            if which < 2:
                a(f'v_cndmask_b32 v{b+6}, v5, v{b+6}, s[60:61]')
                a(f'v_cndmask_b32 v{b+7}, v5, v{b+7}, s[60:61]')
            else:
                for i in range(8): a(f'v_cndmask_b32 v{b+i}, v{b+i}, v6, s[62:63]')
            a.vmem(f'buffer_store_dwordx4 {vr(b,4)}, v3, s[16:19], s52 offen offset:{tt*2048}{STFLAG}', 'out')
            a.vmem(f'buffer_store_dwordx4 {vr(b+4,4)}, v3, s[16:19], s52 offen offset:{tt*2048+1024}{STFLAG}', 'out')
    if STAMP: a('s_waitcnt vmcnt(0)')
    stamp(a, 11)
    if not os.environ.get('HDBG'): stamp_flush(a, 15, 's59')
    rt_end(a, 0, 's59')
    a.label('K1_END')
    a('s_endpgm')
    return descriptor(name, 160)

K2_BUF = 32768
K2_COMB = 4*K2_BUF
K2_FLAG = K2_COMB + 4*5*1024
K2_LDS = K2_FLAG + 64
VQ, VNEG, VS, VP, VO, VK, VV = 16, 24, 40, 72, 80, 96, 112
AQ, AK, AV = 128, 136, 152
def gen_k2(a):
    name = 'attn_kernel'
    header(a, name)
    a('s_cmp_ge_u32 s2, 256')
    a('s_cbranch_scc1 K2_END')
    rt_start(a)
    stamp(a, 0)
    a('s_load_dwordx2 s[4:5], s[0:1], 72')
    a('s_and_b32 s20, s2, 15')
    a('s_lshr_b32 s21, s2, 4')
    a('v_lshrrev_b32 v1, 6, v0')
    a('v_and_b32 v2, 63, v0')
    a('v_readfirstlane_b32 s22, v1')
    a('s_and_b32 s23, s22, 3')
    a('s_lshr_b32 s24, s22, 2')
    a('s_lshl_b32 s25, s21, 2'); a('s_add_u32 s25, s25, s23')
    a('v_lshlrev_b32 v3, 4, v2')
    a('s_lshl_b32 s26, s22, 11')
    a('v_add_u32 v4, s26, v3')
    a('s_lshl_b32 s27, s24, 13')
    a('v_add_u32 v5, s27, v3')
    a('v_add_u32 v6, 0x10000, v5')
    a('s_lshl_b32 s28, s20, 17')
    a('s_add_u32 s29, s28, 0x200000')
    a('s_lshl_b32 s30, s25, 11')
    a('v_and_b32 v7, 31, v2')
    a('v_lshlrev_b32 v8, 2, v7')
    a('v_mov_b32 v10, 0')
    a(f'v_mov_b32 v11, {K2_FLAG}')
    a('ds_write_b32 v11, v10')
    a('s_waitcnt lgkmcnt(0)')
    srd(a, 8, 4, 5, WS_BYTES)
    def dma_stage(st):
        buf = (st % 4) * K2_BUF
        for reg, loff in ((KF_OFF, 0), (VF_OFF, 16384)):
            a(f's_add_u32 s36, s26, {buf + loff}')
            a('s_mov_b32 m0, s36')
            a(f's_add_u32 s37, s29, {reg + st*16384}')
            a.vmem('buffer_load_dwordx4 v4, s[8:11], s37 offen lds', f'st{st}')
            a.vmem('buffer_load_dwordx4 v4, s[8:11], s37 offen offset:1024 lds', f'st{st}')
    a('s_add_u32 s31, s29, s30')
    a.vmem(f'buffer_load_dwordx4 {vr(VQ,4)}, v3, s[8:11], s31 offen', 'st0')
    a.vmem(f'buffer_load_dwordx4 {vr(VQ+4,4)}, v3, s[8:11], s31 offen offset:1024', 'st0')
    dma_stage(0)
    a('s_lshl_b32 s31, s25, 7')
    a(f's_add_u32 s31, s31, {G_OFF}')
    a.vmem('buffer_load_dword v9, v8, s[8:11], s31 offen', 'st1')
    dma_stage(1)
    a('s_add_u32 s31, s28, s30')
    a('s_sub_u32 s32, s31, 2048')
    a('s_cmp_eq_u32 s25, 0')
    a('s_cselect_b32 s32, s31, s32')
    a('s_cselect_b32 s33, 1000, 32')
    a('s_cmp_eq_u32 s24, 0')
    a('s_cselect_b32 s31, 0x40000000, s31')
    a('s_cselect_b32 s32, 0x40000000, s32')
    a(f's_add_u32 s34, s32, {KF_OFF}')
    a(f's_add_u32 s35, s31, {KF_OFF}')
    a(f's_add_u32 s44, s32, {VF_OFF}')
    a(f's_add_u32 s45, s31, {VF_OFF}')
    deferred = [
        lambda: dma_stage(2),
        lambda: dma_stage(3),
        lambda: (a.vmem(f'buffer_load_dwordx4 {vr(AQ,4)}, v3, s[8:11], s31 offen', 'a'),
                 a.vmem(f'buffer_load_dwordx4 {vr(AQ+4,4)}, v3, s[8:11], s31 offen offset:1024', 'a'),
                 a.vmem(f'buffer_load_dwordx4 {vr(AK,4)}, v3, s[8:11], s34 offen', 'a'),
                 a.vmem(f'buffer_load_dwordx4 {vr(AK+4,4)}, v3, s[8:11], s34 offen offset:1024', 'a')),
        lambda: (a.vmem(f'buffer_load_dwordx4 {vr(AK+8,4)}, v3, s[8:11], s35 offen', 'a'),
                 a.vmem(f'buffer_load_dwordx4 {vr(AK+12,4)}, v3, s[8:11], s35 offen offset:1024', 'a'),
                 a.vmem(f'buffer_load_dwordx4 {vr(AV,4)}, v3, s[8:11], s44 offen', 'a')),
        lambda: (a.vmem(f'buffer_load_dwordx4 {vr(AV+4,4)}, v3, s[8:11], s44 offen offset:1024', 'a'),
                 a.vmem(f'buffer_load_dwordx4 {vr(AV+8,4)}, v3, s[8:11], s45 offen', 'a'),
                 a.vmem(f'buffer_load_dwordx4 {vr(AV+12,4)}, v3, s[8:11], s45 offen offset:1024', 'a')),
    ]

    def finalize(gate_expr_reg, br):
        a(f'v_mov_b32 v13, v{VO+12}')
        a(f'v_mov_b32 v14, v{VO+12}')
        a('v_permlane32_swap_b32 v13, v14')
        a('v_rcp_f32 v14, v14')
        a(f'v_mul_f32 v14, v14, v{gate_expr_reg}')
        for r in range(16): a(f'v_mul_f32 v{VO+r}, v14, v{VO+r}')
        for i in range(8): a(f'v_cvt_pk_bf16_f32 v{VO+i}, v{VO+2*i}, v{VO+2*i+1}')
        a('v_cmp_gt_u32 vcc, 32, v2')
        a('v_mov_b32 v13, 0')
        a(f'v_cndmask_b32 v{VO+6}, v13, v{VO+6}, vcc')
        a(f'v_cndmask_b32 v{VO+7}, v13, v{VO+7}, vcc')
        a('s_lshl_b32 s38, s25, 16')
        a('s_lshl_b32 s39, s20, 11')
        a('s_add_u32 s38, s38, s39')
        a(f's_add_u32 s38, s38, {OF_OFF + br*32768}')
        a(f'buffer_store_dwordx4 {vr(VO,4)}, v3, s[8:11], s38 offen{STFLAG}')
        a(f'buffer_store_dwordx4 {vr(VO+4,4)}, v3, s[8:11], s38 offen offset:1024{STFLAG}')

    def lds_tile(idx, isv, t):
        st, i = idx >> 2, idx & 3
        b = st % 4
        base = 'v5' if b < 2 else 'v6'
        off = (b & 1) * K2_BUF + (16384 if isv else 0) + i*2048 + t*1024
        return base, off
    def rdK(idx):
        for t in range(2):
            base, off = lds_tile(idx, False, t)
            a(f'ds_read_b128 {vr(VK+(idx&1)*8+t*4,4)}, {base} offset:{off}')
    def rdV(idx):
        for t in range(2):
            base, off = lds_tile(idx, True, t)
            a(f'ds_read_b128 {vr(VV+(idx&1)*8+t*4,4)}, {base} offset:{off}')
    def stage_sync(st):
        a.vm_wait_tag(f'st{st}')
        a('s_barrier')
        if st >= 2 and st + 2 < 8: dma_stage(st + 2)
    NT = 32
    def smfma(idx, cneg, part):
        d = vr(VS+(idx&1)*16, 16); k = VK+(idx&1)*8
        c = vr(VNEG,16) if cneg else '0'
        if part == 0: a(f'v_mfma_f32_32x32x16_bf16 {d}, {vr(k,4)}, {vr(VQ,4)}, {c}')
        else:         a(f'v_mfma_f32_32x32x16_bf16 {d}, {vr(k+4,4)}, {vr(VQ+4,4)}, {d}')
    def pv(idx, first, part):
        v = VV+(idx&1)*8
        c = '0' if first else vr(VO,16)
        if part == 0: a(f'v_mfma_f32_32x32x16_bf16 {vr(VO,16)}, {vr(v,4)}, {vr(VP,4)}, {c}')
        else:         a(f'v_mfma_f32_32x32x16_bf16 {vr(VO,16)}, {vr(v+4,4)}, {vr(VP+4,4)}, {vr(VO,16)}')
    def tilemax(sb, dst):
        a(f'v_max3_f32 v{dst}, v{sb}, v{sb+1}, v{sb+2}')
        for r in range(3, 15, 2):
            a(f'v_max3_f32 v{dst}, v{dst}, v{sb+r}, v{sb+r+1}')
        a(f'v_max_f32 v{dst}, v{dst}, v{sb+15}')
        a(f'v_mov_b32 v13, v{dst}')
        a(f'v_permlane32_swap_b32 v{dst}, v13')
        a(f'v_max_f32 v{dst}, v{dst}, v13')
    stamp(a, 1)
    stage_sync(0)
    stamp(a, 2)
    rdK(0)
    rdK(1)
    a('s_waitcnt lgkmcnt(2)')
    d = vr(VS+16, 16)
    a(f'v_mfma_f32_32x32x16_bf16 {d}, {vr(VK,4)}, {vr(VQ,4)}, 0')
    a(f'v_mfma_f32_32x32x16_bf16 {d}, {vr(VK+4,4)}, {vr(VQ+4,4)}, {d}')
    rdV(0)
    tilemax(VS+16, 12)
    for r in range(16): a(f'v_sub_f32 v{VNEG+r}, 0, v12')
    smfma(0, True, 0); smfma(0, True, 1)
    def quarter(sb, q):
        for i in (2*q, 2*q+1):
            a(f'v_exp_f32 v{sb+2*i}, v{sb+2*i}')
            a(f'v_exp_f32 v{sb+2*i+1}, v{sb+2*i+1}')
        for i in (2*q, 2*q+1):
            a(f'v_cvt_pk_bf16_f32 v{VP+i}, v{sb+2*i}, v{sb+2*i+1}')
    for idx in range(NT):
        sb = VS + (idx&1)*16
        n_out = 2
        if idx + 1 < NT:
            a('s_waitcnt lgkmcnt(2)')
            smfma(idx+1, True, 0)
        if idx + 2 < NT:
            if (idx + 2) % 4 == 0:
                stage_sync((idx+2) >> 2)
                stamp(a, 2 + ((idx+2) >> 2))
            rdK(idx+2); n_out += 2
        quarter(sb, 0)
        if idx > 0: pv(idx-1, False, 1)
        if idx + 1 < NT:
            rdV(idx+1); n_out += 2
        quarter(sb, 1)
        if idx + 1 < NT: smfma(idx+1, True, 1)
        if idx < len(deferred): deferred[idx]()
        quarter(sb, 2)
        a(f's_waitcnt lgkmcnt({n_out-2})')
        pv(idx, idx == 0, 0)
        quarter(sb, 3)
    pv(NT-1, False, 1)
    stamp(a, 10)
    a('v_sub_f32 v15, 1.0, v9')
    a(f'v_add_f32 v13, |v{VO}|, |v{VO+1}|')
    for r in range(2, 16): a(f'v_add_f32 v13, v13, |v{VO+r}|')
    a('v_mov_b32 v14, 0x7b800000')
    a('v_cmp_nlt_f32 vcc, v13, v14')
    a('s_cbranch_vccz K2_OKFAST')
    a('v_mov_b32 v10, 1')
    a(f'v_mov_b32 v11, {K2_FLAG}')
    a('ds_write_b32 v11, v10')
    a.label('K2_OKFAST')
    def combine(tag):
        a('s_mul_i32 s38, s23, %d' % (5*1024))
        a(f's_add_u32 s38, s38, {K2_COMB}')
        a('v_add_u32 v10, s38, v3')
        a('s_cmp_eq_u32 s24, 0')
        a(f's_cbranch_scc1 K2_C1_{tag}')
        for r in range(4): a(f'ds_write_b128 v10, {vr(VO+4*r,4)} offset:{1024*r}')
        a(f'ds_write_b32 v10, v12 offset:{4096}')
        a.label(f'K2_C1_{tag}')
        a('s_waitcnt lgkmcnt(0)')
        a('s_barrier')
    combine('F')
    a(f'v_mov_b32 v11, {K2_FLAG}')
    a('ds_read_b32 v11, v11')
    a('s_waitcnt lgkmcnt(0)')
    a('v_readfirstlane_b32 s38, v11')
    a('s_cmp_eq_u32 s38, 0')
    a('s_cbranch_scc1 K2_MERGE')
    a('s_barrier')
    a.vm_wait_all()
    for st in range(4): dma_stage(st)
    a('v_mov_b32 v12, 0xff7fffff')
    for r in range(16): a(f'v_mov_b32 v{VO+r}, 0')
    for idx in range(NT):
        if idx % 4 == 0: stage_sync(idx >> 2)
        rdK(idx); rdV(idx)
        a('s_waitcnt lgkmcnt(0)')
        smfma(idx, False, 0); smfma(idx, False, 1)
        sb = VS + (idx&1)*16
        tilemax(sb, 11)
        a('v_max_f32 v11, v11, v12')
        a('v_sub_f32 v10, v12, v11')
        a('v_exp_f32 v10, v10')
        a('v_mov_b32 v12, v11')
        for r in range(16):
            a(f'v_sub_f32 v{sb+r}, v{sb+r}, v11')
            a(f'v_exp_f32 v{sb+r}, v{sb+r}')
        for i in range(8): a(f'v_cvt_pk_bf16_f32 v{VP+i}, v{sb+2*i}, v{sb+2*i+1}')
        for r in range(16): a(f'v_mul_f32 v{VO+r}, v10, v{VO+r}')
        pv(idx, False, 0); pv(idx, False, 1)
    a('s_barrier')
    combine('S')
    a.label('K2_MERGE')
    a.reset_haz(); a.nop(16)
    a('s_waitcnt vmcnt(0)')
    a('s_cmp_eq_u32 s24, 0')
    a('s_cbranch_scc0 K2_ABR')
    for r in range(4): a(f'ds_read_b128 {vr(VS+4*r,4)}, v10 offset:{1024*r}')
    a(f'ds_read_b32 v11, v10 offset:{4096}')
    a('s_waitcnt lgkmcnt(0)')
    a('v_max_f32 v13, v11, v12')
    a('v_sub_f32 v11, v11, v13')
    a('v_sub_f32 v12, v12, v13')
    a('v_exp_f32 v11, v11')
    a('v_exp_f32 v12, v12')
    for r in range(16):
        a(f'v_mul_f32 v{VO+r}, v12, v{VO+r}')
        a(f'v_fmac_f32 v{VO+r}, v11, v{VS+r}')
    finalize(15, 1)
    a('s_waitcnt vmcnt(0)')
    stamp(a, 11)
    if not os.environ.get('HDBG'): stamp_flush(a, 12, 's22')
    rt_end(a, 1, 's22')
    a('s_endpgm')
    a.label('K2_ABR')
    a.reset_haz(); a.nop(4)
    S0, S1 = VS, VS+16
    a(f'v_mfma_f32_32x32x16_bf16 {vr(S0,16)}, {vr(AK,4)}, {vr(AQ,4)}, 0')
    a(f'v_mfma_f32_32x32x16_bf16 {vr(S0,16)}, {vr(AK+4,4)}, {vr(AQ+4,4)}, {vr(S0,16)}')
    a(f'v_mfma_f32_32x32x16_bf16 {vr(S1,16)}, {vr(AK+8,4)}, {vr(AQ,4)}, 0')
    a(f'v_mfma_f32_32x32x16_bf16 {vr(S1,16)}, {vr(AK+12,4)}, {vr(AQ+4,4)}, {vr(S1,16)}')
    a('v_lshrrev_b32 v10, 5, v2')
    a('v_lshlrev_b32 v10, 2, v10')
    a('v_sub_u32 v10, v7, v10')
    a('v_add_u32 v11, s33, v10')
    a('v_mov_b32 v12, 0xff800000')
    for ti, (sb, db) in enumerate(((S0, 11), (S1, 10))):
        for r in range(16):
            kofs = (r & 3) + 8*(r >> 2)
            a(f'v_subrev_u32 v13, {kofs}, v{db}')
            a('v_and_b32 v14, 1, v13')
            a('v_lshl_or_b32 v13, v14, 8, v13')
            a(f'v_cmp_gt_u32 s[{48+2*(r&3)}:{49+2*(r&3)}], 15, v13')
            if r >= 1:
                rr = r - 1
                a(f'v_cndmask_b32 v{sb+rr}, v12, v{sb+rr}, s[{48+2*(rr&3)}:{49+2*(rr&3)}]')
        a(f'v_cndmask_b32 v{sb+15}, v12, v{sb+15}, s[54:55]')
    a(f'v_max3_f32 v13, v{S0}, v{S0+1}, v{S0+2}')
    for r in range(3, 31, 2):
        a(f'v_max3_f32 v13, v13, v{S0+r}, v{S0+r+1}')
    a(f'v_max_f32 v13, v13, v{S0+31}')
    a('v_mov_b32 v14, v13')
    a('v_permlane32_swap_b32 v13, v14')
    a('v_max_f32 v13, v13, v14')
    for r in range(32):
        a(f'v_sub_f32 v{S0+r}, v{S0+r}, v13')
        a(f'v_exp_f32 v{S0+r}, v{S0+r}')
    for i in range(16):
        a(f'v_cvt_pk_bf16_f32 v{S0+i}, v{S0+2*i}, v{S0+2*i+1}')
    a(f'v_mfma_f32_32x32x16_bf16 {vr(VO,16)}, {vr(AV,4)}, {vr(S0,4)}, 0')
    a(f'v_mfma_f32_32x32x16_bf16 {vr(VO,16)}, {vr(AV+4,4)}, {vr(S0+4,4)}, {vr(VO,16)}')
    a(f'v_mfma_f32_32x32x16_bf16 {vr(VO,16)}, {vr(AV+8,4)}, {vr(S0+8,4)}, {vr(VO,16)}')
    a(f'v_mfma_f32_32x32x16_bf16 {vr(VO,16)}, {vr(AV+12,4)}, {vr(S0+12,4)}, {vr(VO,16)}')
    finalize(9, 0)
    a.label('K2_END')
    a('s_endpgm')
    return descriptor(name, 168)

K3_NB = 5
def gen_k3(a):
    name = 'out_kernel'
    header(a, name)
    a('s_cmp_ge_u32 s2, 224')
    a('s_cbranch_scc1 K3_END')
    rt_start(a)
    stamp(a, 0)
    a('s_load_dwordx2 s[4:5], s[0:1], 72')
    a('s_load_dwordx2 s[6:7], s[0:1], 56')
    a('s_and_b32 s20, s2, 7'); a('s_lshr_b32 s21, s2, 3')
    a('s_mul_i32 s22, s21, 37'); a('s_lshr_b32 s22, s22, 8')
    a('s_mul_i32 s23, s22, 7'); a('s_sub_u32 s23, s21, s23')
    a('s_lshl_b32 s20, s20, 2'); a('s_add_u32 s22, s22, s20')
    a('v_lshrrev_b32 v1, 6, v0')
    a('v_and_b32 v2, 63, v0')
    a('v_readfirstlane_b32 s32, v1')
    a('s_and_b32 s24, s32, 3')
    a('s_and_b32 s25, s24, 1')
    a('s_lshr_b32 s26, s24, 1')
    a('v_lshlrev_b32 v3, 4, v2')
    a('s_cmp_lt_u32 s32, 4')
    a('s_cbranch_scc1 K3_COMPUTE')
    a('s_lshl_b32 s27, s22, 1'); a('s_add_u32 s27, s27, s24'); a('s_lshl_b32 s27, s27, 16'); a(f's_add_u32 s27, s27, {OF_OFF}')
    a('s_lshl_b32 s28, s23, 1'); a('s_add_u32 s28, s28, s24'); a('s_sub_u32 s28, s28, 2'); a('s_lshl_b32 s28, s28, 16'); a(f's_add_u32 s28, s28, {WOF_OFF}')
    a('s_cmp_lt_u32 s24, 2')
    a('s_cselect_b32 s27, s27, s28')
    a('s_lshl_b32 s29, s24, 13')
    a('s_waitcnt lgkmcnt(0)')
    srd(a, 8, 4, 5, WS_BYTES)
    def dma_stage(st):
        buf = (st % K3_NB) * 32768
        for half in range(2):
            a(f's_add_u32 s30, s29, {buf + half*4096}')
            a('s_mov_b32 m0, s30')
            a(f's_add_u32 s31, s27, {st*8192 + half*4096}')
            for q in range(4):
                a.vmem(f'buffer_load_dwordx4 v3, s[8:11], s31 offen offset:{q*1024} lds', f'st{st}')
    for st in range(2): dma_stage(st)
    nxt = 2
    for st in range(8):
        a.vm_wait_tag(f'st{st}')
        a('s_barrier')
        lim = max(K3_NB - 1, st - 2 + K3_NB)
        cnt = 0
        while nxt < 8 and nxt <= lim and cnt < 2:
            dma_stage(nxt); nxt += 1; cnt += 1
    a('s_endpgm')
    a.label('K3_COMPUTE')
    a.reset_haz(); a.vm = []
    a('s_lshl_b32 s30, s25, 13')
    a('v_add_u32 v4, s30, v3')
    a('s_lshl_b32 s30, s26, 13')
    a('s_add_u32 s30, s30, 16384')
    a('v_add_u32 v5, s30, v3')
    a('v_add_u32 v6, 0x10000, v4')
    a('v_add_u32 v7, 0x10000, v5')
    a('v_and_b32 v8, 31, v2')
    a('s_lshl_b32 s30, s22, 6'); a('s_lshl_b32 s31, s25, 5'); a('s_add_u32 s30, s30, s31')
    a('v_add_u32 v8, s30, v8')
    a('s_movk_i32 s31, 896')
    a('v_mul_lo_u32 v8, v8, s31')
    a('v_lshrrev_b32 v9, 5, v2')
    a('v_lshl_add_u32 v8, v9, 4, v8')
    a('s_lshl_b32 s30, s23, 7'); a('s_lshl_b32 s31, s26, 6'); a('s_add_u32 s30, s30, s31')
    a('s_waitcnt lgkmcnt(0)')
    srd(a, 12, 6, 7, 2048*448*2)
    ACC, FA, FB = 16, 32, 48
    PD = 4
    a('v_add_u32 v10, 0x20000, v4')
    a('v_add_u32 v11, 0x20000, v5')
    def rd(ks):
        st, k = ks >> 3, ks & 7
        b = st % K3_NB
        off = (b & 1)*32768 + k*1024
        ra = ('v5', 'v7', 'v11')[b >> 1]; rb = ('v4', 'v6', 'v10')[b >> 1]
        a(f'ds_read_b128 {vr(FA+(ks%PD)*4,4)}, {ra} offset:{off}')
        a(f'ds_read_b128 {vr(FB+(ks%PD)*4,4)}, {rb} offset:{off}')
    stamp(a, 1)
    a('s_barrier')
    stamp(a, 2)
    for ks in range(PD-1): rd(ks)
    for ks in range(64):
        nk = ks + PD - 1
        if nk < 64:
            if nk % 8 == 0:
                a('s_barrier')
                stamp(a, 2 + (nk >> 3))
            rd(nk)
            a(f's_waitcnt lgkmcnt({2*(PD-1)})')
        else:
            a(f's_waitcnt lgkmcnt({2*(63-ks)})')
        c = '0' if ks == 0 else vr(ACC,16)
        a(f'v_mfma_f32_32x32x16_bf16 {vr(ACC,16)}, {vr(FA+(ks%PD)*4,4)}, {vr(FB+(ks%PD)*4,4)}, {c}')
    stamp(a, 10)
    for i in range(8): a(f'v_cvt_pk_bf16_f32 v{ACC+i}, v{ACC+2*i}, v{ACC+2*i+1}')
    for p in range(2):
        b = ACC + 4*p
        a(f'v_permlane32_swap_b32 v{b}, v{b+2}')
        a(f'v_permlane32_swap_b32 v{b+1}, v{b+3}')
    for p in range(2):
        b = ACC + 4*p
        a(f'buffer_store_dwordx4 {vr(b,4)}, v8, s[12:15], s30 offen offset:{32*p}')
    if STAMP: a('s_waitcnt vmcnt(0)')
    stamp(a, 11)
    if not os.environ.get('HDBG'): stamp_flush(a, 12, 's32')
    rt_end(a, 2, 's32')
    a.label('K3_END')
    a('s_endpgm')
    return descriptor(name, 64)

def main():
    a = Asm()
    hdr = open('cdna_kernels/%s.s.ref' % NAME).read().split('; Override launch')[0]
    out = hdr
    out += f'; @launch kernel=qkv_kernel grid=(256,1,1) block=({256+64*NLD},1,1) lds={K1_STAGE*K1_NBUF}\n'
    out += f'; @launch kernel=attn_kernel grid=(256,1,1) block=(512,1,1) lds={K2_LDS}\n'
    out += f'; @launch kernel=out_kernel grid=(224,1,1) block=(512,1,1) lds={K3_NB*32768}\n'
    out += '.amdgcn_target "amdgcn-amd-amdhsa--gfx950"\n.text\n'
    d1 = gen_k1(a); d2 = gen_k2(a); d3 = gen_k3(a)
    out += a.text()
    out += '.section .rodata,"a"\n'
    for d in (d1, d2, d3):
        out += '.p2align 6\n' + d
    open('cdna_kernels/%s.s' % NAME, 'w').write(out)
main()
```

```python
import sys, math
sys.path.insert(0, 'gen')
from asmlib import Asm

NAME = 'gated_mix__sliding_local_dilated__mha_block__prompt'
MB = 1 << 20
QF_OFF, KF_OFF, VF_OFF, OF_OFF, WOF_OFF, G_OFF = 0, 4*MB, 8*MB, 12*MB, 16*MB, 17*MB
WS_BYTES = 18*MB
import struct
def f32bits(x): return struct.unpack('<I', struct.pack('<f', x))[0]
CSCALE = f32bits((28 ** -0.5) * math.log2(math.e))
NLOG2E = f32bits(-math.log2(math.e))

def vr(b, n): return f'v[{b}:{b+n-1}]'

def srd(a, s, lo, hi, size):
    a(f's_mov_b32 s{s}, s{lo}')
    a(f's_and_b32 s{s+1}, s{hi}, 0xffff')
    a(f's_mov_b32 s{s+2}, {size}')
    a(f's_mov_b32 s{s+3}, 0x20000')

import os
STAMP = int(os.environ.get('STAMP', '0'))
STFLAG = os.environ.get('STFLAG', ' sc1')
STFLAG2 = os.environ.get('STFLAG2', ' sc1')
def stamp(a, i):
    if not STAMP: return
    a('s_memtime s[90:91]')
    a('s_waitcnt lgkmcnt(0)')
    a(f's_mov_b32 s{70+i}, s90')
def stamp_flush(a, n, wavereg):
    if not STAMP: return
    a('s_load_dwordx2 s[92:93], s[0:1], 64')
    a('s_waitcnt lgkmcnt(0)')
    if os.environ.get('HDBG'):
        a('s_add_u32 s92, s92, 1024')
        a('s_addc_u32 s93, s93, 0')
    a(f's_cmp_lg_u32 s2, {STAMP-1}')
    a('s_cbranch_scc1 NOSTAMP_%d' % len(a.lines))
    lab = 'NOSTAMP_%d' % (len(a.lines)-1)
    a(f's_cmp_lg_u32 {wavereg}, 0')
    a('s_cbranch_scc1 ' + lab)
    a('v_mov_b32 v1, 0')
    for i in range(n):
        a(f's_sub_u32 s94, s{70+i}, s70')
        a('v_mov_b32 v2, s94')
        a(f'global_store_dword v1, v2, s[92:93] offset:{4*i}')
    a('s_waitcnt vmcnt(0)')
    a.label(lab)

def rt_start(a):
    if not STAMP: return
    a('s_memrealtime s[86:87]')
    a('s_waitcnt lgkmcnt(0)')
def rt_end(a, kidx, wavereg):
    if not STAMP: return
    a('s_memrealtime s[88:89]')
    a('s_load_dwordx2 s[92:93], s[0:1], 72')
    a('s_load_dwordx2 s[84:85], s[0:1], 64')
    a('s_waitcnt lgkmcnt(0)')
    lab = 'NORT_%d' % len(a.lines)
    a(f's_cmp_lg_u32 {wavereg}, 0')
    a('s_cbranch_scc1 ' + lab)
    a('s_lshl_b32 s94, s2, 3')
    a(f's_add_u32 s94, s94, {32*MB + kidx*4096}')
    a('v_mov_b32 v1, s94')
    a('v_mov_b32 v2, s86')
    a('v_mov_b32 v3, s88')
    a('global_store_dwordx2 v1, v[2:3], s[92:93]')
    if os.environ.get('HDBG'):
        a(f's_add_u32 s84, s84, {512*(2-kidx)}')
        a('s_addc_u32 s85, s85, 0')
        a('v_mov_b32 v1, 0')
        a('s_mov_b64 exec, 1')
        a(f'global_atomic_umax v1, v2, s[84:85] offset:{24+8*kidx}')
        a(f'global_atomic_umax v1, v3, s[84:85] offset:{28+8*kidx}')
        a('s_cmp_lg_u32 s2, 0')
        a('s_cbranch_scc1 ' + lab)
        a(f'global_store_dwordx2 v1, v[2:3], s[84:85] offset:{8*kidx}')
    a('s_waitcnt vmcnt(0)')
    a.label(lab)

def header(a, name):
    a.raw('.p2align 8')
    a.raw(f'.globl {name}')
    a.raw(f'.type {name},@function')
    a.label(name)
    a.reset_haz(); a.vm = []

def descriptor(name, vgpr, sgpr=96):
    acc = (vgpr + 3) // 4 * 4
    return f""".amdhsa_kernel {name}
  .amdhsa_next_free_vgpr {vgpr}
  .amdhsa_next_free_sgpr {sgpr}
  .amdhsa_accum_offset {acc}
  .amdhsa_group_segment_fixed_size 0
  .amdhsa_kernarg_size 80
  .amdhsa_user_sgpr_count 2
  .amdhsa_user_sgpr_kernarg_segment_ptr 1
  .amdhsa_system_sgpr_workgroup_id_x 1
.end_amdhsa_kernel
"""

K1_NBUF = int(os.environ.get('K1NB', '3'))
K1_STAGE = 40960 if K1_NBUF == 3 else 38912
PREF = int(os.environ.get('PREF', '2'))
NLD = int(os.environ.get('NLD', '4'))
def gen_k1(a):
    name = 'qkv_kernel'
    header(a, name)
    def l2_prefetch(loader):
        if not loader:
            a('s_cmp_eq_u32 s46, 0')
            a('s_cselect_b32 s12, s6, s24')
            a('s_cselect_b32 s13, s7, s25')
            a('s_and_b32 s13, s13, 0xffff')
            a(f's_mov_b32 s14, {448*1344*2}')
            a('s_mov_b32 s15, 0x20000')
        a('s_lshr_b32 s51, s2, 3')
        a('s_and_b32 s52, s2, 1')
        a(f's_mul_i32 s52, s52, {1024*896}')
        a(f's_mul_i32 s53, s51, {224*128}')
        a('s_add_u32 s52, s52, s53')
        a('v_and_b32 v7, 255, v0')
        a('v_lshlrev_b32 v3, 7, v7')
        a('v_mov_b32 v8, 0x40000000')
        a('v_cmp_gt_u32 vcc, 224, v7')
        a('v_cndmask_b32 v3, v8, v3, vcc')
        a.vmem('buffer_load_dword v20, v3, s[8:11], s52 offen', 'pf')
        a('s_mul_i32 s53, s51, 210')
        a('v_add_u32 v3, s53, v7')
        a('s_mov_b32 s53, 52429')
        a('v_mul_lo_u32 v4, v3, s53')
        a('v_lshrrev_b32 v4, 18, v4')
        a('v_mul_u32_u24 v5, 5, v4')
        a('v_sub_u32 v5, v3, v5')
        a('v_mul_u32_u24 v6, 896, v4')
        a('v_lshlrev_b32 v5, 7, v5')
        a('v_min_u32 v5, 444, v5')
        a('v_add_u32 v6, v6, v5')
        a('v_cmp_gt_u32 vcc, 210, v7')
        a('v_cndmask_b32 v6, v8, v6, vcc')
        a('s_and_b32 s53, s47, 4')
        a('s_mul_i32 s53, s53, 112')
        a.vmem('buffer_load_dword v21, v6, s[12:15], s53 offen', 'pf')
    a('s_cmp_ge_u32 s2, 256')
    a('s_cbranch_scc1 K1_END')
    rt_start(a)
    stamp(a, 0)
    a('s_load_dwordx4 s[4:7], s[0:1], 0')
    a('s_load_dwordx2 s[20:21], s[0:1], 16')
    a('s_load_dwordx4 s[24:27], s[0:1], 32')
    a('s_load_dwordx2 s[28:29], s[0:1], 48')
    a('s_load_dwordx2 s[30:31], s[0:1], 72')
    a('s_and_b32 s51, s2, 7')
    a('s_lshr_b32 s52, s2, 3')
    a('s_and_b32 s53, s51, 1'); a('s_lshl_b32 s53, s53, 3'); a('s_lshr_b32 s54, s52, 2'); a('s_add_u32 s44, s53, s54')
    a('s_lshr_b32 s53, s51, 1'); a('s_lshl_b32 s53, s53, 2'); a('s_and_b32 s54, s52, 3'); a('s_add_u32 s45, s53, s54')
    a('s_lshr_b32 s46, s45, 3')
    a('s_and_b32 s47, s45, 7')
    a('v_lshrrev_b32 v1, 6, v0')
    a('v_and_b32 v2, 63, v0')
    a('v_readfirstlane_b32 s59, v1')
    a('s_and_b32 s48, s59, 3')
    a('s_and_b32 s49, s48, 1')
    a('s_lshr_b32 s50, s48, 1')
    a('s_cmp_lt_u32 s59, 4')
    a('s_cbranch_scc1 K1_COMPUTE')
    a('s_sub_u32 s48, s59, 4')
    a('v_lshrrev_b32 v11, 3, v2')
    a('s_lshl_b32 s51, s44, 7')
    a('s_lshl_b32 s52, s48, 3')
    a('s_add_u32 s51, s51, s52')
    a('v_add_u32 v11, s51, v11')
    a('s_movk_i32 s52, 896')
    a('v_mul_lo_u32 v12, v11, s52')
    a('v_lshrrev_b32 v11, 4, v2')
    a('s_lshl_b32 s52, s48, 2')
    a('v_add_u32 v11, s52, v11')
    a('v_and_b32 v11, 7, v11')
    a('v_and_b32 v13, 7, v2')
    a('v_xor_b32 v11, v11, v13')
    a('v_lshl_add_u32 v12, v11, 4, v12')
    a('s_mul_i32 s52, s47, 112')
    for j in range(24//NLD):
        r = 14 + j
        a(f's_lshl_b32 s51, s48, 6')
        a(f's_add_u32 s51, s51, {64*NLD*j}')
        a(f'v_add_u32 v44, s51, v2')
        a('s_movk_i32 s53, 3121')
        a('v_mul_lo_u32 v45, v44, s53')
        a('v_lshrrev_b32 v45, 16, v45')
        a('v_mul_u32_u24 v46, 21, v45')
        a('v_sub_u32 v46, v44, v46')
        a('v_mul_u32_u24 v47, 37, v46')
        a('v_lshrrev_b32 v47, 8, v47')
        a('v_and_b32 v48, 0xfffffff0, v45')
        a('v_and_b32 v49, 3, v45')
        a('v_lshl_or_b32 v48, v49, 2, v48')
        a('v_bfe_u32 v49, v45, 2, 2')
        a('v_or_b32 v48, v48, v49')
        a('s_movk_i32 s53, 2688')
        a('v_mul_lo_u32 v48, v48, s53')
        a('s_movk_i32 s53, 784')
        a('v_mul_lo_u32 v47, v47, s53')
        a(f'v_lshl_add_u32 v{r}, v46, 4, v48')
        a(f'v_add3_u32 v{r}, v{r}, v47, s52')
    a('s_lshl_b32 s55, s48, 10')
    a('s_waitcnt lgkmcnt(0)')
    srd(a, 8, 4, 5, 2048*448*2)
    a('s_cmp_eq_u32 s46, 0')
    a('s_cselect_b32 s12, s6, s24')
    a('s_cselect_b32 s13, s7, s25')
    a('s_and_b32 s13, s13, 0xffff')
    a(f's_mov_b32 s14, {448*1344*2}')
    a('s_mov_b32 s15, 0x20000')
    def dma_stage(st):
        buf = (st % K1_NBUF) * K1_STAGE
        for j in range(16//NLD):
            a(f's_add_u32 s51, s55, {buf + j*1024*NLD}')
            a('s_mov_b32 m0, s51')
            a(f's_mov_b32 s52, {st*128 + j*8*NLD*896}')
            a.vmem('buffer_load_dwordx4 v12, s[8:11], s52 offen lds', f'st{st}')
        for j in range(24//NLD):
            a(f's_add_u32 s51, s55, {buf + 16384 + j*1024*NLD}')
            a('s_mov_b32 m0, s51')
            if K1_NBUF > 3 and j == 5:
                a(f's_min_u32 s51, s51, {buf + 16384 + 21*1024}')
                a('s_mov_b32 m0, s51')
            a(f's_mov_b32 s52, {st*64*2688}')
            a.vmem(f'buffer_load_dwordx4 v{14+j}, s[12:15], s52 offen lds', f'st{st}')
    NST = 7
    for st in range(K1_NBUF):
        dma_stage(st)
        if PREF == 2 + st: l2_prefetch(True)
    for st in range(NST):
        a.vm_wait_tag(f'st{st}')
        a('s_barrier')
        if st >= 1 and st - 1 + K1_NBUF < NST: dma_stage(st - 1 + K1_NBUF)
    a('s_endpgm')
    a.label('K1_COMPUTE')
    a.reset_haz(); a.vm = []
    a('s_waitcnt lgkmcnt(0)')
    stamp(a, 12)
    srd(a, 8, 4, 5, 2048*448*2)
    srd(a, 16, 30, 31, WS_BYTES)
    srd(a, 40, 28, 29, 448*2)
    if PREF == 1: l2_prefetch(False)
    a('v_and_b32 v3, 31, v2')
    a('v_lshrrev_b32 v4, 5, v2')
    a('s_lshl_b32 s51, s2, 3')
    a('s_lshl_b32 s52, s48, 1')
    a('s_add_u32 s51, s51, s52')
    a('v_add_u32 v5, s51, v4')
    a('s_movk_i32 s52, 896')
    a('v_mul_lo_u32 v6, v5, s52')
    a('v_lshlrev_b32 v7, 5, v3')
    a('v_add_u32 v6, v6, v7')
    a('v_mov_b32 v8, 0x40000000')
    a('v_cmp_gt_u32 vcc, 28, v3')
    a('v_cndmask_b32 v6, v8, v6, vcc')
    a('v_cndmask_b32 v7, v8, v7, vcc')
    a.vmem('buffer_load_dwordx4 v[20:23], v6, s[8:11], 0 offen', 'gate')
    a.vmem('buffer_load_dwordx4 v[24:27], v6, s[8:11], 0 offen offset:16', 'gate')
    a.vmem('buffer_load_dwordx4 v[28:31], v7, s[40:43], 0 offen', 'gate')
    a.vmem('buffer_load_dwordx4 v[32:35], v7, s[40:43], 0 offen offset:16', 'gate')
    a('s_lshl_b32 s51, s2, 2')
    a('s_add_u32 s51, s51, s48')
    a('s_and_b32 s52, s51, 63')
    a('s_lshr_b32 s53, s51, 6')
    a('s_lshr_b32 s54, s52, 5')
    a('s_cmp_eq_u32 s54, 0')
    a('s_cselect_b32 s32, s20, s26')
    a('s_cselect_b32 s33, s21, s27')
    a('s_and_b32 s33, s33, 0xffff')
    a(f's_mov_b32 s34, {448*448*2}')
    a('s_mov_b32 s35, 0x20000')
    a('s_lshr_b32 s55, s52, 1'); a('s_and_b32 s55, s55, 15')
    a('s_and_b32 s56, s52, 1')
    a('s_mul_i32 s55, s55, 28')
    a('s_lshl_b32 s57, s56, 4')
    a('s_add_u32 s55, s55, s57')
    a('v_lshlrev_b32 v9, 2, v4')
    a('v_add_u32 v9, s55, v9')
    a('s_movk_i32 s52, 896')
    a('v_mul_lo_u32 v9, v9, s52')
    a('s_lshl_b32 s53, s53, 6')
    a('v_lshlrev_b32 v10, 1, v3')
    a('v_add3_u32 v9, v9, v10, s53')
    a(f'v_add_u32 v10, {8*896}, v9')
    a('v_and_b32 v11, s56, v4')
    a('v_cmp_eq_u32 vcc, 0, v11')
    a('v_cndmask_b32 v10, v8, v10, vcc')
    a('s_cmp_ge_u32 s2, 224')
    a('s_cselect_b32 s58, 0x40000000, 0')
    for j in range(4):
        a.vmem(f'buffer_load_ushort v{36+j}, v9, s[32:35], s58 offen offset:{896*j}', 'wo')
    for j in range(4):
        a.vmem(f'buffer_load_ushort v{40+j}, v10, s[32:35], s58 offen offset:{896*j}', 'wo')
    stamp(a, 13)
    ACC = 64
    XF = 18
    WF = 34
    for i in range(96):
        a(f'v_mov_b32 v{ACC+i}, 0')
    a.vm_wait_tag('gate')
    a('v_mov_b32 v44, 0')
    for i in range(8):
        xs, gs = 20 + i, 28 + i
        a(f'v_lshlrev_b32 v45, 16, v{xs}')
        a(f'v_and_b32 v46, 0xffff0000, v{xs}')
        a(f'v_lshlrev_b32 v47, 16, v{gs}')
        a(f'v_and_b32 v48, 0xffff0000, v{gs}')
        a('v_mul_f32 v45, v45, v47')
        a('v_mul_f32 v46, v46, v48')
        a('v_cvt_pk_bf16_f32 v45, v45, v46')
        a('v_lshlrev_b32 v46, 16, v45')
        a('v_and_b32 v45, 0xffff0000, v45')
        a('v_add_f32 v44, v44, v46')
        a('v_add_f32 v44, v44, v45')
    for off in (0x041F, 0x081F, 0x101F, 0x201F, 0x401F):
        a(f'ds_swizzle_b32 v45, v44 offset:{off}')
        a('s_waitcnt lgkmcnt(0)')
        a('v_add_f32 v44, v44, v45')
    a('v_cvt_pk_bf16_f32 v44, v44, v44')
    a('v_lshlrev_b32 v44, 16, v44')
    a(f'v_mul_f32 v44, {NLOG2E}, v44')
    a('v_exp_f32 v44, v44')
    a('v_add_f32 v44, 1.0, v44')
    a('v_rcp_f32 v44, v44')
    a('v_cvt_pk_bf16_f32 v44, v44, v44')
    a('v_lshlrev_b32 v44, 16, v44')
    a('v_lshlrev_b32 v45, 2, v5')
    a(f'v_add_u32 v45, {G_OFF}, v45')
    a('v_cmp_eq_u32 vcc, 0, v3')
    a('v_cndmask_b32 v45, v8, v45, vcc')
    a.vmem('buffer_store_dword v44, v45, s[16:19], 0 offen', 'gst')
    a.vm_wait_tag('wo')
    for j in range(4):
        a(f'v_lshl_or_b32 v{44+j}, v{37+2*j}, 16, v{36+2*j}')
    a('s_lshl_b32 s51, s2, 12')
    a(f's_add_u32 s51, s51, {WOF_OFF}')
    a('s_add_u32 s51, s51, s58')
    a('v_lshlrev_b32 v48, 4, v0')
    a.vmem('buffer_store_dwordx4 v[44:47], v48, s[16:19], s51 offen', 'gst')
    a('v_and_b32 v3, 31, v2')
    a('v_lshrrev_b32 v4, 5, v2')
    a('v_bfe_u32 v5, v3, 1, 3')
    a('s_lshl_b32 s51, s49, 13')
    a('v_lshlrev_b32 v6, 7, v3')
    a('v_add_u32 v6, s51, v6')
    for s in range(4):
        a(f'v_add_u32 v7, {2*s}, v4')
        a('v_xor_b32 v7, v7, v5')
        a(f'v_lshl_add_u32 v{8+s}, v7, 4, v6')
    a('v_bfe_u32 v5, v2, 2, 2')
    a('v_lshlrev_b32 v5, 2, v5')
    a('v_lshl_add_u32 v5, v4, 1, v5')
    a('v_mul_u32_u24 v5, 336, v5')
    a('v_bfe_u32 v6, v2, 4, 1')
    a('v_lshl_add_u32 v5, v6, 5, v5')
    a('v_and_b32 v6, 3, v2')
    a('v_lshl_add_u32 v5, v6, 3, v5')
    a('s_mul_i32 s51, s50, 56')
    a(f's_add_u32 s51, s51, 16384')
    a('v_add_u32 v12, s51, v5')
    def acc(which, tt): return ACC + (which*2 + tt)*16
    def rd_list(s, pb):
        l = []
        for tt in range(2):
            l.append(f'ds_read_b128 {vr(XF+pb*8+tt*4,4)}, v{13+s} offset:{tt*4096}')
        for which in range(3):
            for u in range(2):
                l.append(f'ds_read_b64_tr_b16 {vr(WF+pb*12+which*4+u*2,2)}, v17 offset:{s*5376+u*336+which*112}')
        return l
    def set_stage_addr(st):
        buf = (st % K1_NBUF) * K1_STAGE
        for s in range(4):
            a(f'v_add_u32 v{13+s}, {buf}, v{8+s}')
        a(f'v_add_u32 v17, {buf}, v12')
    def mfma_list(pb):
        l = []
        for which in range(3):
            for tt in range(2):
                xf = vr(XF+pb*8+tt*4, 4); wf = vr(WF+pb*12+which*4, 4); d = vr(acc(which, tt), 16)
                if which < 2: l.append(f'v_mfma_f32_32x32x16_bf16 {d}, {wf}, {xf}, {d}')
                else:         l.append(f'v_mfma_f32_32x32x16_bf16 {d}, {xf}, {wf}, {d}')
        return l
    set_stage_addr(0)
    stamp(a, 2)
    a('s_barrier')
    stamp(a, 3)
    for t in rd_list(0, 0): a(t)
    step = 0
    for st in range(NST):
        for s in range(4):
            pb = step & 1
            last = (st == NST-1 and s == 3)
            a('s_waitcnt lgkmcnt(0)')
            rl = []
            if s < 3:
                rl = rd_list(s+1, pb ^ 1)
            elif not last:
                a('s_barrier')
                stamp(a, 4+st)
                set_stage_addr(st+1)
                rl = rd_list(0, pb ^ 1)
            ml = mfma_list(pb)
            for i, m in enumerate(ml):
                a(m)
                for t in rl[2*i:2*i+2]: a(t)
            step += 1
    stamp(a, 10)
    a('s_lshl_b32 s51, s47, 1'); a('s_add_u32 s51, s51, s50')
    a('s_lshl_b32 s52, s46, 4'); a('s_add_u32 s51, s51, s52')
    a('s_lshl_b32 s51, s51, 17')
    a('s_lshl_b32 s52, s44, 2'); a('s_lshl_b32 s53, s49, 1'); a('s_add_u32 s52, s52, s53')
    a('s_lshl_b32 s52, s52, 11')
    a('s_add_u32 s51, s51, s52')
    a('v_lshlrev_b32 v3, 4, v2')
    a(f's_mov_b32 s56, {CSCALE}')
    a('v_cmp_gt_u32 s[60:61], 32, v2')
    a('v_and_b32 v4, 31, v2')
    a('v_cmp_eq_u32 s[62:63], 28, v4')
    a('v_mov_b32 v5, 0')
    a('v_mov_b32 v6, 0x3f803f80')
    for which in range(3):
        a(f's_add_u32 s52, s51, {which*4*MB}')
        for tt in range(2):
            b = acc(which, tt)
            if which == 0:
                for i in range(16): a(f'v_mul_f32 v{b+i}, s56, v{b+i}')
            for i in range(8):
                a(f'v_cvt_pk_bf16_f32 v{b+i}, v{b+2*i}, v{b+2*i+1}')
            if which < 2:
                a(f'v_cndmask_b32 v{b+6}, v5, v{b+6}, s[60:61]')
                a(f'v_cndmask_b32 v{b+7}, v5, v{b+7}, s[60:61]')
            else:
                for i in range(8): a(f'v_cndmask_b32 v{b+i}, v{b+i}, v6, s[62:63]')
            a.vmem(f'buffer_store_dwordx4 {vr(b,4)}, v3, s[16:19], s52 offen offset:{tt*2048}{STFLAG}', 'out')
            a.vmem(f'buffer_store_dwordx4 {vr(b+4,4)}, v3, s[16:19], s52 offen offset:{tt*2048+1024}{STFLAG}', 'out')
    if STAMP: a('s_waitcnt vmcnt(0)')
    stamp(a, 11)
    if not os.environ.get('HDBG'): stamp_flush(a, 15, 's59')
    rt_end(a, 0, 's59')
    a.label('K1_END')
    a('s_endpgm')
    return descriptor(name, 160)

K2_BUF = 32768
K2_COMB = 4*K2_BUF
K2_FLAG = K2_COMB + 4*5*1024
K2_LDS = K2_FLAG + 64
VQ, VNEG, VS, VP, VO, VK, VV = 16, 24, 40, 72, 80, 96, 112
AQ, AK, AV = 128, 136, 152
def gen_k2(a):
    name = 'attn_kernel'
    header(a, name)
    a('s_cmp_ge_u32 s2, 256')
    a('s_cbranch_scc1 K2_END')
    rt_start(a)
    stamp(a, 0)
    a('s_load_dwordx2 s[4:5], s[0:1], 72')
    a('s_and_b32 s20, s2, 15')
    a('s_lshr_b32 s21, s2, 4')
    a('v_lshrrev_b32 v1, 6, v0')
    a('v_and_b32 v2, 63, v0')
    a('v_readfirstlane_b32 s22, v1')
    a('s_and_b32 s23, s22, 3')
    a('s_lshr_b32 s24, s22, 2')
    a('s_lshl_b32 s25, s21, 2'); a('s_add_u32 s25, s25, s23')
    a('v_lshlrev_b32 v3, 4, v2')
    a('s_lshl_b32 s26, s22, 11')
    a('v_add_u32 v4, s26, v3')
    a('s_lshl_b32 s27, s24, 13')
    a('v_add_u32 v5, s27, v3')
    a('v_add_u32 v6, 0x10000, v5')
    a('s_lshl_b32 s28, s20, 17')
    a('s_add_u32 s29, s28, 0x200000')
    a('s_lshl_b32 s30, s25, 11')
    a('v_and_b32 v7, 31, v2')
    a('v_lshlrev_b32 v8, 2, v7')
    a('v_mov_b32 v10, 0')
    a(f'v_mov_b32 v11, {K2_FLAG}')
    a('ds_write_b32 v11, v10')
    a('s_waitcnt lgkmcnt(0)')
    srd(a, 8, 4, 5, WS_BYTES)
    def dma_stage(st):
        buf = (st % 4) * K2_BUF
        for reg, loff in ((KF_OFF, 0), (VF_OFF, 16384)):
            a(f's_add_u32 s36, s26, {buf + loff}')
            a('s_mov_b32 m0, s36')
            a(f's_add_u32 s37, s29, {reg + st*16384}')
            a.vmem('buffer_load_dwordx4 v4, s[8:11], s37 offen lds', f'st{st}')
            a.vmem('buffer_load_dwordx4 v4, s[8:11], s37 offen offset:1024 lds', f'st{st}')
    a('s_add_u32 s31, s29, s30')
    a.vmem(f'buffer_load_dwordx4 {vr(VQ,4)}, v3, s[8:11], s31 offen', 'st0')
    a.vmem(f'buffer_load_dwordx4 {vr(VQ+4,4)}, v3, s[8:11], s31 offen offset:1024', 'st0')
    dma_stage(0)
    a('s_lshl_b32 s31, s25, 7')
    a(f's_add_u32 s31, s31, {G_OFF}')
    a.vmem('buffer_load_dword v9, v8, s[8:11], s31 offen', 'st1')
    dma_stage(1)
    a('s_add_u32 s31, s28, s30')
    a('s_sub_u32 s32, s31, 2048')
    a('s_cmp_eq_u32 s25, 0')
    a('s_cselect_b32 s32, s31, s32')
    a('s_cselect_b32 s33, 1000, 32')
    a('s_cmp_eq_u32 s24, 0')
    a('s_cselect_b32 s31, 0x40000000, s31')
    a('s_cselect_b32 s32, 0x40000000, s32')
    a(f's_add_u32 s34, s32, {KF_OFF}')
    a(f's_add_u32 s35, s31, {KF_OFF}')
    a(f's_add_u32 s44, s32, {VF_OFF}')
    a(f's_add_u32 s45, s31, {VF_OFF}')
    deferred = [
        lambda: dma_stage(2),
        lambda: dma_stage(3),
        lambda: (a.vmem(f'buffer_load_dwordx4 {vr(AQ,4)}, v3, s[8:11], s31 offen', 'a'),
                 a.vmem(f'buffer_load_dwordx4 {vr(AQ+4,4)}, v3, s[8:11], s31 offen offset:1024', 'a'),
                 a.vmem(f'buffer_load_dwordx4 {vr(AK,4)}, v3, s[8:11], s34 offen', 'a'),
                 a.vmem(f'buffer_load_dwordx4 {vr(AK+4,4)}, v3, s[8:11], s34 offen offset:1024', 'a')),
        lambda: (a.vmem(f'buffer_load_dwordx4 {vr(AK+8,4)}, v3, s[8:11], s35 offen', 'a'),
                 a.vmem(f'buffer_load_dwordx4 {vr(AK+12,4)}, v3, s[8:11], s35 offen offset:1024', 'a'),
                 a.vmem(f'buffer_load_dwordx4 {vr(AV,4)}, v3, s[8:11], s44 offen', 'a')),
        lambda: (a.vmem(f'buffer_load_dwordx4 {vr(AV+4,4)}, v3, s[8:11], s44 offen offset:1024', 'a'),
                 a.vmem(f'buffer_load_dwordx4 {vr(AV+8,4)}, v3, s[8:11], s45 offen', 'a'),
                 a.vmem(f'buffer_load_dwordx4 {vr(AV+12,4)}, v3, s[8:11], s45 offen offset:1024', 'a')),
    ]

    def finalize(gate_expr_reg, br):
        a(f'v_mov_b32 v13, v{VO+12}')
        a(f'v_mov_b32 v14, v{VO+12}')
        a('v_permlane32_swap_b32 v13, v14')
        a('v_rcp_f32 v14, v14')
        a(f'v_mul_f32 v14, v14, v{gate_expr_reg}')
        for r in range(16): a(f'v_mul_f32 v{VO+r}, v14, v{VO+r}')
        for i in range(8): a(f'v_cvt_pk_bf16_f32 v{VO+i}, v{VO+2*i}, v{VO+2*i+1}')
        a('v_cmp_gt_u32 vcc, 32, v2')
        a('v_mov_b32 v13, 0')
        a(f'v_cndmask_b32 v{VO+6}, v13, v{VO+6}, vcc')
        a(f'v_cndmask_b32 v{VO+7}, v13, v{VO+7}, vcc')
        a('s_lshl_b32 s38, s25, 16')
        a('s_lshl_b32 s39, s20, 11')
        a('s_add_u32 s38, s38, s39')
        a(f's_add_u32 s38, s38, {OF_OFF + br*32768}')
        a(f'buffer_store_dwordx4 {vr(VO,4)}, v3, s[8:11], s38 offen{STFLAG2}')
        a(f'buffer_store_dwordx4 {vr(VO+4,4)}, v3, s[8:11], s38 offen offset:1024{STFLAG2}')

    def lds_tile(idx, isv, t):
        st, i = idx >> 2, idx & 3
        b = st % 4
        base = 'v5' if b < 2 else 'v6'
        off = (b & 1) * K2_BUF + (16384 if isv else 0) + i*2048 + t*1024
        return base, off
    def rdK(idx):
        for t in range(2):
            base, off = lds_tile(idx, False, t)
            a(f'ds_read_b128 {vr(VK+(idx&1)*8+t*4,4)}, {base} offset:{off}')
    def rdV(idx):
        for t in range(2):
            base, off = lds_tile(idx, True, t)
            a(f'ds_read_b128 {vr(VV+(idx&1)*8+t*4,4)}, {base} offset:{off}')
    def stage_sync(st):
        a.vm_wait_tag(f'st{st}')
        a('s_barrier')
        if st >= 2 and st + 2 < 8: dma_stage(st + 2)
    NT = 32
    def smfma(idx, cneg, part):
        d = vr(VS+(idx&1)*16, 16); k = VK+(idx&1)*8
        c = vr(VNEG,16) if cneg else '0'
        if part == 0: a(f'v_mfma_f32_32x32x16_bf16 {d}, {vr(k,4)}, {vr(VQ,4)}, {c}')
        else:         a(f'v_mfma_f32_32x32x16_bf16 {d}, {vr(k+4,4)}, {vr(VQ+4,4)}, {d}')
    def pv(idx, first, part):
        v = VV+(idx&1)*8
        c = '0' if first else vr(VO,16)
        if part == 0: a(f'v_mfma_f32_32x32x16_bf16 {vr(VO,16)}, {vr(v,4)}, {vr(VP,4)}, {c}')
        else:         a(f'v_mfma_f32_32x32x16_bf16 {vr(VO,16)}, {vr(v+4,4)}, {vr(VP+4,4)}, {vr(VO,16)}')
    def tilemax(sb, dst):
        a(f'v_max3_f32 v{dst}, v{sb}, v{sb+1}, v{sb+2}')
        for r in range(3, 15, 2):
            a(f'v_max3_f32 v{dst}, v{dst}, v{sb+r}, v{sb+r+1}')
        a(f'v_max_f32 v{dst}, v{dst}, v{sb+15}')
        a(f'v_mov_b32 v13, v{dst}')
        a(f'v_permlane32_swap_b32 v{dst}, v13')
        a(f'v_max_f32 v{dst}, v{dst}, v13')
    stamp(a, 1)
    stage_sync(0)
    stamp(a, 2)
    rdK(0)
    rdK(1)
    a('s_waitcnt lgkmcnt(2)')
    d = vr(VS+16, 16)
    a(f'v_mfma_f32_32x32x16_bf16 {d}, {vr(VK,4)}, {vr(VQ,4)}, 0')
    a(f'v_mfma_f32_32x32x16_bf16 {d}, {vr(VK+4,4)}, {vr(VQ+4,4)}, {d}')
    rdV(0)
    tilemax(VS+16, 12)
    for r in range(16): a(f'v_sub_f32 v{VNEG+r}, 0, v12')
    smfma(0, True, 0); smfma(0, True, 1)
    def quarter(sb, q):
        for i in (2*q, 2*q+1):
            a(f'v_exp_f32 v{sb+2*i}, v{sb+2*i}')
            a(f'v_exp_f32 v{sb+2*i+1}, v{sb+2*i+1}')
        for i in (2*q, 2*q+1):
            a(f'v_cvt_pk_bf16_f32 v{VP+i}, v{sb+2*i}, v{sb+2*i+1}')
    for idx in range(NT):
        sb = VS + (idx&1)*16
        n_out = 2
        if idx + 1 < NT:
            a('s_waitcnt lgkmcnt(2)')
            smfma(idx+1, True, 0)
        if idx + 2 < NT:
            if (idx + 2) % 4 == 0:
                stage_sync((idx+2) >> 2)
                stamp(a, 2 + ((idx+2) >> 2))
            rdK(idx+2); n_out += 2
        quarter(sb, 0)
        if idx > 0: pv(idx-1, False, 1)
        if idx + 1 < NT:
            rdV(idx+1); n_out += 2
        quarter(sb, 1)
        if idx + 1 < NT: smfma(idx+1, True, 1)
        if idx < len(deferred): deferred[idx]()
        quarter(sb, 2)
        a(f's_waitcnt lgkmcnt({n_out-2})')
        pv(idx, idx == 0, 0)
        quarter(sb, 3)
    pv(NT-1, False, 1)
    stamp(a, 10)
    a('v_sub_f32 v15, 1.0, v9')
    a(f'v_add_f32 v13, |v{VO}|, |v{VO+1}|')
    for r in range(2, 16): a(f'v_add_f32 v13, v13, |v{VO+r}|')
    a('v_mov_b32 v14, 0x7b800000')
    a('v_cmp_nlt_f32 vcc, v13, v14')
    a('s_cbranch_vccz K2_OKFAST')
    a('v_mov_b32 v10, 1')
    a(f'v_mov_b32 v11, {K2_FLAG}')
    a('ds_write_b32 v11, v10')
    a.label('K2_OKFAST')
    def combine(tag):
        a('s_mul_i32 s38, s23, %d' % (5*1024))
        a(f's_add_u32 s38, s38, {K2_COMB}')
        a('v_add_u32 v10, s38, v3')
        a('s_cmp_eq_u32 s24, 0')
        a(f's_cbranch_scc1 K2_C1_{tag}')
        for r in range(4): a(f'ds_write_b128 v10, {vr(VO+4*r,4)} offset:{1024*r}')
        a(f'ds_write_b32 v10, v12 offset:{4096}')
        a.label(f'K2_C1_{tag}')
        a('s_waitcnt lgkmcnt(0)')
        a('s_barrier')
    combine('F')
    a(f'v_mov_b32 v11, {K2_FLAG}')
    a('ds_read_b32 v11, v11')
    a('s_waitcnt lgkmcnt(0)')
    a('v_readfirstlane_b32 s38, v11')
    a('s_cmp_eq_u32 s38, 0')
    a('s_cbranch_scc1 K2_MERGE')
    a('s_barrier')
    a.vm_wait_all()
    for st in range(4): dma_stage(st)
    a('v_mov_b32 v12, 0xff7fffff')
    for r in range(16): a(f'v_mov_b32 v{VO+r}, 0')
    for idx in range(NT):
        if idx % 4 == 0: stage_sync(idx >> 2)
        rdK(idx); rdV(idx)
        a('s_waitcnt lgkmcnt(0)')
        smfma(idx, False, 0); smfma(idx, False, 1)
        sb = VS + (idx&1)*16
        tilemax(sb, 11)
        a('v_max_f32 v11, v11, v12')
        a('v_sub_f32 v10, v12, v11')
        a('v_exp_f32 v10, v10')
        a('v_mov_b32 v12, v11')
        for r in range(16):
            a(f'v_sub_f32 v{sb+r}, v{sb+r}, v11')
            a(f'v_exp_f32 v{sb+r}, v{sb+r}')
        for i in range(8): a(f'v_cvt_pk_bf16_f32 v{VP+i}, v{sb+2*i}, v{sb+2*i+1}')
        for r in range(16): a(f'v_mul_f32 v{VO+r}, v10, v{VO+r}')
        pv(idx, False, 0); pv(idx, False, 1)
    a('s_barrier')
    combine('S')
    a.label('K2_MERGE')
    a.reset_haz(); a.nop(16)
    a('s_waitcnt vmcnt(0)')
    a('s_cmp_eq_u32 s24, 0')
    a('s_cbranch_scc0 K2_ABR')
    for r in range(4): a(f'ds_read_b128 {vr(VS+4*r,4)}, v10 offset:{1024*r}')
    a(f'ds_read_b32 v11, v10 offset:{4096}')
    a('s_waitcnt lgkmcnt(0)')
    a('v_max_f32 v13, v11, v12')
    a('v_sub_f32 v11, v11, v13')
    a('v_sub_f32 v12, v12, v13')
    a('v_exp_f32 v11, v11')
    a('v_exp_f32 v12, v12')
    for r in range(16):
        a(f'v_mul_f32 v{VO+r}, v12, v{VO+r}')
        a(f'v_fmac_f32 v{VO+r}, v11, v{VS+r}')
    finalize(15, 1)
    a('s_waitcnt vmcnt(0)')
    stamp(a, 11)
    if not os.environ.get('HDBG'): stamp_flush(a, 12, 's22')
    rt_end(a, 1, 's22')
    a('s_endpgm')
    a.label('K2_ABR')
    a.reset_haz(); a.nop(4)
    S0, S1 = VS, VS+16
    a(f'v_mfma_f32_32x32x16_bf16 {vr(S0,16)}, {vr(AK,4)}, {vr(AQ,4)}, 0')
    a(f'v_mfma_f32_32x32x16_bf16 {vr(S0,16)}, {vr(AK+4,4)}, {vr(AQ+4,4)}, {vr(S0,16)}')
    a(f'v_mfma_f32_32x32x16_bf16 {vr(S1,16)}, {vr(AK+8,4)}, {vr(AQ,4)}, 0')
    a(f'v_mfma_f32_32x32x16_bf16 {vr(S1,16)}, {vr(AK+12,4)}, {vr(AQ+4,4)}, {vr(S1,16)}')
    a('v_lshrrev_b32 v10, 5, v2')
    a('v_lshlrev_b32 v10, 2, v10')
    a('v_sub_u32 v10, v7, v10')
    a('v_add_u32 v11, s33, v10')
    a('v_mov_b32 v12, 0xff800000')
    for ti, (sb, db) in enumerate(((S0, 11), (S1, 10))):
        for r in range(16):
            kofs = (r & 3) + 8*(r >> 2)
            a(f'v_subrev_u32 v13, {kofs}, v{db}')
            a('v_and_b32 v14, 1, v13')
            a('v_lshl_or_b32 v13, v14, 8, v13')
            a(f'v_cmp_gt_u32 s[{48+2*(r&3)}:{49+2*(r&3)}], 15, v13')
            if r >= 1:
                rr = r - 1
                a(f'v_cndmask_b32 v{sb+rr}, v12, v{sb+rr}, s[{48+2*(rr&3)}:{49+2*(rr&3)}]')
        a(f'v_cndmask_b32 v{sb+15}, v12, v{sb+15}, s[54:55]')
    a(f'v_max3_f32 v13, v{S0}, v{S0+1}, v{S0+2}')
    for r in range(3, 31, 2):
        a(f'v_max3_f32 v13, v13, v{S0+r}, v{S0+r+1}')
    a(f'v_max_f32 v13, v13, v{S0+31}')
    a('v_mov_b32 v14, v13')
    a('v_permlane32_swap_b32 v13, v14')
    a('v_max_f32 v13, v13, v14')
    for r in range(32):
        a(f'v_sub_f32 v{S0+r}, v{S0+r}, v13')
        a(f'v_exp_f32 v{S0+r}, v{S0+r}')
    for i in range(16):
        a(f'v_cvt_pk_bf16_f32 v{S0+i}, v{S0+2*i}, v{S0+2*i+1}')
    a(f'v_mfma_f32_32x32x16_bf16 {vr(VO,16)}, {vr(AV,4)}, {vr(S0,4)}, 0')
    a(f'v_mfma_f32_32x32x16_bf16 {vr(VO,16)}, {vr(AV+4,4)}, {vr(S0+4,4)}, {vr(VO,16)}')
    a(f'v_mfma_f32_32x32x16_bf16 {vr(VO,16)}, {vr(AV+8,4)}, {vr(S0+8,4)}, {vr(VO,16)}')
    a(f'v_mfma_f32_32x32x16_bf16 {vr(VO,16)}, {vr(AV+12,4)}, {vr(S0+12,4)}, {vr(VO,16)}')
    finalize(9, 0)
    a.label('K2_END')
    a('s_endpgm')
    return descriptor(name, 168)

K3_NB = 5
def gen_k3(a):
    name = 'out_kernel'
    header(a, name)
    a('s_cmp_ge_u32 s2, 224')
    a('s_cbranch_scc1 K3_END')
    rt_start(a)
    stamp(a, 0)
    a('s_load_dwordx2 s[4:5], s[0:1], 72')
    a('s_load_dwordx2 s[6:7], s[0:1], 56')
    a('s_and_b32 s20, s2, 7'); a('s_lshr_b32 s21, s2, 3')
    a('s_mul_i32 s22, s21, 37'); a('s_lshr_b32 s22, s22, 8')
    a('s_mul_i32 s23, s22, 7'); a('s_sub_u32 s23, s21, s23')
    a('s_lshl_b32 s20, s20, 2'); a('s_add_u32 s22, s22, s20')
    a('v_lshrrev_b32 v1, 6, v0')
    a('v_and_b32 v2, 63, v0')
    a('v_readfirstlane_b32 s32, v1')
    a('s_and_b32 s24, s32, 3')
    a('s_and_b32 s25, s24, 1')
    a('s_lshr_b32 s26, s24, 1')
    a('v_lshlrev_b32 v3, 4, v2')
    a('s_cmp_lt_u32 s32, 4')
    a('s_cbranch_scc1 K3_COMPUTE')
    a('s_lshl_b32 s27, s22, 1'); a('s_add_u32 s27, s27, s24'); a('s_lshl_b32 s27, s27, 16'); a(f's_add_u32 s27, s27, {OF_OFF}')
    a('s_lshl_b32 s28, s23, 1'); a('s_add_u32 s28, s28, s24'); a('s_sub_u32 s28, s28, 2'); a('s_lshl_b32 s28, s28, 16'); a(f's_add_u32 s28, s28, {WOF_OFF}')
    a('s_cmp_lt_u32 s24, 2')
    a('s_cselect_b32 s27, s27, s28')
    a('s_lshl_b32 s29, s24, 13')
    a('s_waitcnt lgkmcnt(0)')
    srd(a, 8, 4, 5, WS_BYTES)
    def dma_stage(st):
        buf = (st % K3_NB) * 32768
        for half in range(2):
            a(f's_add_u32 s30, s29, {buf + half*4096}')
            a('s_mov_b32 m0, s30')
            a(f's_add_u32 s31, s27, {st*8192 + half*4096}')
            for q in range(4):
                a.vmem(f'buffer_load_dwordx4 v3, s[8:11], s31 offen offset:{q*1024} lds', f'st{st}')
    for st in range(2): dma_stage(st)
    nxt = 2
    for st in range(8):
        a.vm_wait_tag(f'st{st}')
        a('s_barrier')
        lim = max(K3_NB - 1, st - 2 + K3_NB)
        cnt = 0
        while nxt < 8 and nxt <= lim and cnt < 2:
            dma_stage(nxt); nxt += 1; cnt += 1
    a('s_endpgm')
    a.label('K3_COMPUTE')
    a.reset_haz(); a.vm = []
    a('s_lshl_b32 s30, s25, 13')
    a('v_add_u32 v4, s30, v3')
    a('s_lshl_b32 s30, s26, 13')
    a('s_add_u32 s30, s30, 16384')
    a('v_add_u32 v5, s30, v3')
    a('v_add_u32 v6, 0x10000, v4')
    a('v_add_u32 v7, 0x10000, v5')
    a('v_and_b32 v8, 31, v2')
    a('s_lshl_b32 s30, s22, 6'); a('s_lshl_b32 s31, s25, 5'); a('s_add_u32 s30, s30, s31')
    a('v_add_u32 v8, s30, v8')
    a('s_movk_i32 s31, 896')
    a('v_mul_lo_u32 v8, v8, s31')
    a('v_lshrrev_b32 v9, 5, v2')
    a('v_lshl_add_u32 v8, v9, 4, v8')
    a('s_lshl_b32 s30, s23, 7'); a('s_lshl_b32 s31, s26, 6'); a('s_add_u32 s30, s30, s31')
    a('s_waitcnt lgkmcnt(0)')
    srd(a, 12, 6, 7, 2048*448*2)
    ACC, FA, FB = 16, 32, 48
    PD = 4
    a('v_add_u32 v10, 0x20000, v4')
    a('v_add_u32 v11, 0x20000, v5')
    def rd(ks):
        st, k = ks >> 3, ks & 7
        b = st % K3_NB
        off = (b & 1)*32768 + k*1024
        ra = ('v5', 'v7', 'v11')[b >> 1]; rb = ('v4', 'v6', 'v10')[b >> 1]
        a(f'ds_read_b128 {vr(FA+(ks%PD)*4,4)}, {ra} offset:{off}')
        a(f'ds_read_b128 {vr(FB+(ks%PD)*4,4)}, {rb} offset:{off}')
    stamp(a, 1)
    a('s_barrier')
    stamp(a, 2)
    for ks in range(PD-1): rd(ks)
    for ks in range(64):
        nk = ks + PD - 1
        if nk < 64:
            if nk % 8 == 0:
                a('s_barrier')
                stamp(a, 2 + (nk >> 3))
            rd(nk)
            a(f's_waitcnt lgkmcnt({2*(PD-1)})')
        else:
            a(f's_waitcnt lgkmcnt({2*(63-ks)})')
        c = '0' if ks == 0 else vr(ACC,16)
        a(f'v_mfma_f32_32x32x16_bf16 {vr(ACC,16)}, {vr(FA+(ks%PD)*4,4)}, {vr(FB+(ks%PD)*4,4)}, {c}')
    stamp(a, 10)
    for i in range(8): a(f'v_cvt_pk_bf16_f32 v{ACC+i}, v{ACC+2*i}, v{ACC+2*i+1}')
    for p in range(2):
        b = ACC + 4*p
        a(f'v_permlane32_swap_b32 v{b}, v{b+2}')
        a(f'v_permlane32_swap_b32 v{b+1}, v{b+3}')
    for p in range(2):
        b = ACC + 4*p
        a(f'buffer_store_dwordx4 {vr(b,4)}, v8, s[12:15], s30 offen offset:{32*p}')
    if STAMP: a('s_waitcnt vmcnt(0)')
    stamp(a, 11)
    if not os.environ.get('HDBG'): stamp_flush(a, 12, 's32')
    rt_end(a, 2, 's32')
    a.label('K3_END')
    a('s_endpgm')
    return descriptor(name, 64)

def main():
    a = Asm()
    hdr = open('cdna_kernels/%s.s.ref' % NAME).read().split('; Override launch')[0]
    out = hdr
    out += f'; @launch kernel=qkv_kernel grid=(256,1,1) block=({256+64*NLD},1,1) lds={K1_STAGE*K1_NBUF}\n'
    out += f'; @launch kernel=attn_kernel grid=(256,1,1) block=(512,1,1) lds={K2_LDS}\n'
    out += f'; @launch kernel=out_kernel grid=(224,1,1) block=(512,1,1) lds={K3_NB*32768}\n'
    out += '.amdgcn_target "amdgcn-amd-amdhsa--gfx950"\n.text\n'
    d1 = gen_k1(a); d2 = gen_k2(a); d3 = gen_k3(a)
    out += a.text()
    out += '.section .rodata,"a"\n'
    for d in (d1, d2, d3):
        out += '.p2align 6\n' + d
    open('cdna_kernels/%s.s' % NAME, 'w').write(out)
main()
```

```python
import sys, math
sys.path.insert(0, 'gen')
from asmlib import Asm

NAME = 'gated_mix__sliding_local_dilated__mha_block__prompt'
MB = 1 << 20
QF_OFF, KF_OFF, VF_OFF, OF_OFF, WOF_OFF, G_OFF = 0, 4*MB, 8*MB, 12*MB, 16*MB, 17*MB
WS_BYTES = 18*MB
import struct
def f32bits(x): return struct.unpack('<I', struct.pack('<f', x))[0]
CSCALE = f32bits((28 ** -0.5) * math.log2(math.e))
NLOG2E = f32bits(-math.log2(math.e))

def vr(b, n): return f'v[{b}:{b+n-1}]'

def srd(a, s, lo, hi, size):
    a(f's_mov_b32 s{s}, s{lo}')
    a(f's_and_b32 s{s+1}, s{hi}, 0xffff')
    a(f's_mov_b32 s{s+2}, {size}')
    a(f's_mov_b32 s{s+3}, 0x20000')

import os
STAMP = int(os.environ.get('STAMP', '0'))
STFLAG = os.environ.get('STFLAG', ' sc1')
STFLAG2 = os.environ.get('STFLAG2', ' sc1')
def stamp(a, i):
    if not STAMP: return
    a('s_memtime s[90:91]')
    a('s_waitcnt lgkmcnt(0)')
    a(f's_mov_b32 s{70+i}, s90')
def stamp_flush(a, n, wavereg):
    if not STAMP: return
    a('s_load_dwordx2 s[92:93], s[0:1], 64')
    a('s_waitcnt lgkmcnt(0)')
    if os.environ.get('HDBG'):
        a('s_add_u32 s92, s92, 1024')
        a('s_addc_u32 s93, s93, 0')
    a(f's_cmp_lg_u32 s2, {STAMP-1}')
    a('s_cbranch_scc1 NOSTAMP_%d' % len(a.lines))
    lab = 'NOSTAMP_%d' % (len(a.lines)-1)
    a(f's_cmp_lg_u32 {wavereg}, 0')
    a('s_cbranch_scc1 ' + lab)
    a('v_mov_b32 v1, 0')
    for i in range(n):
        a(f's_sub_u32 s94, s{70+i}, s70')
        a('v_mov_b32 v2, s94')
        a(f'global_store_dword v1, v2, s[92:93] offset:{4*i}')
    a('s_waitcnt vmcnt(0)')
    a.label(lab)

def rt_start(a):
    if not STAMP: return
    a('s_memrealtime s[86:87]')
    a('s_waitcnt lgkmcnt(0)')
def rt_end(a, kidx, wavereg):
    if not STAMP: return
    a('s_memrealtime s[88:89]')
    a('s_load_dwordx2 s[92:93], s[0:1], 72')
    a('s_load_dwordx2 s[84:85], s[0:1], 64')
    a('s_waitcnt lgkmcnt(0)')
    lab = 'NORT_%d' % len(a.lines)
    a(f's_cmp_lg_u32 {wavereg}, 0')
    a('s_cbranch_scc1 ' + lab)
    a('s_lshl_b32 s94, s2, 3')
    a(f's_add_u32 s94, s94, {32*MB + kidx*4096}')
    a('v_mov_b32 v1, s94')
    a('v_mov_b32 v2, s86')
    a('v_mov_b32 v3, s88')
    a('global_store_dwordx2 v1, v[2:3], s[92:93]')
    if os.environ.get('HDBG'):
        a(f's_add_u32 s84, s84, {512*(2-kidx)}')
        a('s_addc_u32 s85, s85, 0')
        a('v_mov_b32 v1, 0')
        a('s_mov_b64 exec, 1')
        a(f'global_atomic_umax v1, v2, s[84:85] offset:{24+8*kidx}')
        a(f'global_atomic_umax v1, v3, s[84:85] offset:{28+8*kidx}')
        a('s_cmp_lg_u32 s2, 0')
        a('s_cbranch_scc1 ' + lab)
        a(f'global_store_dwordx2 v1, v[2:3], s[84:85] offset:{8*kidx}')
    a('s_waitcnt vmcnt(0)')
    a.label(lab)

def header(a, name):
    a.raw('.p2align 8')
    a.raw(f'.globl {name}')
    a.raw(f'.type {name},@function')
    a.label(name)
    a.reset_haz(); a.vm = []

def descriptor(name, vgpr, sgpr=96):
    acc = (vgpr + 3) // 4 * 4
    return f""".amdhsa_kernel {name}
  .amdhsa_next_free_vgpr {vgpr}
  .amdhsa_next_free_sgpr {sgpr}
  .amdhsa_accum_offset {acc}
  .amdhsa_group_segment_fixed_size 0
  .amdhsa_kernarg_size 80
  .amdhsa_user_sgpr_count 2
  .amdhsa_user_sgpr_kernarg_segment_ptr 1
  .amdhsa_system_sgpr_workgroup_id_x 1
.end_amdhsa_kernel
"""

K1_NBUF = int(os.environ.get('K1NB', '3'))
K1_STAGE = 40960 if K1_NBUF == 3 else 38912
PREF = int(os.environ.get('PREF', '2'))
NLD = int(os.environ.get('NLD', '4'))
def gen_k1(a):
    name = 'qkv_kernel'
    header(a, name)
    def l2_prefetch(loader):
        if not loader:
            a('s_cmp_eq_u32 s46, 0')
            a('s_cselect_b32 s12, s6, s24')
            a('s_cselect_b32 s13, s7, s25')
            a('s_and_b32 s13, s13, 0xffff')
            a(f's_mov_b32 s14, {448*1344*2}')
            a('s_mov_b32 s15, 0x20000')
        a('s_lshr_b32 s51, s2, 3')
        a('s_and_b32 s52, s2, 1')
        a(f's_mul_i32 s52, s52, {1024*896}')
        a(f's_mul_i32 s53, s51, {224*128}')
        a('s_add_u32 s52, s52, s53')
        a('v_and_b32 v7, 255, v0')
        a('v_lshlrev_b32 v3, 7, v7')
        a('v_mov_b32 v8, 0x40000000')
        a('v_cmp_gt_u32 vcc, 224, v7')
        a('v_cndmask_b32 v3, v8, v3, vcc')
        a.vmem('buffer_load_dword v20, v3, s[8:11], s52 offen', 'pf')
        a('s_mul_i32 s53, s51, 210')
        a('v_add_u32 v3, s53, v7')
        a('s_mov_b32 s53, 52429')
        a('v_mul_lo_u32 v4, v3, s53')
        a('v_lshrrev_b32 v4, 18, v4')
        a('v_mul_u32_u24 v5, 5, v4')
        a('v_sub_u32 v5, v3, v5')
        a('v_mul_u32_u24 v6, 896, v4')
        a('v_lshlrev_b32 v5, 7, v5')
        a('v_min_u32 v5, 444, v5')
        a('v_add_u32 v6, v6, v5')
        a('v_cmp_gt_u32 vcc, 210, v7')
        a('v_cndmask_b32 v6, v8, v6, vcc')
        a('s_and_b32 s53, s47, 4')
        a('s_mul_i32 s53, s53, 112')
        a.vmem('buffer_load_dword v21, v6, s[12:15], s53 offen', 'pf')
    a('s_cmp_ge_u32 s2, 256')
    a('s_cbranch_scc1 K1_END')
    rt_start(a)
    stamp(a, 0)
    a('s_load_dwordx4 s[4:7], s[0:1], 0')
    a('s_load_dwordx2 s[20:21], s[0:1], 16')
    a('s_load_dwordx4 s[24:27], s[0:1], 32')
    a('s_load_dwordx2 s[28:29], s[0:1], 48')
    a('s_load_dwordx2 s[30:31], s[0:1], 72')
    a('s_and_b32 s51, s2, 7')
    a('s_lshr_b32 s52, s2, 3')
    a('s_and_b32 s53, s51, 1'); a('s_lshl_b32 s53, s53, 3'); a('s_lshr_b32 s54, s52, 2'); a('s_add_u32 s44, s53, s54')
    a('s_lshr_b32 s53, s51, 1'); a('s_lshl_b32 s53, s53, 2'); a('s_and_b32 s54, s52, 3'); a('s_add_u32 s45, s53, s54')
    a('s_lshr_b32 s46, s45, 3')
    a('s_and_b32 s47, s45, 7')
    a('v_lshrrev_b32 v1, 6, v0')
    a('v_and_b32 v2, 63, v0')
    a('v_readfirstlane_b32 s59, v1')
    a('s_and_b32 s48, s59, 3')
    a('s_and_b32 s49, s48, 1')
    a('s_lshr_b32 s50, s48, 1')
    a('s_cmp_lt_u32 s59, 4')
    a('s_cbranch_scc1 K1_COMPUTE')
    a('s_sub_u32 s48, s59, 4')
    a('v_lshrrev_b32 v11, 3, v2')
    a('s_lshl_b32 s51, s44, 7')
    a('s_lshl_b32 s52, s48, 3')
    a('s_add_u32 s51, s51, s52')
    a('v_add_u32 v11, s51, v11')
    a('s_movk_i32 s52, 896')
    a('v_mul_lo_u32 v12, v11, s52')
    a('v_lshrrev_b32 v11, 4, v2')
    a('s_lshl_b32 s52, s48, 2')
    a('v_add_u32 v11, s52, v11')
    a('v_and_b32 v11, 7, v11')
    a('v_and_b32 v13, 7, v2')
    a('v_xor_b32 v11, v11, v13')
    a('v_lshl_add_u32 v12, v11, 4, v12')
    a('s_mul_i32 s52, s47, 112')
    for j in range(24//NLD):
        r = 14 + j
        a(f's_lshl_b32 s51, s48, 6')
        a(f's_add_u32 s51, s51, {64*NLD*j}')
        a(f'v_add_u32 v44, s51, v2')
        a('s_movk_i32 s53, 3121')
        a('v_mul_lo_u32 v45, v44, s53')
        a('v_lshrrev_b32 v45, 16, v45')
        a('v_mul_u32_u24 v46, 21, v45')
        a('v_sub_u32 v46, v44, v46')
        a('v_mul_u32_u24 v47, 37, v46')
        a('v_lshrrev_b32 v47, 8, v47')
        a('v_and_b32 v48, 0xfffffff0, v45')
        a('v_and_b32 v49, 3, v45')
        a('v_lshl_or_b32 v48, v49, 2, v48')
        a('v_bfe_u32 v49, v45, 2, 2')
        a('v_or_b32 v48, v48, v49')
        a('s_movk_i32 s53, 2688')
        a('v_mul_lo_u32 v48, v48, s53')
        a('s_movk_i32 s53, 784')
        a('v_mul_lo_u32 v47, v47, s53')
        a(f'v_lshl_add_u32 v{r}, v46, 4, v48')
        a(f'v_add3_u32 v{r}, v{r}, v47, s52')
    a('s_lshl_b32 s55, s48, 10')
    a('s_waitcnt lgkmcnt(0)')
    srd(a, 8, 4, 5, 2048*448*2)
    a('s_cmp_eq_u32 s46, 0')
    a('s_cselect_b32 s12, s6, s24')
    a('s_cselect_b32 s13, s7, s25')
    a('s_and_b32 s13, s13, 0xffff')
    a(f's_mov_b32 s14, {448*1344*2}')
    a('s_mov_b32 s15, 0x20000')
    def dma_stage(st):
        buf = (st % K1_NBUF) * K1_STAGE
        for j in range(16//NLD):
            a(f's_add_u32 s51, s55, {buf + j*1024*NLD}')
            a('s_mov_b32 m0, s51')
            a(f's_mov_b32 s52, {st*128 + j*8*NLD*896}')
            a.vmem('buffer_load_dwordx4 v12, s[8:11], s52 offen lds', f'st{st}')
        for j in range(24//NLD):
            a(f's_add_u32 s51, s55, {buf + 16384 + j*1024*NLD}')
            a('s_mov_b32 m0, s51')
            if K1_NBUF > 3 and j == 5:
                a(f's_min_u32 s51, s51, {buf + 16384 + 21*1024}')
                a('s_mov_b32 m0, s51')
            a(f's_mov_b32 s52, {st*64*2688}')
            a.vmem(f'buffer_load_dwordx4 v{14+j}, s[12:15], s52 offen lds', f'st{st}')
    NST = 7
    for st in range(K1_NBUF):
        dma_stage(st)
        if PREF == 2 + st: l2_prefetch(True)
    for st in range(NST):
        a.vm_wait_tag(f'st{st}')
        a('s_barrier')
        if st >= 1 and st - 1 + K1_NBUF < NST: dma_stage(st - 1 + K1_NBUF)
    a('s_endpgm')
    a.label('K1_COMPUTE')
    a.reset_haz(); a.vm = []
    a('s_waitcnt lgkmcnt(0)')
    stamp(a, 12)
    srd(a, 8, 4, 5, 2048*448*2)
    srd(a, 16, 30, 31, WS_BYTES)
    srd(a, 40, 28, 29, 448*2)
    if PREF == 1: l2_prefetch(False)
    a('v_and_b32 v3, 31, v2')
    a('v_lshrrev_b32 v4, 5, v2')
    a('s_lshl_b32 s51, s2, 3')
    a('s_lshl_b32 s52, s48, 1')
    a('s_add_u32 s51, s51, s52')
    a('v_add_u32 v5, s51, v4')
    a('s_movk_i32 s52, 896')
    a('v_mul_lo_u32 v6, v5, s52')
    a('v_lshlrev_b32 v7, 5, v3')
    a('v_add_u32 v6, v6, v7')
    a('v_mov_b32 v8, 0x40000000')
    a('v_cmp_gt_u32 vcc, 28, v3')
    a('v_cndmask_b32 v6, v8, v6, vcc')
    a('v_cndmask_b32 v7, v8, v7, vcc')
    a.vmem('buffer_load_dwordx4 v[20:23], v6, s[8:11], 0 offen', 'gate')
    a.vmem('buffer_load_dwordx4 v[24:27], v6, s[8:11], 0 offen offset:16', 'gate')
    a.vmem('buffer_load_dwordx4 v[28:31], v7, s[40:43], 0 offen', 'gate')
    a.vmem('buffer_load_dwordx4 v[32:35], v7, s[40:43], 0 offen offset:16', 'gate')
    a('s_lshl_b32 s51, s2, 2')
    a('s_add_u32 s51, s51, s48')
    a('s_and_b32 s52, s51, 63')
    a('s_lshr_b32 s53, s51, 6')
    a('s_lshr_b32 s54, s52, 5')
    a('s_cmp_eq_u32 s54, 0')
    a('s_cselect_b32 s32, s20, s26')
    a('s_cselect_b32 s33, s21, s27')
    a('s_and_b32 s33, s33, 0xffff')
    a(f's_mov_b32 s34, {448*448*2}')
    a('s_mov_b32 s35, 0x20000')
    a('s_lshr_b32 s55, s52, 1'); a('s_and_b32 s55, s55, 15')
    a('s_and_b32 s56, s52, 1')
    a('s_mul_i32 s55, s55, 28')
    a('s_lshl_b32 s57, s56, 4')
    a('s_add_u32 s55, s55, s57')
    a('v_lshlrev_b32 v9, 2, v4')
    a('v_add_u32 v9, s55, v9')
    a('s_movk_i32 s52, 896')
    a('v_mul_lo_u32 v9, v9, s52')
    a('s_lshl_b32 s53, s53, 6')
    a('v_lshlrev_b32 v10, 1, v3')
    a('v_add3_u32 v9, v9, v10, s53')
    a(f'v_add_u32 v10, {8*896}, v9')
    a('v_and_b32 v11, s56, v4')
    a('v_cmp_eq_u32 vcc, 0, v11')
    a('v_cndmask_b32 v10, v8, v10, vcc')
    a('s_cmp_ge_u32 s2, 224')
    a('s_cselect_b32 s58, 0x40000000, 0')
    for j in range(4):
        a.vmem(f'buffer_load_ushort v{36+j}, v9, s[32:35], s58 offen offset:{896*j}', 'wo')
    for j in range(4):
        a.vmem(f'buffer_load_ushort v{40+j}, v10, s[32:35], s58 offen offset:{896*j}', 'wo')
    stamp(a, 13)
    ACC = 64
    XF = 18
    WF = 34
    for i in range(96):
        a(f'v_mov_b32 v{ACC+i}, 0')
    a.vm_wait_tag('gate')
    a('v_mov_b32 v44, 0')
    for i in range(8):
        xs, gs = 20 + i, 28 + i
        a(f'v_lshlrev_b32 v45, 16, v{xs}')
        a(f'v_and_b32 v46, 0xffff0000, v{xs}')
        a(f'v_lshlrev_b32 v47, 16, v{gs}')
        a(f'v_and_b32 v48, 0xffff0000, v{gs}')
        a('v_mul_f32 v45, v45, v47')
        a('v_mul_f32 v46, v46, v48')
        a('v_cvt_pk_bf16_f32 v45, v45, v46')
        a('v_lshlrev_b32 v46, 16, v45')
        a('v_and_b32 v45, 0xffff0000, v45')
        a('v_add_f32 v44, v44, v46')
        a('v_add_f32 v44, v44, v45')
    for off in (0x041F, 0x081F, 0x101F, 0x201F, 0x401F):
        a(f'ds_swizzle_b32 v45, v44 offset:{off}')
        a('s_waitcnt lgkmcnt(0)')
        a('v_add_f32 v44, v44, v45')
    a('v_cvt_pk_bf16_f32 v44, v44, v44')
    a('v_lshlrev_b32 v44, 16, v44')
    a(f'v_mul_f32 v44, {NLOG2E}, v44')
    a('v_exp_f32 v44, v44')
    a('v_add_f32 v44, 1.0, v44')
    a('v_rcp_f32 v44, v44')
    a('v_cvt_pk_bf16_f32 v44, v44, v44')
    a('v_lshlrev_b32 v44, 16, v44')
    a('v_lshlrev_b32 v45, 2, v5')
    a(f'v_add_u32 v45, {G_OFF}, v45')
    a('v_cmp_eq_u32 vcc, 0, v3')
    a('v_cndmask_b32 v45, v8, v45, vcc')
    a.vmem('buffer_store_dword v44, v45, s[16:19], 0 offen', 'gst')
    a.vm_wait_tag('wo')
    for j in range(4):
        a(f'v_lshl_or_b32 v{44+j}, v{37+2*j}, 16, v{36+2*j}')
    a('s_lshl_b32 s51, s2, 12')
    a(f's_add_u32 s51, s51, {WOF_OFF}')
    a('s_add_u32 s51, s51, s58')
    a('v_lshlrev_b32 v48, 4, v0')
    a.vmem('buffer_store_dwordx4 v[44:47], v48, s[16:19], s51 offen', 'gst')
    a('v_and_b32 v3, 31, v2')
    a('v_lshrrev_b32 v4, 5, v2')
    a('v_bfe_u32 v5, v3, 1, 3')
    a('s_lshl_b32 s51, s49, 13')
    a('v_lshlrev_b32 v6, 7, v3')
    a('v_add_u32 v6, s51, v6')
    for s in range(4):
        a(f'v_add_u32 v7, {2*s}, v4')
        a('v_xor_b32 v7, v7, v5')
        a(f'v_lshl_add_u32 v{8+s}, v7, 4, v6')
    a('v_bfe_u32 v5, v2, 2, 2')
    a('v_lshlrev_b32 v5, 2, v5')
    a('v_lshl_add_u32 v5, v4, 1, v5')
    a('v_mul_u32_u24 v5, 336, v5')
    a('v_bfe_u32 v6, v2, 4, 1')
    a('v_lshl_add_u32 v5, v6, 5, v5')
    a('v_and_b32 v6, 3, v2')
    a('v_lshl_add_u32 v5, v6, 3, v5')
    a('s_mul_i32 s51, s50, 56')
    a(f's_add_u32 s51, s51, 16384')
    a('v_add_u32 v12, s51, v5')
    def acc(which, tt): return ACC + (which*2 + tt)*16
    def rd_list(s, pb):
        l = []
        for tt in range(2):
            l.append(f'ds_read_b128 {vr(XF+pb*8+tt*4,4)}, v{13+s} offset:{tt*4096}')
        for which in range(3):
            for u in range(2):
                l.append(f'ds_read_b64_tr_b16 {vr(WF+pb*12+which*4+u*2,2)}, v17 offset:{s*5376+u*336+which*112}')
        return l
    def set_stage_addr(st):
        buf = (st % K1_NBUF) * K1_STAGE
        for s in range(4):
            a(f'v_add_u32 v{13+s}, {buf}, v{8+s}')
        a(f'v_add_u32 v17, {buf}, v12')
    def mfma_list(pb):
        l = []
        for which in range(3):
            for tt in range(2):
                xf = vr(XF+pb*8+tt*4, 4); wf = vr(WF+pb*12+which*4, 4); d = vr(acc(which, tt), 16)
                if which < 2: l.append(f'v_mfma_f32_32x32x16_bf16 {d}, {wf}, {xf}, {d}')
                else:         l.append(f'v_mfma_f32_32x32x16_bf16 {d}, {xf}, {wf}, {d}')
        return l
    set_stage_addr(0)
    stamp(a, 2)
    a('s_barrier')
    stamp(a, 3)
    for t in rd_list(0, 0): a(t)
    step = 0
    for st in range(NST):
        for s in range(4):
            pb = step & 1
            last = (st == NST-1 and s == 3)
            a('s_waitcnt lgkmcnt(0)')
            rl = []
            if s < 3:
                rl = rd_list(s+1, pb ^ 1)
            elif not last:
                a('s_barrier')
                stamp(a, 4+st)
                set_stage_addr(st+1)
                rl = rd_list(0, pb ^ 1)
            ml = mfma_list(pb)
            for i, m in enumerate(ml):
                a(m)
                for t in rl[2*i:2*i+2]: a(t)
            step += 1
    stamp(a, 10)
    a('s_lshl_b32 s51, s47, 1'); a('s_add_u32 s51, s51, s50')
    a('s_lshl_b32 s52, s46, 4'); a('s_add_u32 s51, s51, s52')
    a('s_lshl_b32 s51, s51, 17')
    a('s_lshl_b32 s52, s44, 2'); a('s_lshl_b32 s53, s49, 1'); a('s_add_u32 s52, s52, s53')
    a('s_lshl_b32 s52, s52, 11')
    a('s_add_u32 s51, s51, s52')
    a('v_lshlrev_b32 v3, 4, v2')
    a(f's_mov_b32 s56, {CSCALE}')
    a('v_cmp_gt_u32 s[60:61], 32, v2')
    a('v_and_b32 v4, 31, v2')
    a('v_cmp_eq_u32 s[62:63], 28, v4')
    a('v_mov_b32 v5, 0')
    a('v_mov_b32 v6, 0x3f803f80')
    for which in range(3):
        a(f's_add_u32 s52, s51, {which*4*MB}')
        for tt in range(2):
            b = acc(which, tt)
            if which == 0:
                for i in range(16): a(f'v_mul_f32 v{b+i}, s56, v{b+i}')
            for i in range(8):
                a(f'v_cvt_pk_bf16_f32 v{b+i}, v{b+2*i}, v{b+2*i+1}')
            if which < 2:
                a(f'v_cndmask_b32 v{b+6}, v5, v{b+6}, s[60:61]')
                a(f'v_cndmask_b32 v{b+7}, v5, v{b+7}, s[60:61]')
            else:
                for i in range(8): a(f'v_cndmask_b32 v{b+i}, v{b+i}, v6, s[62:63]')
            a.vmem(f'buffer_store_dwordx4 {vr(b,4)}, v3, s[16:19], s52 offen offset:{tt*2048}{STFLAG}', 'out')
            a.vmem(f'buffer_store_dwordx4 {vr(b+4,4)}, v3, s[16:19], s52 offen offset:{tt*2048+1024}{STFLAG}', 'out')
    if STAMP: a('s_waitcnt vmcnt(0)')
    stamp(a, 11)
    if not os.environ.get('HDBG'): stamp_flush(a, 15, 's59')
    rt_end(a, 0, 's59')
    a.label('K1_END')
    a('s_endpgm')
    return descriptor(name, 160)

K2_BUF = 32768
K2_COMB = 4*K2_BUF
K2_FLAG = K2_COMB + 4*5*1024
K2_LDS = K2_FLAG + 64
VQ, VNEG, VS, VP, VO, VK, VV = 16, 24, 40, 72, 80, 96, 112
AQ, AK, AV = 128, 136, 152
def gen_k2(a):
    name = 'attn_kernel'
    header(a, name)
    a('s_cmp_ge_u32 s2, 256')
    a('s_cbranch_scc1 K2_END')
    rt_start(a)
    stamp(a, 0)
    a('s_load_dwordx2 s[4:5], s[0:1], 72')
    a('s_and_b32 s20, s2, 15')
    a('s_lshr_b32 s21, s2, 4')
    a('v_lshrrev_b32 v1, 6, v0')
    a('v_and_b32 v2, 63, v0')
    a('v_readfirstlane_b32 s22, v1')
    a('s_and_b32 s23, s22, 3')
    a('s_lshr_b32 s24, s22, 2')
    a('s_lshl_b32 s25, s21, 2'); a('s_add_u32 s25, s25, s23')
    a('v_lshlrev_b32 v3, 4, v2')
    a('s_lshl_b32 s26, s22, 11')
    a('v_add_u32 v4, s26, v3')
    a('s_lshl_b32 s27, s24, 13')
    a('v_add_u32 v5, s27, v3')
    a('v_add_u32 v6, 0x10000, v5')
    a('s_lshl_b32 s28, s20, 17')
    a('s_add_u32 s29, s28, 0x200000')
    a('s_lshl_b32 s30, s25, 11')
    a('v_and_b32 v7, 31, v2')
    a('v_lshlrev_b32 v8, 2, v7')
    a('v_mov_b32 v10, 0')
    a(f'v_mov_b32 v11, {K2_FLAG}')
    a('ds_write_b32 v11, v10')
    a('s_waitcnt lgkmcnt(0)')
    srd(a, 8, 4, 5, WS_BYTES)
    def dma_stage(st):
        buf = (st % 4) * K2_BUF
        for reg, loff in ((KF_OFF, 0), (VF_OFF, 16384)):
            a(f's_add_u32 s36, s26, {buf + loff}')
            a('s_mov_b32 m0, s36')
            a(f's_add_u32 s37, s29, {reg + st*16384}')
            a.vmem('buffer_load_dwordx4 v4, s[8:11], s37 offen lds', f'st{st}')
            a.vmem('buffer_load_dwordx4 v4, s[8:11], s37 offen offset:1024 lds', f'st{st}')
    a('s_add_u32 s31, s29, s30')
    a.vmem(f'buffer_load_dwordx4 {vr(VQ,4)}, v3, s[8:11], s31 offen', 'q')
    a.vmem(f'buffer_load_dwordx4 {vr(VQ+4,4)}, v3, s[8:11], s31 offen offset:1024', 'q')
    a('s_add_u32 s31, s29, s27')
    a(f's_add_u32 s31, s31, {KF_OFF}')
    a.vmem(f'buffer_load_dwordx4 {vr(VK,4)}, v3, s[8:11], s31 offen', 'q')
    a.vmem(f'buffer_load_dwordx4 {vr(VK+4,4)}, v3, s[8:11], s31 offen offset:1024', 'q')
    dma_stage(0)
    a('s_lshl_b32 s31, s25, 7')
    a(f's_add_u32 s31, s31, {G_OFF}')
    a.vmem('buffer_load_dword v9, v8, s[8:11], s31 offen', 'st1')
    dma_stage(1)
    a('s_add_u32 s31, s28, s30')
    a('s_sub_u32 s32, s31, 2048')
    a('s_cmp_eq_u32 s25, 0')
    a('s_cselect_b32 s32, s31, s32')
    a('s_cselect_b32 s33, 1000, 32')
    a('s_cmp_eq_u32 s24, 0')
    a('s_cselect_b32 s31, 0x40000000, s31')
    a('s_cselect_b32 s32, 0x40000000, s32')
    a(f's_add_u32 s34, s32, {KF_OFF}')
    a(f's_add_u32 s35, s31, {KF_OFF}')
    a(f's_add_u32 s44, s32, {VF_OFF}')
    a(f's_add_u32 s45, s31, {VF_OFF}')
    deferred = [
        lambda: dma_stage(2),
        lambda: dma_stage(3),
        lambda: (a.vmem(f'buffer_load_dwordx4 {vr(AQ,4)}, v3, s[8:11], s31 offen', 'a'),
                 a.vmem(f'buffer_load_dwordx4 {vr(AQ+4,4)}, v3, s[8:11], s31 offen offset:1024', 'a'),
                 a.vmem(f'buffer_load_dwordx4 {vr(AK,4)}, v3, s[8:11], s34 offen', 'a'),
                 a.vmem(f'buffer_load_dwordx4 {vr(AK+4,4)}, v3, s[8:11], s34 offen offset:1024', 'a')),
        lambda: (a.vmem(f'buffer_load_dwordx4 {vr(AK+8,4)}, v3, s[8:11], s35 offen', 'a'),
                 a.vmem(f'buffer_load_dwordx4 {vr(AK+12,4)}, v3, s[8:11], s35 offen offset:1024', 'a'),
                 a.vmem(f'buffer_load_dwordx4 {vr(AV,4)}, v3, s[8:11], s44 offen', 'a')),
        lambda: (a.vmem(f'buffer_load_dwordx4 {vr(AV+4,4)}, v3, s[8:11], s44 offen offset:1024', 'a'),
                 a.vmem(f'buffer_load_dwordx4 {vr(AV+8,4)}, v3, s[8:11], s45 offen', 'a'),
                 a.vmem(f'buffer_load_dwordx4 {vr(AV+12,4)}, v3, s[8:11], s45 offen offset:1024', 'a')),
    ]

    def finalize(gate_expr_reg, br):
        a(f'v_mov_b32 v13, v{VO+12}')
        a(f'v_mov_b32 v14, v{VO+12}')
        a('v_permlane32_swap_b32 v13, v14')
        a('v_rcp_f32 v14, v14')
        a(f'v_mul_f32 v14, v14, v{gate_expr_reg}')
        for r in range(16): a(f'v_mul_f32 v{VO+r}, v14, v{VO+r}')
        for i in range(8): a(f'v_cvt_pk_bf16_f32 v{VO+i}, v{VO+2*i}, v{VO+2*i+1}')
        a('v_cmp_gt_u32 vcc, 32, v2')
        a('v_mov_b32 v13, 0')
        a(f'v_cndmask_b32 v{VO+6}, v13, v{VO+6}, vcc')
        a(f'v_cndmask_b32 v{VO+7}, v13, v{VO+7}, vcc')
        a('s_lshl_b32 s38, s25, 16')
        a('s_lshl_b32 s39, s20, 11')
        a('s_add_u32 s38, s38, s39')
        a(f's_add_u32 s38, s38, {OF_OFF + br*32768}')
        a(f'buffer_store_dwordx4 {vr(VO,4)}, v3, s[8:11], s38 offen{STFLAG2}')
        a(f'buffer_store_dwordx4 {vr(VO+4,4)}, v3, s[8:11], s38 offen offset:1024{STFLAG2}')

    def lds_tile(idx, isv, t):
        st, i = idx >> 2, idx & 3
        b = st % 4
        base = 'v5' if b < 2 else 'v6'
        off = (b & 1) * K2_BUF + (16384 if isv else 0) + i*2048 + t*1024
        return base, off
    def rdK(idx):
        for t in range(2):
            base, off = lds_tile(idx, False, t)
            a(f'ds_read_b128 {vr(VK+(idx&1)*8+t*4,4)}, {base} offset:{off}')
    def rdV(idx):
        for t in range(2):
            base, off = lds_tile(idx, True, t)
            a(f'ds_read_b128 {vr(VV+(idx&1)*8+t*4,4)}, {base} offset:{off}')
    def stage_sync(st):
        a.vm_wait_tag(f'st{st}')
        a('s_barrier')
        if st >= 2 and st + 2 < 8: dma_stage(st + 2)
    NT = 32
    def smfma(idx, cneg, part):
        d = vr(VS+(idx&1)*16, 16); k = VK+(idx&1)*8
        c = vr(VNEG,16) if cneg else '0'
        if part == 0: a(f'v_mfma_f32_32x32x16_bf16 {d}, {vr(k,4)}, {vr(VQ,4)}, {c}')
        else:         a(f'v_mfma_f32_32x32x16_bf16 {d}, {vr(k+4,4)}, {vr(VQ+4,4)}, {d}')
    def pv(idx, first, part):
        v = VV+(idx&1)*8
        c = '0' if first else vr(VO,16)
        if part == 0: a(f'v_mfma_f32_32x32x16_bf16 {vr(VO,16)}, {vr(v,4)}, {vr(VP,4)}, {c}')
        else:         a(f'v_mfma_f32_32x32x16_bf16 {vr(VO,16)}, {vr(v+4,4)}, {vr(VP+4,4)}, {vr(VO,16)}')
    def tilemax(sb, dst):
        a(f'v_max3_f32 v{dst}, v{sb}, v{sb+1}, v{sb+2}')
        for r in range(3, 15, 2):
            a(f'v_max3_f32 v{dst}, v{dst}, v{sb+r}, v{sb+r+1}')
        a(f'v_max_f32 v{dst}, v{dst}, v{sb+15}')
        a(f'v_mov_b32 v13, v{dst}')
        a(f'v_permlane32_swap_b32 v{dst}, v13')
        a(f'v_max_f32 v{dst}, v{dst}, v13')
    stamp(a, 1)
    a.vm_wait_tag('q')
    d = vr(VS+16, 16)
    a(f'v_mfma_f32_32x32x16_bf16 {d}, {vr(VK,4)}, {vr(VQ,4)}, 0')
    a(f'v_mfma_f32_32x32x16_bf16 {d}, {vr(VK+4,4)}, {vr(VQ+4,4)}, {d}')
    tilemax(VS+16, 12)
    for r in range(16): a(f'v_sub_f32 v{VNEG+r}, 0, v12')
    smfma(0, True, 0); smfma(0, True, 1)
    stage_sync(0)
    stamp(a, 2)
    rdK(1)
    rdV(0)
    def quarter(sb, q):
        for i in (2*q, 2*q+1):
            a(f'v_exp_f32 v{sb+2*i}, v{sb+2*i}')
            a(f'v_exp_f32 v{sb+2*i+1}, v{sb+2*i+1}')
        for i in (2*q, 2*q+1):
            a(f'v_cvt_pk_bf16_f32 v{VP+i}, v{sb+2*i}, v{sb+2*i+1}')
    for idx in range(NT):
        sb = VS + (idx&1)*16
        n_out = 2
        if idx + 1 < NT:
            a('s_waitcnt lgkmcnt(2)')
            smfma(idx+1, True, 0)
        if idx + 2 < NT:
            if (idx + 2) % 4 == 0:
                stage_sync((idx+2) >> 2)
                stamp(a, 2 + ((idx+2) >> 2))
            rdK(idx+2); n_out += 2
        quarter(sb, 0)
        if idx > 0: pv(idx-1, False, 1)
        if idx + 1 < NT:
            rdV(idx+1); n_out += 2
        quarter(sb, 1)
        if idx + 1 < NT: smfma(idx+1, True, 1)
        if idx < len(deferred): deferred[idx]()
        quarter(sb, 2)
        a(f's_waitcnt lgkmcnt({n_out-2})')
        pv(idx, idx == 0, 0)
        quarter(sb, 3)
    pv(NT-1, False, 1)
    stamp(a, 10)
    a('v_sub_f32 v15, 1.0, v9')
    a(f'v_add_f32 v13, |v{VO}|, |v{VO+1}|')
    for r in range(2, 16): a(f'v_add_f32 v13, v13, |v{VO+r}|')
    a('v_mov_b32 v14, 0x7b800000')
    a('v_cmp_nlt_f32 vcc, v13, v14')
    a('s_cbranch_vccz K2_OKFAST')
    a('v_mov_b32 v10, 1')
    a(f'v_mov_b32 v11, {K2_FLAG}')
    a('ds_write_b32 v11, v10')
    a.label('K2_OKFAST')
    def combine(tag):
        a('s_mul_i32 s38, s23, %d' % (5*1024))
        a(f's_add_u32 s38, s38, {K2_COMB}')
        a('v_add_u32 v10, s38, v3')
        a('s_cmp_eq_u32 s24, 0')
        a(f's_cbranch_scc1 K2_C1_{tag}')
        for r in range(4): a(f'ds_write_b128 v10, {vr(VO+4*r,4)} offset:{1024*r}')
        a(f'ds_write_b32 v10, v12 offset:{4096}')
        a.label(f'K2_C1_{tag}')
        a('s_waitcnt lgkmcnt(0)')
        a('s_barrier')
    combine('F')
    a(f'v_mov_b32 v11, {K2_FLAG}')
    a('ds_read_b32 v11, v11')
    a('s_waitcnt lgkmcnt(0)')
    a('v_readfirstlane_b32 s38, v11')
    a('s_cmp_eq_u32 s38, 0')
    a('s_cbranch_scc1 K2_MERGE')
    a('s_barrier')
    a.vm_wait_all()
    for st in range(4): dma_stage(st)
    a('v_mov_b32 v12, 0xff7fffff')
    for r in range(16): a(f'v_mov_b32 v{VO+r}, 0')
    for idx in range(NT):
        if idx % 4 == 0: stage_sync(idx >> 2)
        rdK(idx); rdV(idx)
        a('s_waitcnt lgkmcnt(0)')
        smfma(idx, False, 0); smfma(idx, False, 1)
        sb = VS + (idx&1)*16
        tilemax(sb, 11)
        a('v_max_f32 v11, v11, v12')
        a('v_sub_f32 v10, v12, v11')
        a('v_exp_f32 v10, v10')
        a('v_mov_b32 v12, v11')
        for r in range(16):
            a(f'v_sub_f32 v{sb+r}, v{sb+r}, v11')
            a(f'v_exp_f32 v{sb+r}, v{sb+r}')
        for i in range(8): a(f'v_cvt_pk_bf16_f32 v{VP+i}, v{sb+2*i}, v{sb+2*i+1}')
        for r in range(16): a(f'v_mul_f32 v{VO+r}, v10, v{VO+r}')
        pv(idx, False, 0); pv(idx, False, 1)
    a('s_barrier')
    combine('S')
    a.label('K2_MERGE')
    a.reset_haz(); a.nop(16)
    a('s_waitcnt vmcnt(0)')
    a('s_cmp_eq_u32 s24, 0')
    a('s_cbranch_scc0 K2_ABR')
    for r in range(4): a(f'ds_read_b128 {vr(VS+4*r,4)}, v10 offset:{1024*r}')
    a(f'ds_read_b32 v11, v10 offset:{4096}')
    a('s_waitcnt lgkmcnt(0)')
    a('v_max_f32 v13, v11, v12')
    a('v_sub_f32 v11, v11, v13')
    a('v_sub_f32 v12, v12, v13')
    a('v_exp_f32 v11, v11')
    a('v_exp_f32 v12, v12')
    for r in range(16):
        a(f'v_mul_f32 v{VO+r}, v12, v{VO+r}')
        a(f'v_fmac_f32 v{VO+r}, v11, v{VS+r}')
    finalize(15, 1)
    a('s_waitcnt vmcnt(0)')
    stamp(a, 11)
    if not os.environ.get('HDBG'): stamp_flush(a, 12, 's22')
    rt_end(a, 1, 's22')
    a('s_endpgm')
    a.label('K2_ABR')
    a.reset_haz(); a.nop(4)
    S0, S1 = VS, VS+16
    a(f'v_mfma_f32_32x32x16_bf16 {vr(S0,16)}, {vr(AK,4)}, {vr(AQ,4)}, 0')
    a(f'v_mfma_f32_32x32x16_bf16 {vr(S0,16)}, {vr(AK+4,4)}, {vr(AQ+4,4)}, {vr(S0,16)}')
    a(f'v_mfma_f32_32x32x16_bf16 {vr(S1,16)}, {vr(AK+8,4)}, {vr(AQ,4)}, 0')
    a(f'v_mfma_f32_32x32x16_bf16 {vr(S1,16)}, {vr(AK+12,4)}, {vr(AQ+4,4)}, {vr(S1,16)}')
    a('v_mov_b32 v12, 0xff800000')
    a('s_cmp_eq_u32 s25, 0')
    a('s_cselect_b32 s56, 0, -1')
    a('s_mov_b32 s57, s56')
    def lanemask(r, off):
        m = 0
        for l in range(64):
            i, h = l & 31, l >> 5
            d = i + off - ((r & 3) + 8*(r >> 2) + 4*h)
            if 0 <= d <= 14 and d % 2 == 0: m |= 1 << l
        return m
    regs = [(S0 + r, r, 32) for r in range(8, 16)] + [(S1 + r, r, 0) for r in range(16)]
    for n, (vreg, r, off) in enumerate(regs):
        m = lanemask(r, off)
        sp = 48 + 2*(n & 3)
        a(f's_mov_b32 s{sp}, {m & 0xffffffff:#x}')
        a(f's_mov_b32 s{sp+1}, {m >> 32:#x}')
        if off == 32: a(f's_and_b64 s[{sp}:{sp+1}], s[{sp}:{sp+1}], s[56:57]')
        a(f'v_cndmask_b32 v{vreg}, v12, v{vreg}, s[{sp}:{sp+1}]')
    B0 = S0 + 8
    a(f'v_max3_f32 v13, v{B0}, v{B0+1}, v{B0+2}')
    for r in range(3, 23, 2):
        a(f'v_max3_f32 v13, v13, v{B0+r}, v{B0+r+1}')
    a(f'v_max_f32 v13, v13, v{B0+23}')
    a('v_mov_b32 v14, v13')
    a('v_permlane32_swap_b32 v13, v14')
    a('v_max_f32 v13, v13, v14')
    for r in range(24):
        a(f'v_sub_f32 v{B0+r}, v{B0+r}, v13')
        a(f'v_exp_f32 v{B0+r}, v{B0+r}')
    for i in range(12):
        a(f'v_cvt_pk_bf16_f32 v{S0+i}, v{B0+2*i}, v{B0+2*i+1}')
    a(f'v_mfma_f32_32x32x16_bf16 {vr(VO,16)}, {vr(AV+4,4)}, {vr(S0,4)}, 0')
    a(f'v_mfma_f32_32x32x16_bf16 {vr(VO,16)}, {vr(AV+8,4)}, {vr(S0+4,4)}, {vr(VO,16)}')
    a(f'v_mfma_f32_32x32x16_bf16 {vr(VO,16)}, {vr(AV+12,4)}, {vr(S0+8,4)}, {vr(VO,16)}')
    finalize(9, 0)
    a.label('K2_END')
    a('s_endpgm')
    return descriptor(name, 168)

K3_NB = 5
def gen_k3(a):
    name = 'out_kernel'
    header(a, name)
    a('s_cmp_ge_u32 s2, 224')
    a('s_cbranch_scc1 K3_END')
    rt_start(a)
    stamp(a, 0)
    a('s_load_dwordx2 s[4:5], s[0:1], 72')
    a('s_load_dwordx2 s[6:7], s[0:1], 56')
    a('s_and_b32 s20, s2, 7'); a('s_lshr_b32 s21, s2, 3')
    a('s_mul_i32 s22, s21, 37'); a('s_lshr_b32 s22, s22, 8')
    a('s_mul_i32 s23, s22, 7'); a('s_sub_u32 s23, s21, s23')
    a('s_lshl_b32 s20, s20, 2'); a('s_add_u32 s22, s22, s20')
    a('v_lshrrev_b32 v1, 6, v0')
    a('v_and_b32 v2, 63, v0')
    a('v_readfirstlane_b32 s32, v1')
    a('s_and_b32 s24, s32, 3')
    a('s_and_b32 s25, s24, 1')
    a('s_lshr_b32 s26, s24, 1')
    a('v_lshlrev_b32 v3, 4, v2')
    a('s_cmp_lt_u32 s32, 4')
    a('s_cbranch_scc1 K3_COMPUTE')
    a('s_lshl_b32 s27, s22, 1'); a('s_add_u32 s27, s27, s24'); a('s_lshl_b32 s27, s27, 16'); a(f's_add_u32 s27, s27, {OF_OFF}')
    a('s_lshl_b32 s28, s23, 1'); a('s_add_u32 s28, s28, s24'); a('s_sub_u32 s28, s28, 2'); a('s_lshl_b32 s28, s28, 16'); a(f's_add_u32 s28, s28, {WOF_OFF}')
    a('s_cmp_lt_u32 s24, 2')
    a('s_cselect_b32 s27, s27, s28')
    a('s_lshl_b32 s29, s24, 13')
    a('s_waitcnt lgkmcnt(0)')
    srd(a, 8, 4, 5, WS_BYTES)
    def dma_stage(st):
        buf = (st % K3_NB) * 32768
        for half in range(2):
            a(f's_add_u32 s30, s29, {buf + half*4096}')
            a('s_mov_b32 m0, s30')
            a(f's_add_u32 s31, s27, {st*8192 + half*4096}')
            for q in range(4):
                a.vmem(f'buffer_load_dwordx4 v3, s[8:11], s31 offen offset:{q*1024} lds', f'st{st}')
    for st in range(2): dma_stage(st)
    nxt = 2
    for st in range(8):
        a.vm_wait_tag(f'st{st}')
        a('s_barrier')
        lim = max(K3_NB - 1, st - 2 + K3_NB)
        cnt = 0
        while nxt < 8 and nxt <= lim and cnt < 2:
            dma_stage(nxt); nxt += 1; cnt += 1
    a('s_endpgm')
    a.label('K3_COMPUTE')
    a.reset_haz(); a.vm = []
    a('s_lshl_b32 s30, s25, 13')
    a('v_add_u32 v4, s30, v3')
    a('s_lshl_b32 s30, s26, 13')
    a('s_add_u32 s30, s30, 16384')
    a('v_add_u32 v5, s30, v3')
    a('v_add_u32 v6, 0x10000, v4')
    a('v_add_u32 v7, 0x10000, v5')
    a('v_and_b32 v8, 31, v2')
    a('s_lshl_b32 s30, s22, 6'); a('s_lshl_b32 s31, s25, 5'); a('s_add_u32 s30, s30, s31')
    a('v_add_u32 v8, s30, v8')
    a('s_movk_i32 s31, 896')
    a('v_mul_lo_u32 v8, v8, s31')
    a('v_lshrrev_b32 v9, 5, v2')
    a('v_lshl_add_u32 v8, v9, 4, v8')
    a('s_lshl_b32 s30, s23, 7'); a('s_lshl_b32 s31, s26, 6'); a('s_add_u32 s30, s30, s31')
    a('s_waitcnt lgkmcnt(0)')
    srd(a, 12, 6, 7, 2048*448*2)
    ACC, FA, FB = 16, 32, 48
    PD = 4
    a('v_add_u32 v10, 0x20000, v4')
    a('v_add_u32 v11, 0x20000, v5')
    def rd(ks):
        st, k = ks >> 3, ks & 7
        b = st % K3_NB
        off = (b & 1)*32768 + k*1024
        ra = ('v5', 'v7', 'v11')[b >> 1]; rb = ('v4', 'v6', 'v10')[b >> 1]
        a(f'ds_read_b128 {vr(FA+(ks%PD)*4,4)}, {ra} offset:{off}')
        a(f'ds_read_b128 {vr(FB+(ks%PD)*4,4)}, {rb} offset:{off}')
    stamp(a, 1)
    a('s_barrier')
    stamp(a, 2)
    for ks in range(PD-1): rd(ks)
    for ks in range(64):
        nk = ks + PD - 1
        if nk < 64:
            if nk % 8 == 0:
                a('s_barrier')
                stamp(a, 2 + (nk >> 3))
            rd(nk)
            a(f's_waitcnt lgkmcnt({2*(PD-1)})')
        else:
            a(f's_waitcnt lgkmcnt({2*(63-ks)})')
        c = '0' if ks == 0 else vr(ACC,16)
        a(f'v_mfma_f32_32x32x16_bf16 {vr(ACC,16)}, {vr(FA+(ks%PD)*4,4)}, {vr(FB+(ks%PD)*4,4)}, {c}')
    stamp(a, 10)
    for i in range(8): a(f'v_cvt_pk_bf16_f32 v{ACC+i}, v{ACC+2*i}, v{ACC+2*i+1}')
    for p in range(2):
        b = ACC + 4*p
        a(f'v_permlane32_swap_b32 v{b}, v{b+2}')
        a(f'v_permlane32_swap_b32 v{b+1}, v{b+3}')
    for p in range(2):
        b = ACC + 4*p
        a(f'buffer_store_dwordx4 {vr(b,4)}, v8, s[12:15], s30 offen offset:{32*p}')
    if STAMP: a('s_waitcnt vmcnt(0)')
    stamp(a, 11)
    if not os.environ.get('HDBG'): stamp_flush(a, 12, 's32')
    rt_end(a, 2, 's32')
    a.label('K3_END')
    a('s_endpgm')
    return descriptor(name, 64)

def main():
    a = Asm()
    hdr = open('cdna_kernels/%s.s.ref' % NAME).read().split('; Override launch')[0]
    out = hdr
    out += f'; @launch kernel=qkv_kernel grid=(256,1,1) block=({256+64*NLD},1,1) lds={K1_STAGE*K1_NBUF}\n'
    out += f'; @launch kernel=attn_kernel grid=(256,1,1) block=(512,1,1) lds={K2_LDS}\n'
    out += f'; @launch kernel=out_kernel grid=(224,1,1) block=(512,1,1) lds={K3_NB*32768}\n'
    out += '.amdgcn_target "amdgcn-amd-amdhsa--gfx950"\n.text\n'
    d1 = gen_k1(a); d2 = gen_k2(a); d3 = gen_k3(a)
    out += a.text()
    out += '.section .rodata,"a"\n'
    for d in (d1, d2, d3):
        out += '.p2align 6\n' + d
    open('cdna_kernels/%s.s' % NAME, 'w').write(out)
main()
```

```python
import sys, math
sys.path.insert(0, 'gen')
from asmlib import Asm

NAME = 'gated_mix__sliding_local_dilated__mha_block__prompt'
MB = 1 << 20
QF_OFF, KF_OFF, VF_OFF, OF_OFF, WOF_OFF, G_OFF = 0, 4*MB, 8*MB, 12*MB, 16*MB, 17*MB
WS_BYTES = 18*MB
import struct
def f32bits(x): return struct.unpack('<I', struct.pack('<f', x))[0]
CSCALE = f32bits((28 ** -0.5) * math.log2(math.e))
NLOG2E = f32bits(-math.log2(math.e))

def vr(b, n): return f'v[{b}:{b+n-1}]'

def srd(a, s, lo, hi, size):
    a(f's_mov_b32 s{s}, s{lo}')
    a(f's_and_b32 s{s+1}, s{hi}, 0xffff')
    a(f's_mov_b32 s{s+2}, {size}')
    a(f's_mov_b32 s{s+3}, 0x20000')

import os
STAMP = int(os.environ.get('STAMP', '0'))
STFLAG = os.environ.get('STFLAG', ' sc1')
STFLAG2 = os.environ.get('STFLAG2', ' sc1')
def stamp(a, i):
    if not STAMP: return
    a('s_memtime s[90:91]')
    a('s_waitcnt lgkmcnt(0)')
    a(f's_mov_b32 s{70+i}, s90')
def stamp_flush(a, n, wavereg):
    if not STAMP: return
    a('s_load_dwordx2 s[92:93], s[0:1], 64')
    a('s_waitcnt lgkmcnt(0)')
    if os.environ.get('HDBG'):
        a('s_add_u32 s92, s92, 1024')
        a('s_addc_u32 s93, s93, 0')
    a(f's_cmp_lg_u32 s2, {STAMP-1}')
    a('s_cbranch_scc1 NOSTAMP_%d' % len(a.lines))
    lab = 'NOSTAMP_%d' % (len(a.lines)-1)
    a(f's_cmp_lg_u32 {wavereg}, 0')
    a('s_cbranch_scc1 ' + lab)
    a('v_mov_b32 v1, 0')
    for i in range(n):
        a(f's_sub_u32 s94, s{70+i}, s70')
        a('v_mov_b32 v2, s94')
        a(f'global_store_dword v1, v2, s[92:93] offset:{4*i}')
    a('s_waitcnt vmcnt(0)')
    a.label(lab)

def rt_start(a):
    if not STAMP: return
    a('s_memrealtime s[86:87]')
    a('s_waitcnt lgkmcnt(0)')
def rt_end(a, kidx, wavereg):
    if not STAMP: return
    a('s_memrealtime s[88:89]')
    a('s_load_dwordx2 s[92:93], s[0:1], 72')
    a('s_load_dwordx2 s[84:85], s[0:1], 64')
    a('s_waitcnt lgkmcnt(0)')
    lab = 'NORT_%d' % len(a.lines)
    a(f's_cmp_lg_u32 {wavereg}, 0')
    a('s_cbranch_scc1 ' + lab)
    a('s_lshl_b32 s94, s2, 3')
    a(f's_add_u32 s94, s94, {32*MB + kidx*4096}')
    a('v_mov_b32 v1, s94')
    a('v_mov_b32 v2, s86')
    a('v_mov_b32 v3, s88')
    a('global_store_dwordx2 v1, v[2:3], s[92:93]')
    if os.environ.get('HDBG'):
        a(f's_add_u32 s84, s84, {512*(2-kidx)}')
        a('s_addc_u32 s85, s85, 0')
        a('v_mov_b32 v1, 0')
        a('s_mov_b64 exec, 1')
        a(f'global_atomic_umax v1, v2, s[84:85] offset:{24+8*kidx}')
        a(f'global_atomic_umax v1, v3, s[84:85] offset:{28+8*kidx}')
        a('s_cmp_lg_u32 s2, 0')
        a('s_cbranch_scc1 ' + lab)
        a(f'global_store_dwordx2 v1, v[2:3], s[84:85] offset:{8*kidx}')
    a('s_waitcnt vmcnt(0)')
    a.label(lab)

def header(a, name):
    a.raw('.p2align 8')
    a.raw(f'.globl {name}')
    a.raw(f'.type {name},@function')
    a.label(name)
    a.reset_haz(); a.vm = []

def descriptor(name, vgpr, sgpr=96):
    acc = (vgpr + 3) // 4 * 4
    return f""".amdhsa_kernel {name}
  .amdhsa_next_free_vgpr {vgpr}
  .amdhsa_next_free_sgpr {sgpr}
  .amdhsa_accum_offset {acc}
  .amdhsa_group_segment_fixed_size 0
  .amdhsa_kernarg_size 80
  .amdhsa_user_sgpr_count 2
  .amdhsa_user_sgpr_kernarg_segment_ptr 1
  .amdhsa_system_sgpr_workgroup_id_x 1
.end_amdhsa_kernel
"""

K1_NBUF = int(os.environ.get('K1NB', '3'))
K1_STAGE = 40960 if K1_NBUF == 3 else 38912
PREF = int(os.environ.get('PREF', '2'))
NLD = int(os.environ.get('NLD', '4'))
def gen_k1(a):
    name = 'qkv_kernel'
    header(a, name)
    def l2_prefetch(loader):
        if not loader:
            a('s_cmp_eq_u32 s46, 0')
            a('s_cselect_b32 s12, s6, s24')
            a('s_cselect_b32 s13, s7, s25')
            a('s_and_b32 s13, s13, 0xffff')
            a(f's_mov_b32 s14, {448*1344*2}')
            a('s_mov_b32 s15, 0x20000')
        a('s_lshr_b32 s51, s2, 3')
        a('s_and_b32 s52, s2, 1')
        a(f's_mul_i32 s52, s52, {1024*896}')
        a(f's_mul_i32 s53, s51, {224*128}')
        a('s_add_u32 s52, s52, s53')
        a('v_and_b32 v7, 255, v0')
        a('v_lshlrev_b32 v3, 7, v7')
        a('v_mov_b32 v8, 0x40000000')
        a('v_cmp_gt_u32 vcc, 224, v7')
        a('v_cndmask_b32 v3, v8, v3, vcc')
        a.vmem('buffer_load_dword v20, v3, s[8:11], s52 offen', 'pf')
        a('s_mul_i32 s53, s51, 210')
        a('v_add_u32 v3, s53, v7')
        a('s_mov_b32 s53, 52429')
        a('v_mul_lo_u32 v4, v3, s53')
        a('v_lshrrev_b32 v4, 18, v4')
        a('v_mul_u32_u24 v5, 5, v4')
        a('v_sub_u32 v5, v3, v5')
        a('v_mul_u32_u24 v6, 896, v4')
        a('v_lshlrev_b32 v5, 7, v5')
        a('v_min_u32 v5, 444, v5')
        a('v_add_u32 v6, v6, v5')
        a('v_cmp_gt_u32 vcc, 210, v7')
        a('v_cndmask_b32 v6, v8, v6, vcc')
        a('s_and_b32 s53, s47, 4')
        a('s_mul_i32 s53, s53, 112')
        a.vmem('buffer_load_dword v21, v6, s[12:15], s53 offen', 'pf')
    a('s_cmp_ge_u32 s2, 256')
    a('s_cbranch_scc1 K1_END')
    rt_start(a)
    stamp(a, 0)
    a('s_load_dwordx4 s[4:7], s[0:1], 0')
    a('s_load_dwordx2 s[20:21], s[0:1], 16')
    a('s_load_dwordx4 s[24:27], s[0:1], 32')
    a('s_load_dwordx2 s[28:29], s[0:1], 48')
    a('s_load_dwordx2 s[30:31], s[0:1], 72')
    a('s_and_b32 s51, s2, 7')
    a('s_lshr_b32 s52, s2, 3')
    a('s_and_b32 s53, s51, 1'); a('s_lshl_b32 s53, s53, 3'); a('s_lshr_b32 s54, s52, 2'); a('s_add_u32 s44, s53, s54')
    a('s_lshr_b32 s53, s51, 1'); a('s_lshl_b32 s53, s53, 2'); a('s_and_b32 s54, s52, 3'); a('s_add_u32 s45, s53, s54')
    a('s_lshr_b32 s46, s45, 3')
    a('s_and_b32 s47, s45, 7')
    a('v_lshrrev_b32 v1, 6, v0')
    a('v_and_b32 v2, 63, v0')
    a('v_readfirstlane_b32 s59, v1')
    a('s_and_b32 s48, s59, 3')
    a('s_and_b32 s49, s48, 1')
    a('s_lshr_b32 s50, s48, 1')
    a('s_cmp_lt_u32 s59, 4')
    a('s_cbranch_scc1 K1_COMPUTE')
    a('s_sub_u32 s48, s59, 4')
    a('v_lshrrev_b32 v11, 3, v2')
    a('s_lshl_b32 s51, s44, 7')
    a('s_lshl_b32 s52, s48, 3')
    a('s_add_u32 s51, s51, s52')
    a('v_add_u32 v11, s51, v11')
    a('s_movk_i32 s52, 896')
    a('v_mul_lo_u32 v12, v11, s52')
    a('v_lshrrev_b32 v11, 4, v2')
    a('s_lshl_b32 s52, s48, 2')
    a('v_add_u32 v11, s52, v11')
    a('v_and_b32 v11, 7, v11')
    a('v_and_b32 v13, 7, v2')
    a('v_xor_b32 v11, v11, v13')
    a('v_lshl_add_u32 v12, v11, 4, v12')
    a('s_mul_i32 s52, s47, 112')
    for j in range(24//NLD):
        r = 14 + j
        a(f's_lshl_b32 s51, s48, 6')
        a(f's_add_u32 s51, s51, {64*NLD*j}')
        a(f'v_add_u32 v44, s51, v2')
        a('s_movk_i32 s53, 3121')
        a('v_mul_lo_u32 v45, v44, s53')
        a('v_lshrrev_b32 v45, 16, v45')
        a('v_mul_u32_u24 v46, 21, v45')
        a('v_sub_u32 v46, v44, v46')
        a('v_mul_u32_u24 v47, 37, v46')
        a('v_lshrrev_b32 v47, 8, v47')
        a('v_and_b32 v48, 0xfffffff0, v45')
        a('v_and_b32 v49, 3, v45')
        a('v_lshl_or_b32 v48, v49, 2, v48')
        a('v_bfe_u32 v49, v45, 2, 2')
        a('v_or_b32 v48, v48, v49')
        a('s_movk_i32 s53, 2688')
        a('v_mul_lo_u32 v48, v48, s53')
        a('s_movk_i32 s53, 784')
        a('v_mul_lo_u32 v47, v47, s53')
        a(f'v_lshl_add_u32 v{r}, v46, 4, v48')
        a(f'v_add3_u32 v{r}, v{r}, v47, s52')
    a('s_lshl_b32 s55, s48, 10')
    a('s_waitcnt lgkmcnt(0)')
    srd(a, 8, 4, 5, 2048*448*2)
    a('s_cmp_eq_u32 s46, 0')
    a('s_cselect_b32 s12, s6, s24')
    a('s_cselect_b32 s13, s7, s25')
    a('s_and_b32 s13, s13, 0xffff')
    a(f's_mov_b32 s14, {448*1344*2}')
    a('s_mov_b32 s15, 0x20000')
    def dma_stage(st):
        buf = (st % K1_NBUF) * K1_STAGE
        for j in range(16//NLD):
            a(f's_add_u32 s51, s55, {buf + j*1024*NLD}')
            a('s_mov_b32 m0, s51')
            a(f's_mov_b32 s52, {st*128 + j*8*NLD*896}')
            a.vmem('buffer_load_dwordx4 v12, s[8:11], s52 offen lds', f'st{st}')
        for j in range(24//NLD):
            a(f's_add_u32 s51, s55, {buf + 16384 + j*1024*NLD}')
            a('s_mov_b32 m0, s51')
            if K1_NBUF > 3 and j == 5:
                a(f's_min_u32 s51, s51, {buf + 16384 + 21*1024}')
                a('s_mov_b32 m0, s51')
            a(f's_mov_b32 s52, {st*64*2688}')
            a.vmem(f'buffer_load_dwordx4 v{14+j}, s[12:15], s52 offen lds', f'st{st}')
    NST = 7
    for st in range(K1_NBUF):
        dma_stage(st)
        if PREF == 2 + st: l2_prefetch(True)
    for st in range(NST):
        a.vm_wait_tag(f'st{st}')
        a('s_barrier')
        if st >= 1 and st - 1 + K1_NBUF < NST: dma_stage(st - 1 + K1_NBUF)
    a('s_endpgm')
    a.label('K1_COMPUTE')
    a.reset_haz(); a.vm = []
    a('s_waitcnt lgkmcnt(0)')
    stamp(a, 12)
    srd(a, 8, 4, 5, 2048*448*2)
    srd(a, 16, 30, 31, WS_BYTES)
    srd(a, 40, 28, 29, 448*2)
    if PREF == 1: l2_prefetch(False)
    a('v_and_b32 v3, 31, v2')
    a('v_lshrrev_b32 v4, 5, v2')
    a('s_lshl_b32 s51, s2, 3')
    a('s_lshl_b32 s52, s48, 1')
    a('s_add_u32 s51, s51, s52')
    a('v_add_u32 v5, s51, v4')
    a('s_movk_i32 s52, 896')
    a('v_mul_lo_u32 v6, v5, s52')
    a('v_lshlrev_b32 v7, 5, v3')
    a('v_add_u32 v6, v6, v7')
    a('v_mov_b32 v8, 0x40000000')
    a('v_cmp_gt_u32 vcc, 28, v3')
    a('v_cndmask_b32 v6, v8, v6, vcc')
    a('v_cndmask_b32 v7, v8, v7, vcc')
    a.vmem('buffer_load_dwordx4 v[20:23], v6, s[8:11], 0 offen', 'gate')
    a.vmem('buffer_load_dwordx4 v[24:27], v6, s[8:11], 0 offen offset:16', 'gate')
    a.vmem('buffer_load_dwordx4 v[28:31], v7, s[40:43], 0 offen', 'gate')
    a.vmem('buffer_load_dwordx4 v[32:35], v7, s[40:43], 0 offen offset:16', 'gate')
    a('s_lshl_b32 s51, s2, 2')
    a('s_add_u32 s51, s51, s48')
    a('s_and_b32 s52, s51, 63')
    a('s_lshr_b32 s53, s51, 6')
    a('s_lshr_b32 s54, s52, 5')
    a('s_cmp_eq_u32 s54, 0')
    a('s_cselect_b32 s32, s20, s26')
    a('s_cselect_b32 s33, s21, s27')
    a('s_and_b32 s33, s33, 0xffff')
    a(f's_mov_b32 s34, {448*448*2}')
    a('s_mov_b32 s35, 0x20000')
    a('s_lshr_b32 s55, s52, 1'); a('s_and_b32 s55, s55, 15')
    a('s_and_b32 s56, s52, 1')
    a('s_mul_i32 s55, s55, 28')
    a('s_lshl_b32 s57, s56, 4')
    a('s_add_u32 s55, s55, s57')
    a('v_lshlrev_b32 v9, 2, v4')
    a('v_add_u32 v9, s55, v9')
    a('s_movk_i32 s52, 896')
    a('v_mul_lo_u32 v9, v9, s52')
    a('s_lshl_b32 s53, s53, 6')
    a('v_lshlrev_b32 v10, 1, v3')
    a('v_add3_u32 v9, v9, v10, s53')
    a(f'v_add_u32 v10, {8*896}, v9')
    a('v_and_b32 v11, s56, v4')
    a('v_cmp_eq_u32 vcc, 0, v11')
    a('v_cndmask_b32 v10, v8, v10, vcc')
    a('s_cmp_ge_u32 s2, 224')
    a('s_cselect_b32 s58, 0x40000000, 0')
    for j in range(4):
        a.vmem(f'buffer_load_ushort v{36+j}, v9, s[32:35], s58 offen offset:{896*j}', 'wo')
    for j in range(4):
        a.vmem(f'buffer_load_ushort v{40+j}, v10, s[32:35], s58 offen offset:{896*j}', 'wo')
    stamp(a, 13)
    ACC = 64
    XF = 18
    WF = 34
    for i in range(96):
        a(f'v_mov_b32 v{ACC+i}, 0')
    a.vm_wait_tag('gate')
    a('v_mov_b32 v44, 0')
    for i in range(8):
        xs, gs = 20 + i, 28 + i
        a(f'v_lshlrev_b32 v45, 16, v{xs}')
        a(f'v_and_b32 v46, 0xffff0000, v{xs}')
        a(f'v_lshlrev_b32 v47, 16, v{gs}')
        a(f'v_and_b32 v48, 0xffff0000, v{gs}')
        a('v_mul_f32 v45, v45, v47')
        a('v_mul_f32 v46, v46, v48')
        a('v_cvt_pk_bf16_f32 v45, v45, v46')
        a('v_lshlrev_b32 v46, 16, v45')
        a('v_and_b32 v45, 0xffff0000, v45')
        a('v_add_f32 v44, v44, v46')
        a('v_add_f32 v44, v44, v45')
    for off in (0x041F, 0x081F, 0x101F, 0x201F, 0x401F):
        a(f'ds_swizzle_b32 v45, v44 offset:{off}')
        a('s_waitcnt lgkmcnt(0)')
        a('v_add_f32 v44, v44, v45')
    a('v_cvt_pk_bf16_f32 v44, v44, v44')
    a('v_lshlrev_b32 v44, 16, v44')
    a(f'v_mul_f32 v44, {NLOG2E}, v44')
    a('v_exp_f32 v44, v44')
    a('v_add_f32 v44, 1.0, v44')
    a('v_rcp_f32 v44, v44')
    a('v_cvt_pk_bf16_f32 v44, v44, v44')
    a('v_lshlrev_b32 v44, 16, v44')
    a('v_lshlrev_b32 v45, 2, v5')
    a(f'v_add_u32 v45, {G_OFF}, v45')
    a('v_cmp_eq_u32 vcc, 0, v3')
    a('v_cndmask_b32 v45, v8, v45, vcc')
    a.vmem('buffer_store_dword v44, v45, s[16:19], 0 offen', 'gst')
    a.vm_wait_tag('wo')
    for j in range(4):
        a(f'v_lshl_or_b32 v{44+j}, v{37+2*j}, 16, v{36+2*j}')
    a('s_lshl_b32 s51, s2, 12')
    a(f's_add_u32 s51, s51, {WOF_OFF}')
    a('s_add_u32 s51, s51, s58')
    a('v_lshlrev_b32 v48, 4, v0')
    a.vmem('buffer_store_dwordx4 v[44:47], v48, s[16:19], s51 offen', 'gst')
    a('v_and_b32 v3, 31, v2')
    a('v_lshrrev_b32 v4, 5, v2')
    a('v_bfe_u32 v5, v3, 1, 3')
    a('s_lshl_b32 s51, s49, 13')
    a('v_lshlrev_b32 v6, 7, v3')
    a('v_add_u32 v6, s51, v6')
    for s in range(4):
        a(f'v_add_u32 v7, {2*s}, v4')
        a('v_xor_b32 v7, v7, v5')
        a(f'v_lshl_add_u32 v{8+s}, v7, 4, v6')
    a('v_bfe_u32 v5, v2, 2, 2')
    a('v_lshlrev_b32 v5, 2, v5')
    a('v_lshl_add_u32 v5, v4, 1, v5')
    a('v_mul_u32_u24 v5, 336, v5')
    a('v_bfe_u32 v6, v2, 4, 1')
    a('v_lshl_add_u32 v5, v6, 5, v5')
    a('v_and_b32 v6, 3, v2')
    a('v_lshl_add_u32 v5, v6, 3, v5')
    a('s_mul_i32 s51, s50, 56')
    a(f's_add_u32 s51, s51, 16384')
    a('v_add_u32 v12, s51, v5')
    def acc(which, tt): return ACC + (which*2 + tt)*16
    def rd_list(s, pb):
        l = []
        for tt in range(2):
            l.append(f'ds_read_b128 {vr(XF+pb*8+tt*4,4)}, v{13+s} offset:{tt*4096}')
        for which in range(3):
            for u in range(2):
                l.append(f'ds_read_b64_tr_b16 {vr(WF+pb*12+which*4+u*2,2)}, v17 offset:{s*5376+u*336+which*112}')
        return l
    def set_stage_addr(st):
        buf = (st % K1_NBUF) * K1_STAGE
        for s in range(4):
            a(f'v_add_u32 v{13+s}, {buf}, v{8+s}')
        a(f'v_add_u32 v17, {buf}, v12')
    def mfma_list(pb):
        l = []
        for which in range(3):
            for tt in range(2):
                xf = vr(XF+pb*8+tt*4, 4); wf = vr(WF+pb*12+which*4, 4); d = vr(acc(which, tt), 16)
                if which < 2: l.append(f'v_mfma_f32_32x32x16_bf16 {d}, {wf}, {xf}, {d}')
                else:         l.append(f'v_mfma_f32_32x32x16_bf16 {d}, {xf}, {wf}, {d}')
        return l
    set_stage_addr(0)
    stamp(a, 2)
    a('s_barrier')
    stamp(a, 3)
    for t in rd_list(0, 0): a(t)
    step = 0
    for st in range(NST):
        for s in range(4):
            pb = step & 1
            last = (st == NST-1 and s == 3)
            a('s_waitcnt lgkmcnt(0)')
            rl = []
            if s < 3:
                rl = rd_list(s+1, pb ^ 1)
            elif not last:
                a('s_barrier')
                stamp(a, 4+st)
                set_stage_addr(st+1)
                rl = rd_list(0, pb ^ 1)
            ml = mfma_list(pb)
            for i, m in enumerate(ml):
                a(m)
                for t in rl[2*i:2*i+2]: a(t)
            step += 1
    stamp(a, 10)
    a('s_lshl_b32 s51, s47, 1'); a('s_add_u32 s51, s51, s50')
    a('s_lshl_b32 s52, s46, 4'); a('s_add_u32 s51, s51, s52')
    a('s_lshl_b32 s51, s51, 17')
    a('s_lshl_b32 s52, s44, 2'); a('s_lshl_b32 s53, s49, 1'); a('s_add_u32 s52, s52, s53')
    a('s_lshl_b32 s52, s52, 11')
    a('s_add_u32 s51, s51, s52')
    a('v_lshlrev_b32 v3, 4, v2')
    a(f's_mov_b32 s56, {CSCALE}')
    a('v_cmp_gt_u32 s[60:61], 32, v2')
    a('v_and_b32 v4, 31, v2')
    a('v_cmp_eq_u32 s[62:63], 28, v4')
    a('v_mov_b32 v5, 0')
    a('v_mov_b32 v6, 0x3f803f80')
    for which in range(3):
        a(f's_add_u32 s52, s51, {which*4*MB}')
        for tt in range(2):
            b = acc(which, tt)
            if which == 0:
                for i in range(16): a(f'v_mul_f32 v{b+i}, s56, v{b+i}')
            for i in range(8):
                a(f'v_cvt_pk_bf16_f32 v{b+i}, v{b+2*i}, v{b+2*i+1}')
            if which < 2:
                a(f'v_cndmask_b32 v{b+6}, v5, v{b+6}, s[60:61]')
                a(f'v_cndmask_b32 v{b+7}, v5, v{b+7}, s[60:61]')
            else:
                for i in range(8): a(f'v_cndmask_b32 v{b+i}, v{b+i}, v6, s[62:63]')
            a.vmem(f'buffer_store_dwordx4 {vr(b,4)}, v3, s[16:19], s52 offen offset:{tt*2048}{STFLAG}', 'out')
            a.vmem(f'buffer_store_dwordx4 {vr(b+4,4)}, v3, s[16:19], s52 offen offset:{tt*2048+1024}{STFLAG}', 'out')
    if STAMP: a('s_waitcnt vmcnt(0)')
    stamp(a, 11)
    if not os.environ.get('HDBG'): stamp_flush(a, 15, 's59')
    rt_end(a, 0, 's59')
    a.label('K1_END')
    a('s_endpgm')
    return descriptor(name, 160)

K2_BUF = 32768
WOPF = int(os.environ.get('WOPF', '24'))
K2_COMB = 4*K2_BUF
K2_FLAG = K2_COMB + 4*5*1024
K2_LDS = K2_FLAG + 64
VQ, VNEG, VS, VP, VO, VK, VV = 16, 24, 40, 72, 80, 96, 112
AQ, AK, AV = 128, 136, 152
def gen_k2(a):
    name = 'attn_kernel'
    header(a, name)
    a('s_cmp_ge_u32 s2, 256')
    a('s_cbranch_scc1 K2_END')
    rt_start(a)
    stamp(a, 0)
    a('s_load_dwordx2 s[4:5], s[0:1], 72')
    a('s_and_b32 s20, s2, 15')
    a('s_lshr_b32 s21, s2, 4')
    a('v_lshrrev_b32 v1, 6, v0')
    a('v_and_b32 v2, 63, v0')
    a('v_readfirstlane_b32 s22, v1')
    a('s_and_b32 s23, s22, 3')
    a('s_lshr_b32 s24, s22, 2')
    a('s_lshl_b32 s25, s21, 2'); a('s_add_u32 s25, s25, s23')
    a('v_lshlrev_b32 v3, 4, v2')
    a('s_lshl_b32 s26, s22, 11')
    a('v_add_u32 v4, s26, v3')
    a('s_lshl_b32 s27, s24, 13')
    a('v_add_u32 v5, s27, v3')
    a('v_add_u32 v6, 0x10000, v5')
    a('s_lshl_b32 s28, s20, 17')
    a('s_add_u32 s29, s28, 0x200000')
    a('s_lshl_b32 s30, s25, 11')
    a('v_and_b32 v7, 31, v2')
    a('v_lshlrev_b32 v8, 2, v7')
    a('v_mov_b32 v10, 0')
    a(f'v_mov_b32 v11, {K2_FLAG}')
    a('ds_write_b32 v11, v10')
    a('s_waitcnt lgkmcnt(0)')
    srd(a, 8, 4, 5, WS_BYTES)
    def dma_stage(st):
        buf = (st % 4) * K2_BUF
        for reg, loff in ((KF_OFF, 0), (VF_OFF, 16384)):
            a(f's_add_u32 s36, s26, {buf + loff}')
            a('s_mov_b32 m0, s36')
            a(f's_add_u32 s37, s29, {reg + st*16384}')
            a.vmem('buffer_load_dwordx4 v4, s[8:11], s37 offen lds', f'st{st}')
            a.vmem('buffer_load_dwordx4 v4, s[8:11], s37 offen offset:1024 lds', f'st{st}')
    a('s_add_u32 s31, s29, s30')
    a.vmem(f'buffer_load_dwordx4 {vr(VQ,4)}, v3, s[8:11], s31 offen', 'q')
    a.vmem(f'buffer_load_dwordx4 {vr(VQ+4,4)}, v3, s[8:11], s31 offen offset:1024', 'q')
    a('s_add_u32 s31, s29, s27')
    a(f's_add_u32 s31, s31, {KF_OFF}')
    a.vmem(f'buffer_load_dwordx4 {vr(VK,4)}, v3, s[8:11], s31 offen', 'q')
    a.vmem(f'buffer_load_dwordx4 {vr(VK+4,4)}, v3, s[8:11], s31 offen offset:1024', 'q')
    dma_stage(0)
    a('s_lshl_b32 s31, s25, 7')
    a(f's_add_u32 s31, s31, {G_OFF}')
    a.vmem('buffer_load_dword v9, v8, s[8:11], s31 offen', 'st1')
    dma_stage(1)
    a('s_add_u32 s31, s28, s30')
    a('s_sub_u32 s32, s31, 2048')
    a('s_cmp_eq_u32 s25, 0')
    a('s_cselect_b32 s32, s31, s32')
    a('s_cselect_b32 s33, 1000, 32')
    a('s_cmp_eq_u32 s24, 0')
    a('s_cselect_b32 s31, 0x40000000, s31')
    a('s_cselect_b32 s32, 0x40000000, s32')
    a(f's_add_u32 s34, s32, {KF_OFF}')
    a(f's_add_u32 s35, s31, {KF_OFF}')
    a(f's_add_u32 s44, s32, {VF_OFF}')
    a(f's_add_u32 s45, s31, {VF_OFF}')
    deferred = [
        lambda: dma_stage(2),
        lambda: dma_stage(3),
        lambda: (a.vmem(f'buffer_load_dwordx4 {vr(AQ,4)}, v3, s[8:11], s31 offen', 'a'),
                 a.vmem(f'buffer_load_dwordx4 {vr(AQ+4,4)}, v3, s[8:11], s31 offen offset:1024', 'a'),
                 a.vmem(f'buffer_load_dwordx4 {vr(AK,4)}, v3, s[8:11], s34 offen', 'a'),
                 a.vmem(f'buffer_load_dwordx4 {vr(AK+4,4)}, v3, s[8:11], s34 offen offset:1024', 'a')),
        lambda: (a.vmem(f'buffer_load_dwordx4 {vr(AK+8,4)}, v3, s[8:11], s35 offen', 'a'),
                 a.vmem(f'buffer_load_dwordx4 {vr(AK+12,4)}, v3, s[8:11], s35 offen offset:1024', 'a'),
                 a.vmem(f'buffer_load_dwordx4 {vr(AV,4)}, v3, s[8:11], s44 offen', 'a')),
        lambda: (a.vmem(f'buffer_load_dwordx4 {vr(AV+4,4)}, v3, s[8:11], s44 offen offset:1024', 'a'),
                 a.vmem(f'buffer_load_dwordx4 {vr(AV+8,4)}, v3, s[8:11], s45 offen', 'a'),
                 a.vmem(f'buffer_load_dwordx4 {vr(AV+12,4)}, v3, s[8:11], s45 offen offset:1024', 'a')),
    ]

    def finalize(gate_expr_reg, br):
        a(f'v_mov_b32 v13, v{VO+12}')
        a(f'v_mov_b32 v14, v{VO+12}')
        a('v_permlane32_swap_b32 v13, v14')
        a('v_rcp_f32 v14, v14')
        a(f'v_mul_f32 v14, v14, v{gate_expr_reg}')
        for r in range(16): a(f'v_mul_f32 v{VO+r}, v14, v{VO+r}')
        for i in range(8): a(f'v_cvt_pk_bf16_f32 v{VO+i}, v{VO+2*i}, v{VO+2*i+1}')
        a('v_cmp_gt_u32 vcc, 32, v2')
        a('v_mov_b32 v13, 0')
        a(f'v_cndmask_b32 v{VO+6}, v13, v{VO+6}, vcc')
        a(f'v_cndmask_b32 v{VO+7}, v13, v{VO+7}, vcc')
        a('s_lshl_b32 s38, s25, 16')
        a('s_lshl_b32 s39, s20, 11')
        a('s_add_u32 s38, s38, s39')
        a(f's_add_u32 s38, s38, {OF_OFF + br*32768}')
        a(f'buffer_store_dwordx4 {vr(VO,4)}, v3, s[8:11], s38 offen{STFLAG2}')
        a(f'buffer_store_dwordx4 {vr(VO+4,4)}, v3, s[8:11], s38 offen offset:1024{STFLAG2}')

    def lds_tile(idx, isv, t):
        st, i = idx >> 2, idx & 3
        b = st % 4
        base = 'v5' if b < 2 else 'v6'
        off = (b & 1) * K2_BUF + (16384 if isv else 0) + i*2048 + t*1024
        return base, off
    def rdK(idx):
        for t in range(2):
            base, off = lds_tile(idx, False, t)
            a(f'ds_read_b128 {vr(VK+(idx&1)*8+t*4,4)}, {base} offset:{off}')
    def rdV(idx):
        for t in range(2):
            base, off = lds_tile(idx, True, t)
            a(f'ds_read_b128 {vr(VV+(idx&1)*8+t*4,4)}, {base} offset:{off}')
    def stage_sync(st):
        a.vm_wait_tag(f'st{st}')
        a('s_barrier')
        if st >= 2 and st + 2 < 8: dma_stage(st + 2)
    NT = 32
    def smfma(idx, cneg, part):
        d = vr(VS+(idx&1)*16, 16); k = VK+(idx&1)*8
        c = vr(VNEG,16) if cneg else '0'
        if part == 0: a(f'v_mfma_f32_32x32x16_bf16 {d}, {vr(k,4)}, {vr(VQ,4)}, {c}')
        else:         a(f'v_mfma_f32_32x32x16_bf16 {d}, {vr(k+4,4)}, {vr(VQ+4,4)}, {d}')
    def pv(idx, first, part):
        v = VV+(idx&1)*8
        c = '0' if first else vr(VO,16)
        if part == 0: a(f'v_mfma_f32_32x32x16_bf16 {vr(VO,16)}, {vr(v,4)}, {vr(VP,4)}, {c}')
        else:         a(f'v_mfma_f32_32x32x16_bf16 {vr(VO,16)}, {vr(v+4,4)}, {vr(VP+4,4)}, {vr(VO,16)}')
    def tilemax(sb, dst):
        a(f'v_max3_f32 v{dst}, v{sb}, v{sb+1}, v{sb+2}')
        for r in range(3, 15, 2):
            a(f'v_max3_f32 v{dst}, v{dst}, v{sb+r}, v{sb+r+1}')
        a(f'v_max_f32 v{dst}, v{dst}, v{sb+15}')
        a(f'v_mov_b32 v13, v{dst}')
        a(f'v_permlane32_swap_b32 v{dst}, v13')
        a(f'v_max_f32 v{dst}, v{dst}, v13')
    stamp(a, 1)
    a.vm_wait_tag('q')
    d = vr(VS+16, 16)
    a(f'v_mfma_f32_32x32x16_bf16 {d}, {vr(VK,4)}, {vr(VQ,4)}, 0')
    a(f'v_mfma_f32_32x32x16_bf16 {d}, {vr(VK+4,4)}, {vr(VQ+4,4)}, {d}')
    tilemax(VS+16, 12)
    for r in range(16): a(f'v_sub_f32 v{VNEG+r}, 0, v12')
    smfma(0, True, 0); smfma(0, True, 1)
    stage_sync(0)
    stamp(a, 2)
    rdK(1)
    rdV(0)
    def quarter(sb, q):
        for i in (2*q, 2*q+1):
            a(f'v_exp_f32 v{sb+2*i}, v{sb+2*i}')
            a(f'v_exp_f32 v{sb+2*i+1}, v{sb+2*i+1}')
        for i in (2*q, 2*q+1):
            a(f'v_cvt_pk_bf16_f32 v{VP+i}, v{sb+2*i}, v{sb+2*i+1}')
    for idx in range(NT):
        sb = VS + (idx&1)*16
        n_out = 2
        if idx + 1 < NT:
            a('s_waitcnt lgkmcnt(2)')
            smfma(idx+1, True, 0)
        if idx + 2 < NT:
            if (idx + 2) % 4 == 0:
                stage_sync((idx+2) >> 2)
                stamp(a, 2 + ((idx+2) >> 2))
            rdK(idx+2); n_out += 2
        quarter(sb, 0)
        if idx > 0: pv(idx-1, False, 1)
        if idx + 1 < NT:
            rdV(idx+1); n_out += 2
        quarter(sb, 1)
        if idx + 1 < NT: smfma(idx+1, True, 1)
        if idx < len(deferred): deferred[idx]()
        if WOPF and idx == WOPF:
            a('s_lshr_b32 s46, s2, 3')
            a(f's_mul_i32 s46, s46, {224*128}')
            a(f's_add_u32 s46, s46, {WOF_OFF}')
            a('v_lshlrev_b32 v1, 7, v0')
            a('v_mov_b32 v13, 0x40000000')
            a('v_cmp_gt_u32 vcc, 224, v0')
            a('v_cndmask_b32 v1, v13, v1, vcc')
            a.vmem('buffer_load_dword v1, v1, s[8:11], s46 offen', 'wopf')
        quarter(sb, 2)
        a(f's_waitcnt lgkmcnt({n_out-2})')
        pv(idx, idx == 0, 0)
        quarter(sb, 3)
    pv(NT-1, False, 1)
    stamp(a, 10)
    a('v_sub_f32 v15, 1.0, v9')
    a(f'v_add_f32 v13, |v{VO}|, |v{VO+1}|')
    for r in range(2, 16): a(f'v_add_f32 v13, v13, |v{VO+r}|')
    a('v_mov_b32 v14, 0x7b800000')
    a('v_cmp_nlt_f32 vcc, v13, v14')
    a('s_cbranch_vccz K2_OKFAST')
    a('v_mov_b32 v10, 1')
    a(f'v_mov_b32 v11, {K2_FLAG}')
    a('ds_write_b32 v11, v10')
    a.label('K2_OKFAST')
    def combine(tag):
        a('s_mul_i32 s38, s23, %d' % (5*1024))
        a(f's_add_u32 s38, s38, {K2_COMB}')
        a('v_add_u32 v10, s38, v3')
        a('s_cmp_eq_u32 s24, 0')
        a(f's_cbranch_scc1 K2_C1_{tag}')
        for r in range(4): a(f'ds_write_b128 v10, {vr(VO+4*r,4)} offset:{1024*r}')
        a(f'ds_write_b32 v10, v12 offset:{4096}')
        a.label(f'K2_C1_{tag}')
        a('s_waitcnt lgkmcnt(0)')
        a('s_barrier')
    combine('F')
    a(f'v_mov_b32 v11, {K2_FLAG}')
    a('ds_read_b32 v11, v11')
    a('s_waitcnt lgkmcnt(0)')
    a('v_readfirstlane_b32 s38, v11')
    a('s_cmp_eq_u32 s38, 0')
    a('s_cbranch_scc1 K2_MERGE')
    a('s_barrier')
    a.vm_wait_all()
    for st in range(4): dma_stage(st)
    a('v_mov_b32 v12, 0xff7fffff')
    for r in range(16): a(f'v_mov_b32 v{VO+r}, 0')
    for idx in range(NT):
        if idx % 4 == 0: stage_sync(idx >> 2)
        rdK(idx); rdV(idx)
        a('s_waitcnt lgkmcnt(0)')
        smfma(idx, False, 0); smfma(idx, False, 1)
        sb = VS + (idx&1)*16
        tilemax(sb, 11)
        a('v_max_f32 v11, v11, v12')
        a('v_sub_f32 v10, v12, v11')
        a('v_exp_f32 v10, v10')
        a('v_mov_b32 v12, v11')
        for r in range(16):
            a(f'v_sub_f32 v{sb+r}, v{sb+r}, v11')
            a(f'v_exp_f32 v{sb+r}, v{sb+r}')
        for i in range(8): a(f'v_cvt_pk_bf16_f32 v{VP+i}, v{sb+2*i}, v{sb+2*i+1}')
        for r in range(16): a(f'v_mul_f32 v{VO+r}, v10, v{VO+r}')
        pv(idx, False, 0); pv(idx, False, 1)
    a('s_barrier')
    combine('S')
    a.label('K2_MERGE')
    a.reset_haz(); a.nop(16)
    a('s_waitcnt vmcnt(0)')
    a('s_cmp_eq_u32 s24, 0')
    a('s_cbranch_scc0 K2_ABR')
    for r in range(4): a(f'ds_read_b128 {vr(VS+4*r,4)}, v10 offset:{1024*r}')
    a(f'ds_read_b32 v11, v10 offset:{4096}')
    a('s_waitcnt lgkmcnt(0)')
    a('v_max_f32 v13, v11, v12')
    a('v_sub_f32 v11, v11, v13')
    a('v_sub_f32 v12, v12, v13')
    a('v_exp_f32 v11, v11')
    a('v_exp_f32 v12, v12')
    for r in range(16):
        a(f'v_mul_f32 v{VO+r}, v12, v{VO+r}')
        a(f'v_fmac_f32 v{VO+r}, v11, v{VS+r}')
    finalize(15, 1)
    a('s_waitcnt vmcnt(0)')
    stamp(a, 11)
    if not os.environ.get('HDBG'): stamp_flush(a, 12, 's22')
    rt_end(a, 1, 's22')
    a('s_endpgm')
    a.label('K2_ABR')
    a.reset_haz(); a.nop(4)
    S0, S1 = VS, VS+16
    a(f'v_mfma_f32_32x32x16_bf16 {vr(S0,16)}, {vr(AK,4)}, {vr(AQ,4)}, 0')
    a(f'v_mfma_f32_32x32x16_bf16 {vr(S0,16)}, {vr(AK+4,4)}, {vr(AQ+4,4)}, {vr(S0,16)}')
    a(f'v_mfma_f32_32x32x16_bf16 {vr(S1,16)}, {vr(AK+8,4)}, {vr(AQ,4)}, 0')
    a(f'v_mfma_f32_32x32x16_bf16 {vr(S1,16)}, {vr(AK+12,4)}, {vr(AQ+4,4)}, {vr(S1,16)}')
    a('v_mov_b32 v12, 0xff800000')
    a('s_cmp_eq_u32 s25, 0')
    a('s_cselect_b32 s56, 0, -1')
    a('s_mov_b32 s57, s56')
    def lanemask(r, off):
        m = 0
        for l in range(64):
            i, h = l & 31, l >> 5
            d = i + off - ((r & 3) + 8*(r >> 2) + 4*h)
            if 0 <= d <= 14 and d % 2 == 0: m |= 1 << l
        return m
    regs = [(S0 + r, r, 32) for r in range(8, 16)] + [(S1 + r, r, 0) for r in range(16)]
    for n, (vreg, r, off) in enumerate(regs):
        m = lanemask(r, off)
        sp = 48 + 2*(n & 3)
        a(f's_mov_b32 s{sp}, {m & 0xffffffff:#x}')
        a(f's_mov_b32 s{sp+1}, {m >> 32:#x}')
        if off == 32: a(f's_and_b64 s[{sp}:{sp+1}], s[{sp}:{sp+1}], s[56:57]')
        a(f'v_cndmask_b32 v{vreg}, v12, v{vreg}, s[{sp}:{sp+1}]')
    B0 = S0 + 8
    a(f'v_max3_f32 v13, v{B0}, v{B0+1}, v{B0+2}')
    for r in range(3, 23, 2):
        a(f'v_max3_f32 v13, v13, v{B0+r}, v{B0+r+1}')
    a(f'v_max_f32 v13, v13, v{B0+23}')
    a('v_mov_b32 v14, v13')
    a('v_permlane32_swap_b32 v13, v14')
    a('v_max_f32 v13, v13, v14')
    for r in range(24):
        a(f'v_sub_f32 v{B0+r}, v{B0+r}, v13')
        a(f'v_exp_f32 v{B0+r}, v{B0+r}')
    for i in range(12):
        a(f'v_cvt_pk_bf16_f32 v{S0+i}, v{B0+2*i}, v{B0+2*i+1}')
    a(f'v_mfma_f32_32x32x16_bf16 {vr(VO,16)}, {vr(AV+4,4)}, {vr(S0,4)}, 0')
    a(f'v_mfma_f32_32x32x16_bf16 {vr(VO,16)}, {vr(AV+8,4)}, {vr(S0+4,4)}, {vr(VO,16)}')
    a(f'v_mfma_f32_32x32x16_bf16 {vr(VO,16)}, {vr(AV+12,4)}, {vr(S0+8,4)}, {vr(VO,16)}')
    finalize(9, 0)
    a.label('K2_END')
    a('s_endpgm')
    return descriptor(name, 168)

K3_NB = 5
def gen_k3(a):
    name = 'out_kernel'
    header(a, name)
    a('s_cmp_ge_u32 s2, 224')
    a('s_cbranch_scc1 K3_END')
    rt_start(a)
    stamp(a, 0)
    a('s_load_dwordx2 s[4:5], s[0:1], 72')
    a('s_load_dwordx2 s[6:7], s[0:1], 56')
    a('s_and_b32 s20, s2, 7'); a('s_lshr_b32 s21, s2, 3')
    a('s_mul_i32 s22, s21, 37'); a('s_lshr_b32 s22, s22, 8')
    a('s_mul_i32 s23, s22, 7'); a('s_sub_u32 s23, s21, s23')
    a('s_lshl_b32 s20, s20, 2'); a('s_add_u32 s22, s22, s20')
    a('v_lshrrev_b32 v1, 6, v0')
    a('v_and_b32 v2, 63, v0')
    a('v_readfirstlane_b32 s32, v1')
    a('s_and_b32 s24, s32, 3')
    a('s_and_b32 s25, s24, 1')
    a('s_lshr_b32 s26, s24, 1')
    a('v_lshlrev_b32 v3, 4, v2')
    a('s_cmp_lt_u32 s32, 4')
    a('s_cbranch_scc1 K3_COMPUTE')
    a('s_lshl_b32 s27, s22, 1'); a('s_add_u32 s27, s27, s24'); a('s_lshl_b32 s27, s27, 16'); a(f's_add_u32 s27, s27, {OF_OFF}')
    a('s_lshl_b32 s28, s23, 1'); a('s_add_u32 s28, s28, s24'); a('s_sub_u32 s28, s28, 2'); a('s_lshl_b32 s28, s28, 16'); a(f's_add_u32 s28, s28, {WOF_OFF}')
    a('s_cmp_lt_u32 s24, 2')
    a('s_cselect_b32 s27, s27, s28')
    a('s_lshl_b32 s29, s24, 13')
    a('s_waitcnt lgkmcnt(0)')
    srd(a, 8, 4, 5, WS_BYTES)
    def dma_stage(st):
        buf = (st % K3_NB) * 32768
        for half in range(2):
            a(f's_add_u32 s30, s29, {buf + half*4096}')
            a('s_mov_b32 m0, s30')
            a(f's_add_u32 s31, s27, {st*8192 + half*4096}')
            for q in range(4):
                a.vmem(f'buffer_load_dwordx4 v3, s[8:11], s31 offen offset:{q*1024} lds', f'st{st}')
    for st in range(2): dma_stage(st)
    nxt = 2
    for st in range(8):
        a.vm_wait_tag(f'st{st}')
        a('s_barrier')
        lim = max(K3_NB - 1, st - 2 + K3_NB)
        cnt = 0
        while nxt < 8 and nxt <= lim and cnt < 2:
            dma_stage(nxt); nxt += 1; cnt += 1
    a('s_endpgm')
    a.label('K3_COMPUTE')
    a.reset_haz(); a.vm = []
    a('s_lshl_b32 s30, s25, 13')
    a('v_add_u32 v4, s30, v3')
    a('s_lshl_b32 s30, s26, 13')
    a('s_add_u32 s30, s30, 16384')
    a('v_add_u32 v5, s30, v3')
    a('v_add_u32 v6, 0x10000, v4')
    a('v_add_u32 v7, 0x10000, v5')
    a('v_and_b32 v8, 31, v2')
    a('s_lshl_b32 s30, s22, 6'); a('s_lshl_b32 s31, s25, 5'); a('s_add_u32 s30, s30, s31')
    a('v_add_u32 v8, s30, v8')
    a('s_movk_i32 s31, 896')
    a('v_mul_lo_u32 v8, v8, s31')
    a('v_lshrrev_b32 v9, 5, v2')
    a('v_lshl_add_u32 v8, v9, 4, v8')
    a('s_lshl_b32 s30, s23, 7'); a('s_lshl_b32 s31, s26, 6'); a('s_add_u32 s30, s30, s31')
    a('s_waitcnt lgkmcnt(0)')
    srd(a, 12, 6, 7, 2048*448*2)
    ACC, FA, FB = 16, 32, 48
    PD = 4
    a('v_add_u32 v10, 0x20000, v4')
    a('v_add_u32 v11, 0x20000, v5')
    def rd(ks):
        st, k = ks >> 3, ks & 7
        b = st % K3_NB
        off = (b & 1)*32768 + k*1024
        ra = ('v5', 'v7', 'v11')[b >> 1]; rb = ('v4', 'v6', 'v10')[b >> 1]
        a(f'ds_read_b128 {vr(FA+(ks%PD)*4,4)}, {ra} offset:{off}')
        a(f'ds_read_b128 {vr(FB+(ks%PD)*4,4)}, {rb} offset:{off}')
    stamp(a, 1)
    a('s_barrier')
    stamp(a, 2)
    for ks in range(PD-1): rd(ks)
    for ks in range(64):
        nk = ks + PD - 1
        if nk < 64:
            if nk % 8 == 0:
                a('s_barrier')
                stamp(a, 2 + (nk >> 3))
            rd(nk)
            a(f's_waitcnt lgkmcnt({2*(PD-1)})')
        else:
            a(f's_waitcnt lgkmcnt({2*(63-ks)})')
        c = '0' if ks == 0 else vr(ACC,16)
        a(f'v_mfma_f32_32x32x16_bf16 {vr(ACC,16)}, {vr(FA+(ks%PD)*4,4)}, {vr(FB+(ks%PD)*4,4)}, {c}')
    stamp(a, 10)
    for i in range(8): a(f'v_cvt_pk_bf16_f32 v{ACC+i}, v{ACC+2*i}, v{ACC+2*i+1}')
    for p in range(2):
        b = ACC + 4*p
        a(f'v_permlane32_swap_b32 v{b}, v{b+2}')
        a(f'v_permlane32_swap_b32 v{b+1}, v{b+3}')
    for p in range(2):
        b = ACC + 4*p
        a(f'buffer_store_dwordx4 {vr(b,4)}, v8, s[12:15], s30 offen offset:{32*p}')
    if STAMP: a('s_waitcnt vmcnt(0)')
    stamp(a, 11)
    if not os.environ.get('HDBG'): stamp_flush(a, 12, 's32')
    rt_end(a, 2, 's32')
    a.label('K3_END')
    a('s_endpgm')
    return descriptor(name, 64)

def main():
    a = Asm()
    hdr = open('cdna_kernels/%s.s.ref' % NAME).read().split('; Override launch')[0]
    out = hdr
    out += f'; @launch kernel=qkv_kernel grid=(256,1,1) block=({256+64*NLD},1,1) lds={K1_STAGE*K1_NBUF}\n'
    out += f'; @launch kernel=attn_kernel grid=(256,1,1) block=(512,1,1) lds={K2_LDS}\n'
    out += f'; @launch kernel=out_kernel grid=(224,1,1) block=(512,1,1) lds={K3_NB*32768}\n'
    out += '.amdgcn_target "amdgcn-amd-amdhsa--gfx950"\n.text\n'
    d1 = gen_k1(a); d2 = gen_k2(a); d3 = gen_k3(a)
    out += a.text()
    out += '.section .rodata,"a"\n'
    for d in (d1, d2, d3):
        out += '.p2align 6\n' + d
    open('cdna_kernels/%s.s' % NAME, 'w').write(out)
main()
```

```python
import sys, math
sys.path.insert(0, 'gen')
from asmlib import Asm

NAME = 'gated_mix__sliding_local_dilated__mha_block__prompt'
MB = 1 << 20
QF_OFF, KF_OFF, VF_OFF, OF_OFF, WOF_OFF, G_OFF = 0, 4*MB, 8*MB, 12*MB, 16*MB, 17*MB
WS_BYTES = 18*MB
import struct
def f32bits(x): return struct.unpack('<I', struct.pack('<f', x))[0]
CSCALE = f32bits((28 ** -0.5) * math.log2(math.e))
NLOG2E = f32bits(-math.log2(math.e))

def vr(b, n): return f'v[{b}:{b+n-1}]'

def srd(a, s, lo, hi, size):
    a(f's_mov_b32 s{s}, s{lo}')
    a(f's_and_b32 s{s+1}, s{hi}, 0xffff')
    a(f's_mov_b32 s{s+2}, {size}')
    a(f's_mov_b32 s{s+3}, 0x20000')

import os
STAMP = int(os.environ.get('STAMP', '0'))
STFLAG = os.environ.get('STFLAG', ' sc1')
STFLAG2 = os.environ.get('STFLAG2', ' sc1')
def stamp(a, i):
    if not STAMP: return
    a('s_memtime s[90:91]')
    a('s_waitcnt lgkmcnt(0)')
    a(f's_mov_b32 s{70+i}, s90')
def stamp_flush(a, n, wavereg):
    if not STAMP: return
    a('s_load_dwordx2 s[92:93], s[0:1], 64')
    a('s_waitcnt lgkmcnt(0)')
    if os.environ.get('HDBG'):
        a('s_add_u32 s92, s92, 1024')
        a('s_addc_u32 s93, s93, 0')
    a(f's_cmp_lg_u32 s2, {STAMP-1}')
    a('s_cbranch_scc1 NOSTAMP_%d' % len(a.lines))
    lab = 'NOSTAMP_%d' % (len(a.lines)-1)
    a(f's_cmp_lg_u32 {wavereg}, 0')
    a('s_cbranch_scc1 ' + lab)
    a('v_mov_b32 v1, 0')
    for i in range(n):
        a(f's_sub_u32 s94, s{70+i}, s70')
        a('v_mov_b32 v2, s94')
        a(f'global_store_dword v1, v2, s[92:93] offset:{4*i}')
    a('s_waitcnt vmcnt(0)')
    a.label(lab)

def rt_start(a):
    if not STAMP: return
    a('s_memrealtime s[86:87]')
    a('s_waitcnt lgkmcnt(0)')
def rt_end(a, kidx, wavereg):
    if not STAMP: return
    a('s_memrealtime s[88:89]')
    a('s_load_dwordx2 s[92:93], s[0:1], 72')
    a('s_load_dwordx2 s[84:85], s[0:1], 64')
    a('s_waitcnt lgkmcnt(0)')
    lab = 'NORT_%d' % len(a.lines)
    a(f's_cmp_lg_u32 {wavereg}, 0')
    a('s_cbranch_scc1 ' + lab)
    a('s_lshl_b32 s94, s2, 3')
    a(f's_add_u32 s94, s94, {32*MB + kidx*4096}')
    a('v_mov_b32 v1, s94')
    a('v_mov_b32 v2, s86')
    a('v_mov_b32 v3, s88')
    a('global_store_dwordx2 v1, v[2:3], s[92:93]')
    if os.environ.get('HDBG'):
        a(f's_add_u32 s84, s84, {512*(2-kidx)}')
        a('s_addc_u32 s85, s85, 0')
        a('v_mov_b32 v1, 0')
        a('s_mov_b64 exec, 1')
        a(f'global_atomic_umax v1, v2, s[84:85] offset:{24+8*kidx}')
        a(f'global_atomic_umax v1, v3, s[84:85] offset:{28+8*kidx}')
        a('s_cmp_lg_u32 s2, 0')
        a('s_cbranch_scc1 ' + lab)
        a(f'global_store_dwordx2 v1, v[2:3], s[84:85] offset:{8*kidx}')
    a('s_waitcnt vmcnt(0)')
    a.label(lab)

def header(a, name):
    a.raw('.p2align 8')
    a.raw(f'.globl {name}')
    a.raw(f'.type {name},@function')
    a.label(name)
    a.reset_haz(); a.vm = []

def descriptor(name, vgpr, sgpr=96):
    acc = (vgpr + 3) // 4 * 4
    return f""".amdhsa_kernel {name}
  .amdhsa_next_free_vgpr {vgpr}
  .amdhsa_next_free_sgpr {sgpr}
  .amdhsa_accum_offset {acc}
  .amdhsa_group_segment_fixed_size 0
  .amdhsa_kernarg_size 80
  .amdhsa_user_sgpr_count 2
  .amdhsa_user_sgpr_kernarg_segment_ptr 1
  .amdhsa_system_sgpr_workgroup_id_x 1
.end_amdhsa_kernel
"""

K1_NBUF = int(os.environ.get('K1NB', '3'))
K1_STAGE = 40960 if K1_NBUF == 3 else 38912
PREF = int(os.environ.get('PREF', '2'))
NLD = int(os.environ.get('NLD', '4'))
def gen_k1(a):
    name = 'qkv_kernel'
    header(a, name)
    def l2_prefetch(loader):
        if not loader:
            a('s_cmp_eq_u32 s46, 0')
            a('s_cselect_b32 s12, s6, s24')
            a('s_cselect_b32 s13, s7, s25')
            a('s_and_b32 s13, s13, 0xffff')
            a(f's_mov_b32 s14, {448*1344*2}')
            a('s_mov_b32 s15, 0x20000')
        a('s_lshr_b32 s51, s2, 3')
        a('s_and_b32 s52, s2, 1')
        a(f's_mul_i32 s52, s52, {1024*896}')
        a(f's_mul_i32 s53, s51, {224*128}')
        a('s_add_u32 s52, s52, s53')
        a('v_and_b32 v7, 255, v0')
        a('v_lshlrev_b32 v3, 7, v7')
        a('v_mov_b32 v8, 0x40000000')
        a('v_cmp_gt_u32 vcc, 224, v7')
        a('v_cndmask_b32 v3, v8, v3, vcc')
        a.vmem('buffer_load_dword v20, v3, s[8:11], s52 offen', 'pf')
        a('s_mul_i32 s53, s51, 210')
        a('v_add_u32 v3, s53, v7')
        a('s_mov_b32 s53, 52429')
        a('v_mul_lo_u32 v4, v3, s53')
        a('v_lshrrev_b32 v4, 18, v4')
        a('v_mul_u32_u24 v5, 5, v4')
        a('v_sub_u32 v5, v3, v5')
        a('v_mul_u32_u24 v6, 896, v4')
        a('v_lshlrev_b32 v5, 7, v5')
        a('v_min_u32 v5, 444, v5')
        a('v_add_u32 v6, v6, v5')
        a('v_cmp_gt_u32 vcc, 210, v7')
        a('v_cndmask_b32 v6, v8, v6, vcc')
        a('s_and_b32 s53, s47, 4')
        a('s_mul_i32 s53, s53, 112')
        a.vmem('buffer_load_dword v21, v6, s[12:15], s53 offen', 'pf')
    a('s_cmp_ge_u32 s2, 256')
    a('s_cbranch_scc1 K1_END')
    rt_start(a)
    stamp(a, 0)
    a('s_load_dwordx4 s[4:7], s[0:1], 0')
    a('s_load_dwordx2 s[20:21], s[0:1], 16')
    a('s_load_dwordx4 s[24:27], s[0:1], 32')
    a('s_load_dwordx2 s[28:29], s[0:1], 48')
    a('s_load_dwordx2 s[30:31], s[0:1], 72')
    a('s_and_b32 s51, s2, 7')
    a('s_lshr_b32 s52, s2, 3')
    a('s_and_b32 s53, s51, 1'); a('s_lshl_b32 s53, s53, 3'); a('s_lshr_b32 s54, s52, 2'); a('s_add_u32 s44, s53, s54')
    a('s_lshr_b32 s53, s51, 1'); a('s_lshl_b32 s53, s53, 2'); a('s_and_b32 s54, s52, 3'); a('s_add_u32 s45, s53, s54')
    a('s_lshr_b32 s46, s45, 3')
    a('s_and_b32 s47, s45, 7')
    a('v_lshrrev_b32 v1, 6, v0')
    a('v_and_b32 v2, 63, v0')
    a('v_readfirstlane_b32 s59, v1')
    a('s_and_b32 s48, s59, 3')
    a('s_and_b32 s49, s48, 1')
    a('s_lshr_b32 s50, s48, 1')
    a('s_cmp_lt_u32 s59, 4')
    a('s_cbranch_scc1 K1_COMPUTE')
    a('s_sub_u32 s48, s59, 4')
    a('v_lshrrev_b32 v11, 3, v2')
    a('s_lshl_b32 s51, s44, 7')
    a('s_lshl_b32 s52, s48, 3')
    a('s_add_u32 s51, s51, s52')
    a('v_add_u32 v11, s51, v11')
    a('s_movk_i32 s52, 896')
    a('v_mul_lo_u32 v12, v11, s52')
    a('v_lshrrev_b32 v11, 4, v2')
    a('s_lshl_b32 s52, s48, 2')
    a('v_add_u32 v11, s52, v11')
    a('v_and_b32 v11, 7, v11')
    a('v_and_b32 v13, 7, v2')
    a('v_xor_b32 v11, v11, v13')
    a('v_lshl_add_u32 v12, v11, 4, v12')
    a('s_mul_i32 s52, s47, 112')
    for j in range(24//NLD):
        r = 14 + j
        a(f's_lshl_b32 s51, s48, 6')
        a(f's_add_u32 s51, s51, {64*NLD*j}')
        a(f'v_add_u32 v44, s51, v2')
        a('s_movk_i32 s53, 3121')
        a('v_mul_lo_u32 v45, v44, s53')
        a('v_lshrrev_b32 v45, 16, v45')
        a('v_mul_u32_u24 v46, 21, v45')
        a('v_sub_u32 v46, v44, v46')
        a('v_mul_u32_u24 v47, 37, v46')
        a('v_lshrrev_b32 v47, 8, v47')
        a('v_and_b32 v48, 0xfffffff0, v45')
        a('v_and_b32 v49, 3, v45')
        a('v_lshl_or_b32 v48, v49, 2, v48')
        a('v_bfe_u32 v49, v45, 2, 2')
        a('v_or_b32 v48, v48, v49')
        a('s_movk_i32 s53, 2688')
        a('v_mul_lo_u32 v48, v48, s53')
        a('s_movk_i32 s53, 784')
        a('v_mul_lo_u32 v47, v47, s53')
        a(f'v_lshl_add_u32 v{r}, v46, 4, v48')
        a(f'v_add3_u32 v{r}, v{r}, v47, s52')
    a('s_lshl_b32 s55, s48, 10')
    a('s_waitcnt lgkmcnt(0)')
    srd(a, 8, 4, 5, 2048*448*2)
    a('s_cmp_eq_u32 s46, 0')
    a('s_cselect_b32 s12, s6, s24')
    a('s_cselect_b32 s13, s7, s25')
    a('s_and_b32 s13, s13, 0xffff')
    a(f's_mov_b32 s14, {448*1344*2}')
    a('s_mov_b32 s15, 0x20000')
    def dma_stage(st):
        buf = (st % K1_NBUF) * K1_STAGE
        for j in range(16//NLD):
            a(f's_add_u32 s51, s55, {buf + j*1024*NLD}')
            a('s_mov_b32 m0, s51')
            a(f's_mov_b32 s52, {st*128 + j*8*NLD*896}')
            a.vmem('buffer_load_dwordx4 v12, s[8:11], s52 offen lds', f'st{st}')
        for j in range(24//NLD):
            a(f's_add_u32 s51, s55, {buf + 16384 + j*1024*NLD}')
            a('s_mov_b32 m0, s51')
            if K1_NBUF > 3 and j == 5:
                a(f's_min_u32 s51, s51, {buf + 16384 + 21*1024}')
                a('s_mov_b32 m0, s51')
            a(f's_mov_b32 s52, {st*64*2688}')
            a.vmem(f'buffer_load_dwordx4 v{14+j}, s[12:15], s52 offen lds', f'st{st}')
    NST = 7
    EARLY = int(os.environ.get('EARLY', '2'))
    for st in range(EARLY):
        dma_stage(st)
        if PREF == 2 + st: l2_prefetch(True)
    for st in range(NST):
        a.vm_wait_tag(f'st{st}')
        a('s_barrier')
        if st == 0:
            for s2 in range(EARLY, K1_NBUF): dma_stage(s2)
        if st >= 1 and st - 1 + K1_NBUF < NST: dma_stage(st - 1 + K1_NBUF)
    a('s_endpgm')
    a.label('K1_COMPUTE')
    a.reset_haz(); a.vm = []
    a('s_waitcnt lgkmcnt(0)')
    stamp(a, 12)
    srd(a, 8, 4, 5, 2048*448*2)
    srd(a, 16, 30, 31, WS_BYTES)
    srd(a, 40, 28, 29, 448*2)
    if PREF == 1: l2_prefetch(False)
    a('v_and_b32 v3, 31, v2')
    a('v_lshrrev_b32 v4, 5, v2')
    a('s_lshl_b32 s51, s2, 3')
    a('s_lshl_b32 s52, s48, 1')
    a('s_add_u32 s51, s51, s52')
    a('v_add_u32 v5, s51, v4')
    a('s_movk_i32 s52, 896')
    a('v_mul_lo_u32 v6, v5, s52')
    a('v_lshlrev_b32 v7, 5, v3')
    a('v_add_u32 v6, v6, v7')
    a('v_mov_b32 v8, 0x40000000')
    a('v_cmp_gt_u32 vcc, 28, v3')
    a('v_cndmask_b32 v6, v8, v6, vcc')
    a('v_cndmask_b32 v7, v8, v7, vcc')
    a.vmem('buffer_load_dwordx4 v[20:23], v6, s[8:11], 0 offen', 'gate')
    a.vmem('buffer_load_dwordx4 v[24:27], v6, s[8:11], 0 offen offset:16', 'gate')
    a.vmem('buffer_load_dwordx4 v[28:31], v7, s[40:43], 0 offen', 'gate')
    a.vmem('buffer_load_dwordx4 v[32:35], v7, s[40:43], 0 offen offset:16', 'gate')
    a('s_lshl_b32 s51, s2, 2')
    a('s_add_u32 s51, s51, s48')
    a('s_and_b32 s52, s51, 63')
    a('s_lshr_b32 s53, s51, 6')
    a('s_lshr_b32 s54, s52, 5')
    a('s_cmp_eq_u32 s54, 0')
    a('s_cselect_b32 s32, s20, s26')
    a('s_cselect_b32 s33, s21, s27')
    a('s_and_b32 s33, s33, 0xffff')
    a(f's_mov_b32 s34, {448*448*2}')
    a('s_mov_b32 s35, 0x20000')
    a('s_lshr_b32 s55, s52, 1'); a('s_and_b32 s55, s55, 15')
    a('s_and_b32 s56, s52, 1')
    a('s_mul_i32 s55, s55, 28')
    a('s_lshl_b32 s57, s56, 4')
    a('s_add_u32 s55, s55, s57')
    a('v_lshlrev_b32 v9, 2, v4')
    a('v_add_u32 v9, s55, v9')
    a('s_movk_i32 s52, 896')
    a('v_mul_lo_u32 v9, v9, s52')
    a('s_lshl_b32 s53, s53, 6')
    a('v_lshlrev_b32 v10, 1, v3')
    a('v_add3_u32 v9, v9, v10, s53')
    a(f'v_add_u32 v10, {8*896}, v9')
    a('v_and_b32 v11, s56, v4')
    a('v_cmp_eq_u32 vcc, 0, v11')
    a('v_cndmask_b32 v10, v8, v10, vcc')
    a('s_cmp_ge_u32 s2, 224')
    a('s_cselect_b32 s58, 0x40000000, 0')
    for j in range(4):
        a.vmem(f'buffer_load_ushort v{36+j}, v9, s[32:35], s58 offen offset:{896*j}', 'wo')
    for j in range(4):
        a.vmem(f'buffer_load_ushort v{40+j}, v10, s[32:35], s58 offen offset:{896*j}', 'wo')
    stamp(a, 13)
    ACC = 64
    XF = 18
    WF = 34
    for i in range(96):
        a(f'v_mov_b32 v{ACC+i}, 0')
    a.vm_wait_tag('gate')
    a('v_mov_b32 v44, 0')
    for i in range(8):
        xs, gs = 20 + i, 28 + i
        a(f'v_lshlrev_b32 v45, 16, v{xs}')
        a(f'v_and_b32 v46, 0xffff0000, v{xs}')
        a(f'v_lshlrev_b32 v47, 16, v{gs}')
        a(f'v_and_b32 v48, 0xffff0000, v{gs}')
        a('v_mul_f32 v45, v45, v47')
        a('v_mul_f32 v46, v46, v48')
        a('v_cvt_pk_bf16_f32 v45, v45, v46')
        a('v_lshlrev_b32 v46, 16, v45')
        a('v_and_b32 v45, 0xffff0000, v45')
        a('v_add_f32 v44, v44, v46')
        a('v_add_f32 v44, v44, v45')
    for off in (0x041F, 0x081F, 0x101F, 0x201F, 0x401F):
        a(f'ds_swizzle_b32 v45, v44 offset:{off}')
        a('s_waitcnt lgkmcnt(0)')
        a('v_add_f32 v44, v44, v45')
    a('v_cvt_pk_bf16_f32 v44, v44, v44')
    a('v_lshlrev_b32 v44, 16, v44')
    a(f'v_mul_f32 v44, {NLOG2E}, v44')
    a('v_exp_f32 v44, v44')
    a('v_add_f32 v44, 1.0, v44')
    a('v_rcp_f32 v44, v44')
    a('v_cvt_pk_bf16_f32 v44, v44, v44')
    a('v_lshlrev_b32 v44, 16, v44')
    a('v_lshlrev_b32 v45, 2, v5')
    a(f'v_add_u32 v45, {G_OFF}, v45')
    a('v_cmp_eq_u32 vcc, 0, v3')
    a('v_cndmask_b32 v45, v8, v45, vcc')
    a.vmem('buffer_store_dword v44, v45, s[16:19], 0 offen', 'gst')
    a.vm_wait_tag('wo')
    for j in range(4):
        a(f'v_lshl_or_b32 v{44+j}, v{37+2*j}, 16, v{36+2*j}')
    a('s_lshl_b32 s51, s2, 12')
    a(f's_add_u32 s51, s51, {WOF_OFF}')
    a('s_add_u32 s51, s51, s58')
    a('v_lshlrev_b32 v48, 4, v0')
    a.vmem('buffer_store_dwordx4 v[44:47], v48, s[16:19], s51 offen', 'gst')
    a('v_and_b32 v3, 31, v2')
    a('v_lshrrev_b32 v4, 5, v2')
    a('v_bfe_u32 v5, v3, 1, 3')
    a('s_lshl_b32 s51, s49, 13')
    a('v_lshlrev_b32 v6, 7, v3')
    a('v_add_u32 v6, s51, v6')
    for s in range(4):
        a(f'v_add_u32 v7, {2*s}, v4')
        a('v_xor_b32 v7, v7, v5')
        a(f'v_lshl_add_u32 v{8+s}, v7, 4, v6')
    a('v_bfe_u32 v5, v2, 2, 2')
    a('v_lshlrev_b32 v5, 2, v5')
    a('v_lshl_add_u32 v5, v4, 1, v5')
    a('v_mul_u32_u24 v5, 336, v5')
    a('v_bfe_u32 v6, v2, 4, 1')
    a('v_lshl_add_u32 v5, v6, 5, v5')
    a('v_and_b32 v6, 3, v2')
    a('v_lshl_add_u32 v5, v6, 3, v5')
    a('s_mul_i32 s51, s50, 56')
    a(f's_add_u32 s51, s51, 16384')
    a('v_add_u32 v12, s51, v5')
    def acc(which, tt): return ACC + (which*2 + tt)*16
    def rd_list(s, pb):
        l = []
        for tt in range(2):
            l.append(f'ds_read_b128 {vr(XF+pb*8+tt*4,4)}, v{13+s} offset:{tt*4096}')
        for which in range(3):
            for u in range(2):
                l.append(f'ds_read_b64_tr_b16 {vr(WF+pb*12+which*4+u*2,2)}, v17 offset:{s*5376+u*336+which*112}')
        return l
    def set_stage_addr(st):
        buf = (st % K1_NBUF) * K1_STAGE
        for s in range(4):
            a(f'v_add_u32 v{13+s}, {buf}, v{8+s}')
        a(f'v_add_u32 v17, {buf}, v12')
    def mfma_list(pb):
        l = []
        for which in range(3):
            for tt in range(2):
                xf = vr(XF+pb*8+tt*4, 4); wf = vr(WF+pb*12+which*4, 4); d = vr(acc(which, tt), 16)
                if which < 2: l.append(f'v_mfma_f32_32x32x16_bf16 {d}, {wf}, {xf}, {d}')
                else:         l.append(f'v_mfma_f32_32x32x16_bf16 {d}, {xf}, {wf}, {d}')
        return l
    set_stage_addr(0)
    stamp(a, 2)
    a('s_barrier')
    stamp(a, 3)
    for t in rd_list(0, 0): a(t)
    step = 0
    for st in range(NST):
        for s in range(4):
            pb = step & 1
            last = (st == NST-1 and s == 3)
            a('s_waitcnt lgkmcnt(0)')
            rl = []
            if s < 3:
                rl = rd_list(s+1, pb ^ 1)
            elif not last:
                a('s_barrier')
                stamp(a, 4+st)
                set_stage_addr(st+1)
                rl = rd_list(0, pb ^ 1)
            ml = mfma_list(pb)
            for i, m in enumerate(ml):
                a(m)
                for t in rl[2*i:2*i+2]: a(t)
            step += 1
    stamp(a, 10)
    a('s_lshl_b32 s51, s47, 1'); a('s_add_u32 s51, s51, s50')
    a('s_lshl_b32 s52, s46, 4'); a('s_add_u32 s51, s51, s52')
    a('s_lshl_b32 s51, s51, 17')
    a('s_lshl_b32 s52, s44, 2'); a('s_lshl_b32 s53, s49, 1'); a('s_add_u32 s52, s52, s53')
    a('s_lshl_b32 s52, s52, 11')
    a('s_add_u32 s51, s51, s52')
    a('v_lshlrev_b32 v3, 4, v2')
    a(f's_mov_b32 s56, {CSCALE}')
    a('v_cmp_gt_u32 s[60:61], 32, v2')
    a('v_and_b32 v4, 31, v2')
    a('v_cmp_eq_u32 s[62:63], 28, v4')
    a('v_mov_b32 v5, 0')
    a('v_mov_b32 v6, 0x3f803f80')
    for which in range(3):
        a(f's_add_u32 s52, s51, {which*4*MB}')
        for tt in range(2):
            b = acc(which, tt)
            if which == 0:
                for i in range(16): a(f'v_mul_f32 v{b+i}, s56, v{b+i}')
            for i in range(8):
                a(f'v_cvt_pk_bf16_f32 v{b+i}, v{b+2*i}, v{b+2*i+1}')
            if which < 2:
                a(f'v_cndmask_b32 v{b+6}, v5, v{b+6}, s[60:61]')
                a(f'v_cndmask_b32 v{b+7}, v5, v{b+7}, s[60:61]')
            else:
                for i in range(8): a(f'v_cndmask_b32 v{b+i}, v{b+i}, v6, s[62:63]')
            a.vmem(f'buffer_store_dwordx4 {vr(b,4)}, v3, s[16:19], s52 offen offset:{tt*2048}{STFLAG}', 'out')
            a.vmem(f'buffer_store_dwordx4 {vr(b+4,4)}, v3, s[16:19], s52 offen offset:{tt*2048+1024}{STFLAG}', 'out')
    if STAMP: a('s_waitcnt vmcnt(0)')
    stamp(a, 11)
    if not os.environ.get('HDBG'): stamp_flush(a, 15, 's59')
    rt_end(a, 0, 's59')
    a.label('K1_END')
    a('s_endpgm')
    return descriptor(name, 160)

K2_BUF = 32768
WOPF = int(os.environ.get('WOPF', '0'))
K2_COMB = 4*K2_BUF
K2_FLAG = K2_COMB + 4*5*1024
K2_LDS = K2_FLAG + 64
VQ, VNEG, VS, VP, VO, VK, VV = 16, 24, 40, 72, 80, 96, 112
AQ, AK, AV = 128, 136, 152
def gen_k2(a):
    name = 'attn_kernel'
    header(a, name)
    a('s_cmp_ge_u32 s2, 256')
    a('s_cbranch_scc1 K2_END')
    rt_start(a)
    stamp(a, 0)
    a('s_load_dwordx2 s[4:5], s[0:1], 72')
    a('s_and_b32 s20, s2, 15')
    a('s_lshr_b32 s21, s2, 4')
    a('v_lshrrev_b32 v1, 6, v0')
    a('v_and_b32 v2, 63, v0')
    a('v_readfirstlane_b32 s22, v1')
    a('s_and_b32 s23, s22, 3')
    a('s_lshr_b32 s24, s22, 2')
    a('s_lshl_b32 s25, s21, 2'); a('s_add_u32 s25, s25, s23')
    a('v_lshlrev_b32 v3, 4, v2')
    a('s_lshl_b32 s26, s22, 11')
    a('v_add_u32 v4, s26, v3')
    a('s_lshl_b32 s27, s24, 13')
    a('v_add_u32 v5, s27, v3')
    a('v_add_u32 v6, 0x10000, v5')
    a('s_lshl_b32 s28, s20, 17')
    a('s_add_u32 s29, s28, 0x200000')
    a('s_lshl_b32 s30, s25, 11')
    a('v_and_b32 v7, 31, v2')
    a('v_lshlrev_b32 v8, 2, v7')
    a('v_mov_b32 v10, 0')
    a(f'v_mov_b32 v11, {K2_FLAG}')
    a('ds_write_b32 v11, v10')
    a('s_waitcnt lgkmcnt(0)')
    srd(a, 8, 4, 5, WS_BYTES)
    def dma_stage(st):
        buf = (st % 4) * K2_BUF
        for reg, loff in ((KF_OFF, 0), (VF_OFF, 16384)):
            a(f's_add_u32 s36, s26, {buf + loff}')
            a('s_mov_b32 m0, s36')
            a(f's_add_u32 s37, s29, {reg + st*16384}')
            a.vmem('buffer_load_dwordx4 v4, s[8:11], s37 offen lds', f'st{st}')
            a.vmem('buffer_load_dwordx4 v4, s[8:11], s37 offen offset:1024 lds', f'st{st}')
    a('s_add_u32 s31, s29, s30')
    a.vmem(f'buffer_load_dwordx4 {vr(VQ,4)}, v3, s[8:11], s31 offen', 'q')
    a.vmem(f'buffer_load_dwordx4 {vr(VQ+4,4)}, v3, s[8:11], s31 offen offset:1024', 'q')
    a('s_add_u32 s31, s29, s27')
    a(f's_add_u32 s31, s31, {KF_OFF}')
    a.vmem(f'buffer_load_dwordx4 {vr(VK,4)}, v3, s[8:11], s31 offen', 'q')
    a.vmem(f'buffer_load_dwordx4 {vr(VK+4,4)}, v3, s[8:11], s31 offen offset:1024', 'q')
    dma_stage(0)
    a('s_lshl_b32 s31, s25, 7')
    a(f's_add_u32 s31, s31, {G_OFF}')
    a.vmem('buffer_load_dword v9, v8, s[8:11], s31 offen', 'st1')
    dma_stage(1)
    a('s_add_u32 s31, s28, s30')
    a('s_sub_u32 s32, s31, 2048')
    a('s_cmp_eq_u32 s25, 0')
    a('s_cselect_b32 s32, s31, s32')
    a('s_cselect_b32 s33, 1000, 32')
    a('s_cmp_eq_u32 s24, 0')
    a('s_cselect_b32 s31, 0x40000000, s31')
    a('s_cselect_b32 s32, 0x40000000, s32')
    a(f's_add_u32 s34, s32, {KF_OFF}')
    a(f's_add_u32 s35, s31, {KF_OFF}')
    a(f's_add_u32 s44, s32, {VF_OFF}')
    a(f's_add_u32 s45, s31, {VF_OFF}')
    deferred = [
        lambda: dma_stage(2),
        lambda: dma_stage(3),
        lambda: (a.vmem(f'buffer_load_dwordx4 {vr(AQ,4)}, v3, s[8:11], s31 offen', 'a'),
                 a.vmem(f'buffer_load_dwordx4 {vr(AQ+4,4)}, v3, s[8:11], s31 offen offset:1024', 'a'),
                 a.vmem(f'buffer_load_dwordx4 {vr(AK,4)}, v3, s[8:11], s34 offen', 'a'),
                 a.vmem(f'buffer_load_dwordx4 {vr(AK+4,4)}, v3, s[8:11], s34 offen offset:1024', 'a')),
        lambda: (a.vmem(f'buffer_load_dwordx4 {vr(AK+8,4)}, v3, s[8:11], s35 offen', 'a'),
                 a.vmem(f'buffer_load_dwordx4 {vr(AK+12,4)}, v3, s[8:11], s35 offen offset:1024', 'a'),
                 a.vmem(f'buffer_load_dwordx4 {vr(AV,4)}, v3, s[8:11], s44 offen', 'a')),
        lambda: (a.vmem(f'buffer_load_dwordx4 {vr(AV+4,4)}, v3, s[8:11], s44 offen offset:1024', 'a'),
                 a.vmem(f'buffer_load_dwordx4 {vr(AV+8,4)}, v3, s[8:11], s45 offen', 'a'),
                 a.vmem(f'buffer_load_dwordx4 {vr(AV+12,4)}, v3, s[8:11], s45 offen offset:1024', 'a')),
    ]

    def finalize(gate_expr_reg, br):
        a(f'v_mov_b32 v13, v{VO+12}')
        a(f'v_mov_b32 v14, v{VO+12}')
        a('v_permlane32_swap_b32 v13, v14')
        a('v_rcp_f32 v14, v14')
        a(f'v_mul_f32 v14, v14, v{gate_expr_reg}')
        for r in range(16): a(f'v_mul_f32 v{VO+r}, v14, v{VO+r}')
        for i in range(8): a(f'v_cvt_pk_bf16_f32 v{VO+i}, v{VO+2*i}, v{VO+2*i+1}')
        a('v_cmp_gt_u32 vcc, 32, v2')
        a('v_mov_b32 v13, 0')
        a(f'v_cndmask_b32 v{VO+6}, v13, v{VO+6}, vcc')
        a(f'v_cndmask_b32 v{VO+7}, v13, v{VO+7}, vcc')
        a('s_lshl_b32 s38, s25, 16')
        a('s_lshl_b32 s39, s20, 11')
        a('s_add_u32 s38, s38, s39')
        a(f's_add_u32 s38, s38, {OF_OFF + br*32768}')
        a(f'buffer_store_dwordx4 {vr(VO,4)}, v3, s[8:11], s38 offen{STFLAG2}')
        a(f'buffer_store_dwordx4 {vr(VO+4,4)}, v3, s[8:11], s38 offen offset:1024{STFLAG2}')

    def lds_tile(idx, isv, t):
        st, i = idx >> 2, idx & 3
        b = st % 4
        base = 'v5' if b < 2 else 'v6'
        off = (b & 1) * K2_BUF + (16384 if isv else 0) + i*2048 + t*1024
        return base, off
    def rdK(idx):
        for t in range(2):
            base, off = lds_tile(idx, False, t)
            a(f'ds_read_b128 {vr(VK+(idx&1)*8+t*4,4)}, {base} offset:{off}')
    def rdV(idx):
        for t in range(2):
            base, off = lds_tile(idx, True, t)
            a(f'ds_read_b128 {vr(VV+(idx&1)*8+t*4,4)}, {base} offset:{off}')
    def stage_sync(st):
        a.vm_wait_tag(f'st{st}')
        a('s_barrier')
        if st >= 2 and st + 2 < 8: dma_stage(st + 2)
    NT = 32
    def smfma(idx, cneg, part):
        d = vr(VS+(idx&1)*16, 16); k = VK+(idx&1)*8
        c = vr(VNEG,16) if cneg else '0'
        if part == 0: a(f'v_mfma_f32_32x32x16_bf16 {d}, {vr(k,4)}, {vr(VQ,4)}, {c}')
        else:         a(f'v_mfma_f32_32x32x16_bf16 {d}, {vr(k+4,4)}, {vr(VQ+4,4)}, {d}')
    def pv(idx, first, part):
        v = VV+(idx&1)*8
        c = '0' if first else vr(VO,16)
        if part == 0: a(f'v_mfma_f32_32x32x16_bf16 {vr(VO,16)}, {vr(v,4)}, {vr(VP,4)}, {c}')
        else:         a(f'v_mfma_f32_32x32x16_bf16 {vr(VO,16)}, {vr(v+4,4)}, {vr(VP+4,4)}, {vr(VO,16)}')
    def tilemax(sb, dst):
        a(f'v_max3_f32 v{dst}, v{sb}, v{sb+1}, v{sb+2}')
        for r in range(3, 15, 2):
            a(f'v_max3_f32 v{dst}, v{dst}, v{sb+r}, v{sb+r+1}')
        a(f'v_max_f32 v{dst}, v{dst}, v{sb+15}')
        a(f'v_mov_b32 v13, v{dst}')
        a(f'v_permlane32_swap_b32 v{dst}, v13')
        a(f'v_max_f32 v{dst}, v{dst}, v13')
    stamp(a, 1)
    a.vm_wait_tag('q')
    d = vr(VS+16, 16)
    a(f'v_mfma_f32_32x32x16_bf16 {d}, {vr(VK,4)}, {vr(VQ,4)}, 0')
    a(f'v_mfma_f32_32x32x16_bf16 {d}, {vr(VK+4,4)}, {vr(VQ+4,4)}, {d}')
    tilemax(VS+16, 12)
    for r in range(16): a(f'v_sub_f32 v{VNEG+r}, 0, v12')
    smfma(0, True, 0); smfma(0, True, 1)
    stage_sync(0)
    stamp(a, 2)
    rdK(1)
    rdV(0)
    def quarter(sb, q):
        for i in (2*q, 2*q+1):
            a(f'v_exp_f32 v{sb+2*i}, v{sb+2*i}')
            a(f'v_exp_f32 v{sb+2*i+1}, v{sb+2*i+1}')
        for i in (2*q, 2*q+1):
            a(f'v_cvt_pk_bf16_f32 v{VP+i}, v{sb+2*i}, v{sb+2*i+1}')
    for idx in range(NT):
        sb = VS + (idx&1)*16
        n_out = 2
        if idx + 1 < NT:
            a('s_waitcnt lgkmcnt(2)')
            smfma(idx+1, True, 0)
        if idx + 2 < NT:
            if (idx + 2) % 4 == 0:
                stage_sync((idx+2) >> 2)
                stamp(a, 2 + ((idx+2) >> 2))
            rdK(idx+2); n_out += 2
        quarter(sb, 0)
        if idx > 0: pv(idx-1, False, 1)
        if idx + 1 < NT:
            rdV(idx+1); n_out += 2
        quarter(sb, 1)
        if idx + 1 < NT: smfma(idx+1, True, 1)
        if idx < len(deferred): deferred[idx]()
        if WOPF and idx == WOPF:
            a('s_lshr_b32 s46, s2, 3')
            a(f's_mul_i32 s46, s46, {224*128}')
            a(f's_add_u32 s46, s46, {WOF_OFF}')
            a('v_lshlrev_b32 v1, 7, v0')
            a('v_mov_b32 v13, 0x40000000')
            a('v_cmp_gt_u32 vcc, 224, v0')
            a('v_cndmask_b32 v1, v13, v1, vcc')
            a.vmem('buffer_load_dword v1, v1, s[8:11], s46 offen', 'wopf')
        quarter(sb, 2)
        a(f's_waitcnt lgkmcnt({n_out-2})')
        pv(idx, idx == 0, 0)
        quarter(sb, 3)
    pv(NT-1, False, 1)
    stamp(a, 10)
    a('v_sub_f32 v15, 1.0, v9')
    a(f'v_add_f32 v13, |v{VO}|, |v{VO+1}|')
    for r in range(2, 16): a(f'v_add_f32 v13, v13, |v{VO+r}|')
    a('v_mov_b32 v14, 0x7b800000')
    a('v_cmp_nlt_f32 vcc, v13, v14')
    a('s_cbranch_vccz K2_OKFAST')
    a('v_mov_b32 v10, 1')
    a(f'v_mov_b32 v11, {K2_FLAG}')
    a('ds_write_b32 v11, v10')
    a.label('K2_OKFAST')
    def combine(tag):
        a('s_mul_i32 s38, s23, %d' % (5*1024))
        a(f's_add_u32 s38, s38, {K2_COMB}')
        a('v_add_u32 v10, s38, v3')
        a('s_cmp_eq_u32 s24, 0')
        a(f's_cbranch_scc1 K2_C1_{tag}')
        for r in range(4): a(f'ds_write_b128 v10, {vr(VO+4*r,4)} offset:{1024*r}')
        a(f'ds_write_b32 v10, v12 offset:{4096}')
        a.label(f'K2_C1_{tag}')
        a('s_waitcnt lgkmcnt(0)')
        a('s_barrier')
    combine('F')
    a(f'v_mov_b32 v11, {K2_FLAG}')
    a('ds_read_b32 v11, v11')
    a('s_waitcnt lgkmcnt(0)')
    a('v_readfirstlane_b32 s38, v11')
    a('s_cmp_eq_u32 s38, 0')
    a('s_cbranch_scc1 K2_MERGE')
    a('s_barrier')
    a.vm_wait_all()
    for st in range(4): dma_stage(st)
    a('v_mov_b32 v12, 0xff7fffff')
    for r in range(16): a(f'v_mov_b32 v{VO+r}, 0')
    for idx in range(NT):
        if idx % 4 == 0: stage_sync(idx >> 2)
        rdK(idx); rdV(idx)
        a('s_waitcnt lgkmcnt(0)')
        smfma(idx, False, 0); smfma(idx, False, 1)
        sb = VS + (idx&1)*16
        tilemax(sb, 11)
        a('v_max_f32 v11, v11, v12')
        a('v_sub_f32 v10, v12, v11')
        a('v_exp_f32 v10, v10')
        a('v_mov_b32 v12, v11')
        for r in range(16):
            a(f'v_sub_f32 v{sb+r}, v{sb+r}, v11')
            a(f'v_exp_f32 v{sb+r}, v{sb+r}')
        for i in range(8): a(f'v_cvt_pk_bf16_f32 v{VP+i}, v{sb+2*i}, v{sb+2*i+1}')
        for r in range(16): a(f'v_mul_f32 v{VO+r}, v10, v{VO+r}')
        pv(idx, False, 0); pv(idx, False, 1)
    a('s_barrier')
    combine('S')
    a.label('K2_MERGE')
    a.reset_haz(); a.nop(16)
    a('s_waitcnt vmcnt(0)')
    a('s_cmp_eq_u32 s24, 0')
    a('s_cbranch_scc0 K2_ABR')
    for r in range(4): a(f'ds_read_b128 {vr(VS+4*r,4)}, v10 offset:{1024*r}')
    a(f'ds_read_b32 v11, v10 offset:{4096}')
    a('s_waitcnt lgkmcnt(0)')
    a('v_max_f32 v13, v11, v12')
    a('v_sub_f32 v11, v11, v13')
    a('v_sub_f32 v12, v12, v13')
    a('v_exp_f32 v11, v11')
    a('v_exp_f32 v12, v12')
    for r in range(16):
        a(f'v_mul_f32 v{VO+r}, v12, v{VO+r}')
        a(f'v_fmac_f32 v{VO+r}, v11, v{VS+r}')
    finalize(15, 1)
    a('s_waitcnt vmcnt(0)')
    stamp(a, 11)
    if not os.environ.get('HDBG'): stamp_flush(a, 12, 's22')
    rt_end(a, 1, 's22')
    a('s_endpgm')
    a.label('K2_ABR')
    a.reset_haz(); a.nop(4)
    S0, S1 = VS, VS+16
    a(f'v_mfma_f32_32x32x16_bf16 {vr(S0,16)}, {vr(AK,4)}, {vr(AQ,4)}, 0')
    a(f'v_mfma_f32_32x32x16_bf16 {vr(S0,16)}, {vr(AK+4,4)}, {vr(AQ+4,4)}, {vr(S0,16)}')
    a(f'v_mfma_f32_32x32x16_bf16 {vr(S1,16)}, {vr(AK+8,4)}, {vr(AQ,4)}, 0')
    a(f'v_mfma_f32_32x32x16_bf16 {vr(S1,16)}, {vr(AK+12,4)}, {vr(AQ+4,4)}, {vr(S1,16)}')
    a('v_mov_b32 v12, 0xff800000')
    a('s_cmp_eq_u32 s25, 0')
    a('s_cselect_b32 s56, 0, -1')
    a('s_mov_b32 s57, s56')
    def lanemask(r, off):
        m = 0
        for l in range(64):
            i, h = l & 31, l >> 5
            d = i + off - ((r & 3) + 8*(r >> 2) + 4*h)
            if 0 <= d <= 14 and d % 2 == 0: m |= 1 << l
        return m
    regs = [(S0 + r, r, 32) for r in range(8, 16)] + [(S1 + r, r, 0) for r in range(16)]
    for n, (vreg, r, off) in enumerate(regs):
        m = lanemask(r, off)
        sp = 48 + 2*(n & 3)
        a(f's_mov_b32 s{sp}, {m & 0xffffffff:#x}')
        a(f's_mov_b32 s{sp+1}, {m >> 32:#x}')
        if off == 32: a(f's_and_b64 s[{sp}:{sp+1}], s[{sp}:{sp+1}], s[56:57]')
        a(f'v_cndmask_b32 v{vreg}, v12, v{vreg}, s[{sp}:{sp+1}]')
    B0 = S0 + 8
    a(f'v_max3_f32 v13, v{B0}, v{B0+1}, v{B0+2}')
    for r in range(3, 23, 2):
        a(f'v_max3_f32 v13, v13, v{B0+r}, v{B0+r+1}')
    a(f'v_max_f32 v13, v13, v{B0+23}')
    a('v_mov_b32 v14, v13')
    a('v_permlane32_swap_b32 v13, v14')
    a('v_max_f32 v13, v13, v14')
    for r in range(24):
        a(f'v_sub_f32 v{B0+r}, v{B0+r}, v13')
        a(f'v_exp_f32 v{B0+r}, v{B0+r}')
    for i in range(12):
        a(f'v_cvt_pk_bf16_f32 v{S0+i}, v{B0+2*i}, v{B0+2*i+1}')
    a(f'v_mfma_f32_32x32x16_bf16 {vr(VO,16)}, {vr(AV+4,4)}, {vr(S0,4)}, 0')
    a(f'v_mfma_f32_32x32x16_bf16 {vr(VO,16)}, {vr(AV+8,4)}, {vr(S0+4,4)}, {vr(VO,16)}')
    a(f'v_mfma_f32_32x32x16_bf16 {vr(VO,16)}, {vr(AV+12,4)}, {vr(S0+8,4)}, {vr(VO,16)}')
    finalize(9, 0)
    a.label('K2_END')
    a('s_endpgm')
    return descriptor(name, 168)

K3_NB = 5
def gen_k3(a):
    name = 'out_kernel'
    header(a, name)
    a('s_cmp_ge_u32 s2, 224')
    a('s_cbranch_scc1 K3_END')
    rt_start(a)
    stamp(a, 0)
    a('s_load_dwordx2 s[4:5], s[0:1], 72')
    a('s_load_dwordx2 s[6:7], s[0:1], 56')
    a('s_and_b32 s20, s2, 7'); a('s_lshr_b32 s21, s2, 3')
    a('s_mul_i32 s22, s21, 37'); a('s_lshr_b32 s22, s22, 8')
    a('s_mul_i32 s23, s22, 7'); a('s_sub_u32 s23, s21, s23')
    a('s_lshl_b32 s20, s20, 2'); a('s_add_u32 s22, s22, s20')
    a('v_lshrrev_b32 v1, 6, v0')
    a('v_and_b32 v2, 63, v0')
    a('v_readfirstlane_b32 s32, v1')
    a('s_and_b32 s24, s32, 3')
    a('s_and_b32 s25, s24, 1')
    a('s_lshr_b32 s26, s24, 1')
    a('v_lshlrev_b32 v3, 4, v2')
    a('s_cmp_lt_u32 s32, 4')
    a('s_cbranch_scc1 K3_COMPUTE')
    a('s_lshl_b32 s27, s22, 1'); a('s_add_u32 s27, s27, s24'); a('s_lshl_b32 s27, s27, 16'); a(f's_add_u32 s27, s27, {OF_OFF}')
    a('s_lshl_b32 s28, s23, 1'); a('s_add_u32 s28, s28, s24'); a('s_sub_u32 s28, s28, 2'); a('s_lshl_b32 s28, s28, 16'); a(f's_add_u32 s28, s28, {WOF_OFF}')
    a('s_cmp_lt_u32 s24, 2')
    a('s_cselect_b32 s27, s27, s28')
    a('s_lshl_b32 s29, s24, 13')
    a('s_waitcnt lgkmcnt(0)')
    srd(a, 8, 4, 5, WS_BYTES)
    def dma_stage(st):
        buf = (st % K3_NB) * 32768
        for half in range(2):
            a(f's_add_u32 s30, s29, {buf + half*4096}')
            a('s_mov_b32 m0, s30')
            a(f's_add_u32 s31, s27, {st*8192 + half*4096}')
            for q in range(4):
                a.vmem(f'buffer_load_dwordx4 v3, s[8:11], s31 offen offset:{q*1024} lds', f'st{st}')
    for st in range(2): dma_stage(st)
    nxt = 2
    for st in range(8):
        a.vm_wait_tag(f'st{st}')
        a('s_barrier')
        lim = max(K3_NB - 1, st - 2 + K3_NB)
        cnt = 0
        while nxt < 8 and nxt <= lim and cnt < 2:
            dma_stage(nxt); nxt += 1; cnt += 1
    a('s_endpgm')
    a.label('K3_COMPUTE')
    a.reset_haz(); a.vm = []
    a('s_lshl_b32 s30, s25, 13')
    a('v_add_u32 v4, s30, v3')
    a('s_lshl_b32 s30, s26, 13')
    a('s_add_u32 s30, s30, 16384')
    a('v_add_u32 v5, s30, v3')
    a('v_add_u32 v6, 0x10000, v4')
    a('v_add_u32 v7, 0x10000, v5')
    a('v_and_b32 v8, 31, v2')
    a('s_lshl_b32 s30, s22, 6'); a('s_lshl_b32 s31, s25, 5'); a('s_add_u32 s30, s30, s31')
    a('v_add_u32 v8, s30, v8')
    a('s_movk_i32 s31, 896')
    a('v_mul_lo_u32 v8, v8, s31')
    a('v_lshrrev_b32 v9, 5, v2')
    a('v_lshl_add_u32 v8, v9, 4, v8')
    a('s_lshl_b32 s30, s23, 7'); a('s_lshl_b32 s31, s26, 6'); a('s_add_u32 s30, s30, s31')
    a('s_waitcnt lgkmcnt(0)')
    srd(a, 12, 6, 7, 2048*448*2)
    ACC, FA, FB = 16, 32, 48
    PD = 4
    a('v_add_u32 v10, 0x20000, v4')
    a('v_add_u32 v11, 0x20000, v5')
    def rd(ks):
        st, k = ks >> 3, ks & 7
        b = st % K3_NB
        off = (b & 1)*32768 + k*1024
        ra = ('v5', 'v7', 'v11')[b >> 1]; rb = ('v4', 'v6', 'v10')[b >> 1]
        a(f'ds_read_b128 {vr(FA+(ks%PD)*4,4)}, {ra} offset:{off}')
        a(f'ds_read_b128 {vr(FB+(ks%PD)*4,4)}, {rb} offset:{off}')
    stamp(a, 1)
    a('s_barrier')
    stamp(a, 2)
    for ks in range(PD-1): rd(ks)
    for ks in range(64):
        nk = ks + PD - 1
        if nk < 64:
            if nk % 8 == 0:
                a('s_barrier')
                stamp(a, 2 + (nk >> 3))
            rd(nk)
            a(f's_waitcnt lgkmcnt({2*(PD-1)})')
        else:
            a(f's_waitcnt lgkmcnt({2*(63-ks)})')
        c = '0' if ks == 0 else vr(ACC,16)
        a(f'v_mfma_f32_32x32x16_bf16 {vr(ACC,16)}, {vr(FA+(ks%PD)*4,4)}, {vr(FB+(ks%PD)*4,4)}, {c}')
    stamp(a, 10)
    for i in range(8): a(f'v_cvt_pk_bf16_f32 v{ACC+i}, v{ACC+2*i}, v{ACC+2*i+1}')
    for p in range(2):
        b = ACC + 4*p
        a(f'v_permlane32_swap_b32 v{b}, v{b+2}')
        a(f'v_permlane32_swap_b32 v{b+1}, v{b+3}')
    for p in range(2):
        b = ACC + 4*p
        a(f'buffer_store_dwordx4 {vr(b,4)}, v8, s[12:15], s30 offen offset:{32*p}')
    if STAMP: a('s_waitcnt vmcnt(0)')
    stamp(a, 11)
    if not os.environ.get('HDBG'): stamp_flush(a, 12, 's32')
    rt_end(a, 2, 's32')
    a.label('K3_END')
    a('s_endpgm')
    return descriptor(name, 64)

def main():
    a = Asm()
    hdr = open('cdna_kernels/%s.s.ref' % NAME).read().split('; Override launch')[0]
    out = hdr
    out += f'; @launch kernel=qkv_kernel grid=(256,1,1) block=({256+64*NLD},1,1) lds={K1_STAGE*K1_NBUF}\n'
    out += f'; @launch kernel=attn_kernel grid=(256,1,1) block=(512,1,1) lds={K2_LDS}\n'
    out += f'; @launch kernel=out_kernel grid=(224,1,1) block=(512,1,1) lds={K3_NB*32768}\n'
    out += '.amdgcn_target "amdgcn-amd-amdhsa--gfx950"\n.text\n'
    d1 = gen_k1(a); d2 = gen_k2(a); d3 = gen_k3(a)
    out += a.text()
    out += '.section .rodata,"a"\n'
    for d in (d1, d2, d3):
        out += '.p2align 6\n' + d
    open('cdna_kernels/%s.s' % NAME, 'w').write(out)
main()
```
